```python
import torch

def _softmax(x, axis=-1):
    return torch.softmax(x, dim=axis)
def _gelu(x):
    return torch.nn.functional.gelu(x, approximate="tanh")
def _silu(x):
    return torch.nn.functional.silu(x)
def _sigmoid(x):
    return torch.sigmoid(x)
def _layernorm(x, axis=-1, eps=1e-5):
    m = x.mean(dim=axis, keepdim=True)
    v = x.var(dim=axis, keepdim=True, unbiased=False)
    return (x - m) / torch.sqrt(v + eps)
def _scatter_add(tgt, idx, src, axis=0):
    return tgt.clone().index_add_(axis, idx, src)
def _segment_sum(src, seg, n):
    out = torch.zeros((n,) + src.shape[1:], dtype=src.dtype)
    return out.index_add_(0, seg, src)
def _pad(x, pw):
    flat = tuple(v for pair in reversed(pw) for v in pair)
    return torch.nn.functional.pad(x, flat)

kernel_name = 'parallel_sum__gqa_block_cached__moe_arch_mod__decode'

def setup_inputs():

    _w = (lambda a: (lambda t: t.to(torch.bfloat16) if t.is_floating_point() else t)(torch.as_tensor(a)))
    def _A_setup():
        B, Sq, D = 1, 1, 512
        Hq, Hkv, Sk, Dh = 32, 8, 65536, 128
        assert Hq % Hkv == 0, (Hq, Hkv)
        return {
            "x": _w((lambda *s: torch.randn(*s, dtype=torch.bfloat16) * 0.05)(B, Sq, D)),
            "k_cache": _w((lambda *s: torch.randn(*s, dtype=torch.bfloat16) * 3.2)(B, Hkv, Sk, Dh)),
            "v_cache": _w((lambda *s: torch.randn(*s, dtype=torch.bfloat16) * 1.6)(B, Hkv, Sk, Dh)),
            "wq": _w((lambda *s: torch.randn(*s, dtype=torch.bfloat16) * 3.2)(D, Hq * Dh) * (D ** -0.5)),
            "wo": _w((lambda *s: torch.randn(*s, dtype=torch.bfloat16) * 1.6)(Hq * Dh, D) * ((Hq * Dh) ** -0.5)),
        }
    _A_in = _A_setup()

    def _B_setup():
        B, S, D, F, C = 1, 1, 512, 1792, 1
        return {
            "x": _w((lambda *s: torch.randn(*s, dtype=torch.bfloat16) * 0.05)(B, S, D)),
            "w_r": _w((lambda *s: torch.randn(*s, dtype=torch.bfloat16) * 0.1)(D)),
            "w_gate": _w((lambda *s: torch.randn(*s, dtype=torch.bfloat16) * 0.1)(D, F)),
            "w_up": _w((lambda *s: torch.randn(*s, dtype=torch.bfloat16) * 0.1)(D, F)),
            "w_down": _w((lambda *s: torch.randn(*s, dtype=torch.bfloat16) * 0.1)(F, D)),
        }
    _B_in = _B_setup()

    return {
        "A_x": _A_in["x"],
        "A_k_cache": _A_in["k_cache"],
        "A_v_cache": _A_in["v_cache"],
        "A_wq": _A_in["wq"],
        "A_wo": _A_in["wo"],
        "B_x": _B_in["x"],
        "B_w_r": _B_in["w_r"],
        "B_w_gate": _B_in["w_gate"],
        "B_w_up": _B_in["w_up"],
        "B_w_down": _B_in["w_down"],
    }

def reference(A_x, A_k_cache, A_v_cache, A_wq, A_wo, B_x, B_w_r, B_w_gate, B_w_up, B_w_down):
    def _A_ref(x, k_cache, v_cache, wq, wo):
        B, Sq, D = x.shape
        Hq, Dh = 32, 128
        Hkv = k_cache.shape[1]
        rep = Hq // Hkv
        q = (lambda x, *d: x.permute(*d))((x @ wq).reshape(B, Sq, Hq, Dh), 0, 2, 1, 3)
        k = (lambda x, n, axis: torch.repeat_interleave(x, n, dim=axis))(k_cache, rep, axis=1)
        v = (lambda x, n, axis: torch.repeat_interleave(x, n, dim=axis))(v_cache, rep, axis=1)
        scores = torch.einsum("bhqd,bhkd->bhqk", q, k) * (Dh ** -0.5)
        p = _softmax(scores, axis=-1)
        o = torch.einsum("bhqk,bhkd->bhqd", p, v)
        return (lambda x, *d: x.permute(*d))(o, 0, 2, 1, 3).reshape(B, Sq, Hq * Dh) @ wo

    def _B_ref(x, w_r, w_gate, w_up, w_down):
        B, S, D = x.shape
        C = 1
        r = x @ w_r
        idx = torch.argsort(-r, axis=-1)[:, :C]
        idx_e = (lambda x, n, axis: torch.repeat_interleave(x, n, dim=axis))(idx.reshape(B, C, 1), D, axis=2)
        x_sel = (lambda x, i, axis: torch.take_along_dim(x, i, dim=axis))(x, idx_e, axis=1)
        g = _silu(x_sel @ w_gate)
        u = x_sel @ w_up
        y = (g * u) @ w_down
        r_sel = _sigmoid((lambda x, i, axis: torch.take_along_dim(x, i, dim=axis))(r, idx, axis=1))
        y = y * r_sel.reshape(B, C, 1)
        b_off = (torch.arange(B) * S).reshape(B, 1)
        flat_idx = (idx + b_off).reshape(B * C)
        zero = (x * 0.0).reshape(B * S, D)
        upd = _scatter_add(zero, flat_idx, y.reshape(B * C, D), axis=0)
        return x + upd.reshape(B, S, D)

    x = A_x
    xn = _layernorm(x, axis=-1)
    return x + _A_ref(xn, A_k_cache, A_v_cache, A_wq, A_wo) + _B_ref(xn, B_w_r, B_w_gate, B_w_up, B_w_down)
```

```python
import re

TRANS = ("v_exp_", "v_log_", "v_rcp_", "v_rsq_", "v_sqrt_", "v_sin_", "v_cos_")

def _regs(tok):
    tok = tok.strip()
    neg = tok.lstrip("-|").rstrip("|")
    m = re.fullmatch(r"([vsa])\[(\d+):(\d+)\]", neg)
    if m:
        return {(m.group(1), k) for k in range(int(m.group(2)), int(m.group(3)) + 1)}
    m = re.fullmatch(r"([vsa])(\d+)", neg)
    if m:
        return {(m.group(1), int(m.group(2)))}
    if neg in ("vcc", "vcc_lo", "vcc_hi"):
        return {("s", "vcc")}
    if neg in ("exec", "exec_lo", "exec_hi"):
        return {("s", "exec")}
    if neg == "m0":
        return {("s", "m0")}
    return set()

class Ins:
    def __init__(self, text):
        self.text = text
        t = text.split(";")[0].strip()
        self.is_label = t.endswith(":")
        self.is_dir = t.startswith(".")
        self.op = ""
        self.dst = set(); self.src = set()
        if self.is_label or self.is_dir or not t:
            self.kind = "none"; return
        parts = t.split(None, 1)
        op = self.op = parts[0]
        rest = parts[1] if len(parts) > 1 else ""
        ops = []; cur = ""; depth = 0
        for ch in rest:
            if ch == "[": depth += 1
            if ch == "]": depth -= 1
            if ch == "," and depth == 0:
                ops.append(cur); cur = ""
            else:
                cur += ch
        if cur.strip(): ops.append(cur)
        mods = ""
        if ops:
            last = ops[-1].strip().split(None, 1)
            ops[-1] = last[0] if last else ""
            mods = last[1] if len(last) > 1 else ""
        ops = [o.strip() for o in ops]
        self.ops = ops; self.mods = mods
        self.dpp = bool(re.search(r"quad_perm|row_shl|row_shr|row_ror|row_mirror|row_half_mirror|row_bcast|row_newbcast|wave_", rest))
        R = [_regs(o) for o in ops]
        if op.startswith("v_mfma"):
            self.kind = "mfma"
            self.dst = R[0]; self.srcA = R[1]; self.srcB = R[2]; self.srcC = R[3]
            self.src = R[1] | R[2] | R[3]
        elif op.startswith("v_"):
            self.kind = "valu"
            if op.startswith("v_cmp"):
                self.dst = R[0]; self.src = set().union(*R[1:])
                if op.startswith("v_cmpx"): self.dst = self.dst | {("s", "exec")}
            elif op.startswith("v_permlane") and "swap" in op:
                self.dst = R[0] | R[1]; self.src = R[0] | R[1]
            elif op.startswith(("v_dot2c", "v_fmac", "v_mac", "v_writelane", "v_pk_fmac")):
                self.dst = R[0]; self.src = set().union(*R)
            elif op.startswith(("v_add_co", "v_sub_co", "v_addc_co", "v_subb_co")):
                self.dst = R[0] | R[1]; self.src = set().union(*R[2:])
            elif op.startswith("v_nop"):
                pass
            else:
                self.dst = R[0]; self.src = set().union(*R[1:]) if len(R) > 1 else set()
                if self.dpp:
                    self.src = self.src | R[0]
            self.trans = op.startswith(TRANS)
            self.dot = op.startswith("v_dot")
            self.permlane = op.startswith("v_permlane")
            self.readlane = op.startswith(("v_readlane", "v_readfirstlane", "v_writelane"))
        elif op.startswith(("buffer_", "global_")):
            self.kind = "vmem"
            if "load" in op and " lds" not in (" " + mods):
                self.dst = R[0]; self.src = set().union(*R[1:])
            elif "atomic" in op and "sc0" in mods:
                self.dst = R[0]; self.src = set().union(*R)
            else:
                self.src = set().union(*R)
            self.wide_store = ("store" in op) and op.endswith(("x3", "x4"))
            self.store_data = R[0] if "store" in op else set()
        elif op.startswith("ds_"):
            self.kind = "ds"
            if op.startswith(("ds_read", "ds_bpermute", "ds_permute", "ds_swizzle")) or "_rtn" in op:
                self.dst = R[0]; self.src = set().union(*R[1:])
            else:
                self.src = set().union(*R)
        elif op.startswith("s_"):
            self.kind = "salu"
            if op.startswith("s_nop"):
                self.nop = int(ops[0], 0) + 1
            if op.startswith(("s_cmp", "s_cbranch", "s_branch", "s_waitcnt", "s_barrier", "s_sleep", "s_setprio", "s_endpgm", "s_nop")):
                self.src = set().union(*R) if R else set()
            else:
                self.dst = R[0] if R else set(); self.src = set().union(*R[1:]) if len(R) > 1 else set()
                if "saveexec" in op: self.dst = self.dst | {("s", "exec")}
        else:
            self.kind = "other"

def isv(r): return r[0] in ("v", "a")
def iss(r): return r[0] == "s"

def pad_hazards(lines):
    out = []
    hist = []
    clock = 0
    def need_for(ins):
        need = 0
        for p, pos in hist:
            dist = clock - pos - 1
            req = 0
            if p.kind == "valu":
                pv = {r for r in p.dst if isv(r)}; ps = {r for r in p.dst if iss(r)}
                if ins.kind == "mfma" and pv & ins.src: req = max(req, 2)
                if ins.kind == "valu":
                    if ins.dpp and pv & ins.src: req = max(req, 2)
                    if ins.permlane and pv & ins.src: req = max(req, 2)
                    if ins.readlane and not ins.op.startswith("v_writelane") and pv & ins.src: req = max(req, 1)
                    if p.trans and not ins.trans and pv & ins.src: req = max(req, 1)
                    if p.trans and ins.trans and pv & ins.src: req = max(req, 1)
                    if ps & ins.src: req = max(req, 4 if ins.readlane else 2)
                    if ("s", "exec") in ps: req = max(req, 5 if ins.dpp else 4)
                    if p.dot and (pv & (ins.src | ins.dst)):
                        same = ins.op == p.op
                        if same and pv == ins.dst and not (pv & (set().union(*[_regs(o) for o in ins.ops[1:3]]))):
                            pass
                        else:
                            req = max(req, 3)
                if ins.kind in ("vmem", "ds"):
                    if ps & ins.src: req = max(req, 5)
                    if p.dot and (pv & ins.src): req = max(req, 3)
                    if p.trans and (pv & ins.src): req = max(req, 1)
                if ins.kind == "mfma" and ("s", "exec") in ps: req = max(req, 4)
                if ins.kind == "mfma" and p.dot and pv & ins.src: req = max(req, 3)
            elif p.kind == "mfma":
                if ins.kind == "mfma":
                    if p.dst & (ins.srcA | ins.srcB): req = max(req, 8)
                    if p.dst & ins.srcC and p.dst != ins.srcC: req = max(req, 6)
                    if p.dst & ins.dst and p.dst != ins.srcC: req = max(req, 8)
                elif ins.kind in ("valu",):
                    if p.dst & (ins.src | ins.dst): req = max(req, 8)
                    if p.srcC & ins.dst: req = max(req, 3)
                elif ins.kind in ("vmem", "ds"):
                    if p.dst & (ins.src | ins.dst): req = max(req, 8)
            elif p.kind == "vmem":
                if getattr(p, "wide_store", False):
                    if ins.kind == "valu" and p.store_data & ins.dst: req = max(req, 2)
                    elif p.store_data & ins.dst: req = max(req, 1)
            elif p.kind == "salu":
                if ("s", "m0") in p.dst and (ins.kind in ("vmem", "ds")): req = max(req, 1)
            need = max(need, req - dist)
        return need
    def fence_need():
        need = 0
        for p, pos in hist:
            dist = clock - pos - 1
            req = 0
            if p.kind == "valu":
                req = 2
                if p.dot: req = 3
                if any(iss(r) for r in p.dst): req = 5
            elif p.kind == "mfma": req = 8
            elif p.kind == "vmem" and getattr(p, "wide_store", False): req = 2
            elif p.kind == "salu" and ("s", "m0") in p.dst: req = 1
            need = max(need, req - dist)
        return need
    def emit_nop(n):
        nonlocal clock
        while n > 0:
            k = min(n, 8)
            out.append(f"\ts_nop {k-1}")
            clock += k; n -= k
    for ln in lines:
        ins = Ins(ln)
        if ins.kind == "none":
            if ins.is_label:
                emit_nop(fence_need()); hist = []
            out.append(ln); continue
        if ins.op.startswith(("s_cbranch", "s_branch", "s_endpgm", "s_setpc")):
            n = fence_need() - 1
            if n > 0: emit_nop(n)
            out.append("\t" + ln.strip()); clock += 1
            continue
        n = need_for(ins)
        if n > 0: emit_nop(n)
        out.append("\t" + ln.strip())
        if ins.op.startswith("s_nop"):
            clock += ins.nop
        else:
            hist.append((ins, clock)); clock += 1
        hist = [(p, pos) for p, pos in hist if clock - pos <= 24]
    return out

class Asm:
    def __init__(self):
        self.L = []
        self._n = 0
    def __call__(self, s):
        for ln in s.strip().split("\n"):
            ln = ln.strip()
            if ln: self.L.append(ln)
    def label(self, name): self.L.append(name + ":")
    def uniq(self, p):
        self._n += 1; return f"{p}_{self._n}"
    def text(self): return "\n".join(pad_hazards(self.L)) + "\n"
```

```python
import sys
from asmlib import Asm

KNAME = "parallel_sum__gqa_block_cached__moe_arch_mod__decode_kernel"
WS_QG = 0x1000
WS_ST = 0x8000
WS_AP = 0x10000
WS_YP = 0x80000
WS_OP = 0x100000
WS_DBG = 0x200000
WS_SIZE = 0x300000
L_T = 0; L_Q = 4096; L_O = 5120; L_ST = 13312; L_G = 13568; L_PP = 14592; L_RS = 14848
LDS_BYTES = 15360
SPIN_LIMIT = 40000

S_X, S_K, S_V, S_WQ, S_WO, S_WR, S_WG, S_WU, S_WD, S_OUT, S_WS = 8, 10, 12, 14, 16, 20, 22, 24, 26, 28, 32
S_G, S_SP, S_WAVE, S_TAG = 34, 35, 36, 37
SRD_WS = 40
SRD_A = 44
SRD_B = 48
SRD_C = 52
S_OFF = 56
S_SPIN = 57
S_HI = 58
S_LOG2E = 59
S_SCALE = 60
S_M1 = 62
S_M2 = 64
S_T0 = 66
S_TS = 80

def srd(a, d, base, off_sgpr=None, off_imm=0, size=0):
    if off_sgpr is not None:
        a(f"s_add_u32 s{d}, s{base}, s{off_sgpr}")
        a(f"s_addc_u32 s{d+1}, s{base+1}, 0")
    else:
        a(f"s_mov_b32 s{d}, s{base}")
        a(f"s_mov_b32 s{d+1}, s{base+1}")
    a(f"s_mov_b32 s{d+2}, {size:#x}")
    a(f"s_mov_b32 s{d+3}, 0x00020000")

def S(d): return f"s[{d}:{d+3}]"
def V4(r): return f"v[{r}:{r+3}]"
def V2(r): return f"v[{r}:{r+1}]"

def allreduce64(a, v, t, op):
    a(f"{op}_dpp v{v}, v{v}, v{v} quad_perm:[1,0,3,2] row_mask:0xf bank_mask:0xf")
    a(f"{op}_dpp v{v}, v{v}, v{v} quad_perm:[2,3,0,1] row_mask:0xf bank_mask:0xf")
    a(f"{op}_dpp v{v}, v{v}, v{v} row_half_mirror row_mask:0xf bank_mask:0xf")
    a(f"{op}_dpp v{v}, v{v}, v{v} row_mirror row_mask:0xf bank_mask:0xf")
    rows_reduce(a, v, t, op)

def rows_reduce(a, v, t, op):
    a(f"v_mov_b32 v{t}, v{v}")
    a(f"v_permlane16_swap_b32 v{v}, v{t}")
    a(f"{op} v{v}, v{v}, v{t}")
    a(f"v_mov_b32 v{t}, v{v}")
    a(f"v_permlane32_swap_b32 v{v}, v{t}")
    a(f"{op} v{v}, v{v}, v{t}")

def rnd(a, v):
    a(f"v_cvt_pk_bf16_f32 v{v}, v{v}, v{v}")
    a(f"v_and_b32 v{v}, s{S_HI}, v{v}")

class Gen:
    def __init__(self, dbg=False, early=3, qdelay=0, wflag="nt", a0=True, pace=0, mprio=0, paceto=48):
        self.dbg = dbg; self.early = early; self.qdelay = qdelay; self.wflag = wflag; self.a0 = a0
        self.pace = pace; self.mprio = mprio; self.paceto = paceto; self.nissued = None
        self.a = Asm()

    def stamp(self, idx):
        if self.dbg:
            self.a(f"s_memrealtime s[{S_TS+2*idx}:{S_TS+2*idx+1}]")

    def dump_stamps(self, n, slot, vt=2):
        if not self.dbg: return
        a = self.a
        a("s_waitcnt lgkmcnt(0) vmcnt(0)")
        a(f"s_lshl_b32 s{S_T0}, s2, 10")
        a(f"s_lshl_b32 s{S_T0+1}, s{S_WAVE}, 7")
        a(f"s_add_u32 s{S_T0}, s{S_T0}, s{S_T0+1}")
        a(f"s_add_u32 s{S_T0}, s{S_T0}, {WS_DBG}")
        a("s_mov_b64 exec, 1")
        a(f"v_mov_b32 v{vt+2}, s{S_T0}")
        for i in range(n):
            a(f"v_mov_b32 v{vt}, s{S_TS+2*i}")
            a(f"v_mov_b32 v{vt+1}, s{S_TS+2*i+1}")
            a(f"buffer_store_dwordx2 {V2(vt)}, v{vt+2}, {S(SRD_WS)}, 0 offen offset:{8*i}")
            a("s_waitcnt vmcnt(0)")
        a("s_mov_b64 exec, -1")

    def spin_guard(self, lab_retry, lab_done, sleep=1):
        a = self.a
        a(f"s_sub_u32 s{S_SPIN}, s{S_SPIN}, 1")
        a(f"s_cmp_eq_u32 s{S_SPIN}, 0")
        a(f"s_cbranch_scc1 {lab_done}")
        if sleep: a(f"s_sleep {sleep}")
        a(f"s_branch {lab_retry}")

    def prologue(self):
        a = self.a
        a("s_cmp_ge_u32 s2, 256")
        a("s_cbranch_scc1 L_end")
        self.stamp(0)
        a("s_load_dwordx16 s[8:23], s[0:1], 0")
        a("s_load_dwordx8 s[24:31], s[0:1], 64")
        a(f"s_load_dwordx2 s[{S_WS}:{S_WS+1}], s[0:1], 96")
        a("v_lshrrev_b32 v1, 6, v0")
        a("v_and_b32 v0, 63, v0")
        a(f"s_and_b32 s{S_G}, s2, 7")
        a(f"s_lshr_b32 s{S_SP}, s2, 3")
        a(f"v_readfirstlane_b32 s{S_WAVE}, v1")
        a(f"s_mov_b32 s{S_HI}, 0xffff0000")
        a(f"s_mov_b32 s{S_LOG2E}, 0x3fb8aa3b")
        a(f"s_mov_b32 s{S_SPIN}, {SPIN_LIMIT}")
        a("s_waitcnt lgkmcnt(0)")
        a(f"s_load_dword s{S_TAG}, s[{S_WS}:{S_WS+1}], 0")
        srd(a, SRD_WS, S_WS, size=WS_SIZE)
        a(f"s_cmp_lt_u32 s{S_WAVE}, 4")
        a("s_cbranch_scc1 L_S")
        a(f"s_cmp_eq_u32 s{S_WAVE}, 4")
        a("s_cbranch_scc1 L_Q")
        a(f"s_cmp_eq_u32 s{S_WAVE}, 5")
        a("s_cbranch_scc1 L_M")
        a("s_branch L_W")

    def get_tag(self):
        a = self.a
        a("s_waitcnt lgkmcnt(0)")
        a(f"s_add_u32 s{S_TAG}, s{S_TAG}, 1")

    RING = 64
    def pace_wait(self):
        if self.nissued is None: return
        if self.pace and self.pace <= self.nissued < self.paceto:
            self.a(f"s_waitcnt vmcnt({self.pace-1})")
        self.nissued += 1
    def issueK(self, slot):
        a = self.a; b = self.RING + 64*slot
        for t in range(2):
            for c in range(4):
                r = b + 16*t + 4*c
                self.pace_wait()
                a(f"buffer_load_dwordx4 {V4(r)}, v{1+t}, {S(SRD_A)}, s{S_OFF} offen offset:{64*c} nt")
    def issueV(self, slot):
        a = self.a; b = self.RING + 64*slot + 32
        for r8 in range(8):
            r = b + 4*r8
            self.pace_wait()
            a(f"buffer_load_dwordx4 {V4(r)}, v{3+(r8>>2)}, {S(SRD_B)}, s{S_OFF} offen offset:{1024*(r8&3)} nt")
        a(f"s_add_u32 s{S_OFF}, s{S_OFF}, 32768")

    def group(self, slot, kwait, vwait, reissue):
        a = self.a
        b = self.RING + 64*slot
        SC = 32; PB = 10; D0 = 40; D1 = 44; Q = 48
        vM, vMC, vL, vMX, vMY = 6, 8, 9, 5, 7
        a(f"s_waitcnt vmcnt({kwait})")
        for c in range(4):
            for t in range(2):
                cc = "0" if c == 0 else V4(SC+4*t)
                a(f"v_mfma_f32_16x16x32_bf16 {V4(SC+4*t)}, {V4(b+16*t+4*c)}, {V4(Q+4*c)}, {cc}")
        if reissue: self.issueK(slot)
        for k in range(4):
            s0 = SC+2*k; t = 28+k
            a(f"v_cvt_pk_bf16_f32 v{t}, v{s0}, v{s0+1}")
        for k in range(4):
            s0 = SC+2*k; t = 28+k
            a(f"v_lshlrev_b32 v{s0}, 16, v{t}")
            a(f"v_and_b32 v{s0+1}, s{S_HI}, v{t}")
        for k in range(4):
            s0 = SC+2*k
            a(f"v_pk_mul_f32 {V2(s0)}, {V2(s0)}, s[{S_SCALE}:{S_SCALE+1}]")
        for k in range(4):
            s0 = SC+2*k; t = 28+k
            a(f"v_cvt_pk_bf16_f32 v{t}, v{s0}, v{s0+1}")
        for k in range(4):
            s0 = SC+2*k; t = 28+k
            a(f"v_lshlrev_b32 v{s0}, 16, v{t}")
            a(f"v_and_b32 v{s0+1}, s{S_HI}, v{t}")
        a(f"v_max3_f32 v28, v{SC}, v{SC+1}, v{SC+2}")
        a(f"v_max3_f32 v29, v{SC+3}, v{SC+4}, v{SC+5}")
        a(f"v_max3_f32 v28, v28, v{SC+6}, v{SC+7}")
        a(f"v_max_f32 v28, v28, v29")
        a(f"v_cmp_gt_f32 vcc, v28, v{vM}")
        skip = a.uniq("L_skip")
        a(f"s_cbranch_vccz {skip}")
        rows_reduce(a, 28, 29, "v_max_f32")
        a(f"v_max_f32 v28, v28, v{vM}")
        a(f"v_mul_f32 v29, s{S_LOG2E}, v28")
        a(f"v_sub_f32 v30, v{vMC}, v29")
        a(f"v_exp_f32 v30, v30")
        a(f"v_mov_b32 v{vM}, v28")
        a(f"v_mov_b32 v{vMC}, v29")
        a(f"v_mul_f32 v{vL}, v{vL}, v30")
        for h in range(4):
            a(f"v_mov_b32_dpp v31, v30 row_newbcast:{4*h} row_mask:{1<<h:#x} bank_mask:0xf")
        for k in range(8):
            a(f"v_mul_f32 v{D0+k}, v{D0+k}, v31")
        a.label(skip)
        for k in range(8):
            a(f"v_fma_f32 v{SC+k}, v{SC+k}, s{S_LOG2E}, -v{vMC}")
        for k in range(8):
            a(f"v_exp_f32 v{SC+k}, v{SC+k}")
        for t in range(2):
            for r in range(4):
                a(f"v_cvt_pk_bf16_f32 v{28+r}, v{SC+4*t+r}, v{SC+4*t+r}")
            for r in range(4):
                a(f"v_and_b32 v{PB+4*r+2}, v{28+r}, v{vMX}")
                a(f"v_and_b32 v{PB+4*r+3}, v{28+r}, v{vMY}")
            if t == 0:
                a(f"s_waitcnt vmcnt({vwait})")
            for r in range(4):
                vb = b + 32 + 4*(4*t+r)
                a(f"v_mfma_f32_16x16x32_bf16 {V4(D0)}, {V4(PB+4*r+2)}, {V4(vb)}, {V4(D0)}")
                a(f"v_mfma_f32_16x16x32_bf16 {V4(D1)}, {V4(PB+4*r)}, {V4(vb)}, {V4(D1)}")
        if reissue: self.issueV(slot)
        a(f"v_pk_add_f32 v[28:29], {V2(SC)}, {V2(SC+2)}")
        a(f"v_pk_add_f32 v[30:31], {V2(SC+4)}, {V2(SC+6)}")
        a(f"v_pk_add_f32 v[28:29], v[28:29], v[30:31]")
        a(f"v_add_f32 v28, v28, v29")
        a(f"v_add_f32 v{vL}, v{vL}, v28")

    def masksXY(self, vX, vY, t):
        a = self.a
        a(f"v_and_b32 v{t}, 3, v0")
        a(f"v_mov_b32 v{vX}, 0"); a(f"v_mov_b32 v{vY}, 0")
        a(f"v_mov_b32 v{t+1}, 0xffff")
        a(f"v_mov_b32 v{t+2}, s{S_HI}")
        a(f"v_cmp_eq_u32 vcc, 0, v{t}"); a(f"v_cndmask_b32 v{vX}, v{vX}, v{t+1}, vcc")
        a(f"v_cmp_eq_u32 vcc, 1, v{t}"); a(f"v_cndmask_b32 v{vX}, v{vX}, v{t+2}, vcc")
        a(f"v_cmp_eq_u32 vcc, 2, v{t}"); a(f"v_cndmask_b32 v{vY}, v{vY}, v{t+1}, vcc")
        a(f"v_cmp_eq_u32 vcc, 3, v{t}"); a(f"v_cndmask_b32 v{vY}, v{vY}, v{t+2}, vcc")

    def swave(self):
        a = self.a
        a.label("L_S")
        a(f"s_lshl_b32 s{S_T0}, s{S_G}, 24")
        a(f"s_lshl_b32 s{S_T0+1}, s{S_SP}, 19")
        a(f"s_add_u32 s{S_T0}, s{S_T0}, s{S_T0+1}")
        srd(a, SRD_A, S_K, S_T0, size=0x80000)
        srd(a, SRD_B, S_V, S_T0, size=0x80000)
        a("v_and_b32 v1, 3, v0"); a("v_lshlrev_b32 v1, 10, v1")
        a("v_bfe_u32 v2, v0, 2, 2"); a("v_lshlrev_b32 v2, 8, v2"); a("v_add_u32 v1, v1, v2")
        a("v_lshrrev_b32 v2, 4, v0"); a("v_lshlrev_b32 v2, 4, v2"); a("v_add_u32 v1, v1, v2")
        a("v_add_u32 v2, 0x1000, v1")
        a("v_lshlrev_b32 v3, 4, v0"); a("v_add_u32 v4, 0x1000, v3")
        a(f"s_lshl_b32 s{S_OFF}, s{S_WAVE}, 13")
        if self.a0: a("s_barrier")
        self.stamp(1)
        self.nissued = 0
        for slot in range(3):
            if slot == self.early: a("s_barrier")
            self.issueK(slot); self.issueV(slot)
        self.nissued = None
        if self.early >= 3: a("s_barrier")
        self.masksXY(5, 7, 28)
        for k in range(5):
            a(f"v_mov_b32 v{10+4*k}, 0"); a(f"v_mov_b32 v{11+4*k}, 0")
        for k in range(8): a(f"v_mov_b32 v{40+k}, 0")
        a("v_mov_b32 v6, 0xff800000"); a("v_mov_b32 v8, 0xff800000"); a("v_mov_b32 v9, 0")
        a(f"s_mov_b32 s{S_SCALE}, 0x3db504f3"); a(f"s_mov_b32 s{S_SCALE+1}, 0x3db504f3")
        a("v_bfe_u32 v28, v0, 2, 2"); a("v_lshlrev_b32 v28, 8, v28")
        a("v_lshrrev_b32 v29, 4, v0"); a("v_lshlrev_b32 v29, 4, v29"); a("v_add_u32 v28, v28, v29")
        self.stamp(2)
        a("s_barrier")
        self.stamp(3)
        for c in range(4):
            a(f"ds_read_b128 {V4(48+4*c)}, v28 offset:{L_Q+64*c}")
        a("s_waitcnt lgkmcnt(0)")
        a(f"s_mov_b32 s{S_T0}, 4")
        a.label("L_S_loop")
        for slot in range(3):
            self.group(slot, 40, 40, True)
        a(f"s_sub_u32 s{S_T0}, s{S_T0}, 1")
        a(f"s_cmp_lg_u32 s{S_T0}, 0")
        a("s_cbranch_scc1 L_S_loop")
        self.group(0, 40, 40, True)
        self.group(1, 40, 32, False)
        self.group(2, 24, 16, False)
        self.group(0, 8, 0, False)
        self.stamp(4)
        rows_reduce(a, 9, 28, "v_add_f32")
        a("v_lshlrev_b32 v28, 5, v0")
        a(f"s_lshl_b32 s{S_T0}, s{S_WAVE}, 11")
        a(f"v_add_u32 v28, s{S_T0}, v28")
        a(f"ds_write_b128 v28, {V4(40)} offset:{L_O}")
        a(f"ds_write_b128 v28, {V4(44)} offset:{L_O+16}")
        a("v_lshlrev_b32 v29, 3, v0")
        a(f"s_lshl_b32 s{S_T0}, s{S_WAVE}, 3")
        a(f"v_add_u32 v29, s{S_T0}, v29")
        a("s_mov_b64 exec, 0x1111")
        a(f"ds_write_b64 v29, v[8:9] offset:{L_ST}")
        a("s_mov_b64 exec, -1")
        self.get_tag()
        a("s_barrier")
        self.stamp(5)
        a(f"s_lshl_b32 s{S_T0}, s{S_WAVE}, 5")
        a(f"v_mov_b32 v28, s{S_T0}")
        a(f"ds_read_b128 v[64:67], v28 offset:{L_ST}")
        a(f"ds_read_b128 v[68:71], v28 offset:{L_ST+16}")
        a(f"s_lshl_b32 s{S_T0}, s{S_WAVE}, 9")
        a("v_lshlrev_b32 v29, 3, v0")
        a(f"v_add_u32 v29, s{S_T0}, v29")
        for k in range(4):
            a(f"ds_read_b64 {V2(72+2*k)}, v29 offset:{L_O+2048*k}")
        a("s_waitcnt lgkmcnt(4)")
        a("v_max3_f32 v30, v64, v66, v68")
        a("v_max_f32 v30, v30, v70")
        for k in range(4):
            a(f"v_sub_f32 v{64+2*k}, v{64+2*k}, v30")
        for k in range(4):
            a(f"v_exp_f32 v{64+2*k}, v{64+2*k}")
        a("v_mul_f32 v82, v64, v65")
        a("v_fma_f32 v82, v66, v67, v82")
        a("v_fma_f32 v82, v68, v69, v82")
        a("v_fma_f32 v82, v70, v71, v82")
        a("s_waitcnt lgkmcnt(0)")
        a("v_mul_f32 v84, v64, v72"); a("v_mul_f32 v86, v64, v73")
        for k in range(1, 4):
            a(f"v_fma_f32 v84, v{64+2*k}, v{72+2*k}, v84")
            a(f"v_fma_f32 v86, v{64+2*k}, v{73+2*k}, v86")
        a(f"v_mov_b32 v85, s{S_TAG}"); a(f"v_mov_b32 v87, s{S_TAG}")
        a("v_mov_b32 v80, v30"); a(f"v_mov_b32 v81, s{S_TAG}"); a(f"v_mov_b32 v83, s{S_TAG}")
        a(f"s_lshl_b32 s{S_T0}, s{S_G}, 5"); a(f"s_add_u32 s{S_T0}, s{S_T0}, s{S_SP}")
        a(f"s_lshl_b32 s{S_T0}, s{S_T0}, 12")
        a(f"s_lshl_b32 s{S_T0+1}, s{S_WAVE}, 10")
        a(f"s_add_u32 s{S_T0}, s{S_T0}, s{S_T0+1}")
        a(f"s_add_u32 s{S_T0}, s{S_T0}, {WS_OP}")
        a("v_lshlrev_b32 v28, 4, v0")
        a(f"buffer_store_dwordx4 v[84:87], v28, {S(SRD_WS)}, s{S_T0} offen sc1")
        a(f"s_lshl_b32 s{S_T0+1}, s{S_G}, 2"); a(f"s_add_u32 s{S_T0+1}, s{S_T0+1}, s{S_WAVE}")
        a(f"s_lshl_b32 s{S_T0+1}, s{S_T0+1}, 5"); a(f"s_add_u32 s{S_T0+1}, s{S_T0+1}, s{S_SP}")
        a(f"s_lshl_b32 s{S_T0+1}, s{S_T0+1}, 4"); a(f"s_add_u32 s{S_T0+1}, s{S_T0+1}, {WS_ST}")
        a("v_mov_b32 v29, 0")
        a("s_mov_b64 exec, 1")
        a(f"buffer_store_dwordx4 v[80:83], v29, {S(SRD_WS)}, s{S_T0+1} offen sc1")
        a("s_mov_b64 exec, -1")
        self.stamp(6)
        a(f"s_lshr_b32 s{S_T0+2}, s{S_SP}, 3")
        a(f"s_bfe_u32 s{S_T0+3}, s{S_SP}, 0x10002")
        a(f"s_lshl_b32 s{S_T0}, s{S_G}, 5"); a(f"s_lshl_b32 s{S_T0+1}, s{S_WAVE}, 3")
        a(f"s_add_u32 s{S_T0}, s{S_T0}, s{S_T0+1}"); a(f"s_lshl_b32 s{S_T0}, s{S_T0}, 12")
        a(f"s_lshl_b32 s{S_T0+1}, s{S_T0+2}, 10"); a(f"s_add_u32 s{S_T0}, s{S_T0}, s{S_T0+1}")
        a(f"s_lshl_b32 s{S_T0+1}, s{S_T0+3}, 9"); a(f"s_add_u32 s{S_T0}, s{S_T0}, s{S_T0+1}")
        a(f"s_add_u32 s{S_T0+4}, s{S_T0}, {WS_OP}")
        for u in range(1, 4):
            a(f"s_add_u32 s{S_T0+4+u}, s{S_T0+4}, {8192*u}")
        a("v_lshrrev_b32 v28, 5, v0"); a("v_lshlrev_b32 v28, 12, v28")
        a("v_and_b32 v29, 31, v0"); a("v_lshlrev_b32 v29, 4, v29"); a("v_add_u32 v28, v28, v29")
        a(f"s_lshl_b32 s{S_T0+8}, s{S_G}, 2"); a(f"s_add_u32 s{S_T0+8}, s{S_T0+8}, s{S_T0+2}")
        a(f"s_lshl_b32 s{S_T0+8}, s{S_T0+8}, 9"); a(f"s_add_u32 s{S_T0+8}, s{S_T0+8}, {WS_ST}")
        a.label("L_S_poll")
        for u in range(4):
            a(f"buffer_load_dwordx4 {V4(64+4*u)}, v28, {S(SRD_WS)}, s{S_T0+4+u} offen sc1")
        a(f"buffer_load_dwordx4 v[80:83], v29, {S(SRD_WS)}, s{S_T0+8} offen sc1")
        a("s_waitcnt vmcnt(0)")
        a(f"v_xor_b32 v30, s{S_TAG}, v65")
        for r in [67, 69, 71, 73, 75, 77, 79, 81, 83]:
            a(f"v_xor_b32 v31, s{S_TAG}, v{r}")
            a("v_or_b32 v30, v30, v31")
        a("v_cmp_ne_u32 vcc, 0, v30")
        a("s_cbranch_vccz L_S_got")
        self.spin_guard("L_S_poll", "L_S_got")
        a.label("L_S_got")
        self.stamp(7)
        a("v_mov_b32 v30, v80")
        allreduce64(a, 30, 31, "v_max_f32")
        a("v_sub_f32 v80, v80, v30")
        a("v_exp_f32 v80, v80")
        a("v_mul_f32 v82, v80, v82")
        allreduce64(a, 82, 31, "v_add_f32")
        a("v_rcp_f32 v82, v82")
        a("v_add_f32 v80, v80, v80")
        a("v_mul_f32 v80, v80, v82")
        a("v_lshrrev_b32 v30, 5, v0")
        a(f"s_lshl_b32 s{S_T0}, s{S_WAVE}, 3")
        a(f"v_add_u32 v30, s{S_T0}, v30")
        a("v_lshlrev_b32 v30, 2, v30")
        for u in range(4):
            if u: a("v_add_u32 v30, 8, v30")
            a(f"ds_bpermute_b32 v{84+u}, v30, v80")
        a("s_waitcnt lgkmcnt(0)")
        a("v_mul_f32 v88, v84, v64"); a("v_mul_f32 v89, v84, v66")
        for u in range(1, 4):
            a(f"v_fma_f32 v88, v{84+u}, v{64+4*u}, v88")
            a(f"v_fma_f32 v89, v{84+u}, v{66+4*u}, v89")
        a("v_mov_b32 v90, v88"); a("v_mov_b32 v91, v89")
        a("v_permlane32_swap_b32 v88, v90"); a("v_permlane32_swap_b32 v89, v91")
        a("v_add_f32 v88, v88, v90"); a("v_add_f32 v89, v89, v91")
        a("v_and_b32 v30, 31, v0"); a("v_lshlrev_b32 v30, 3, v30")
        a(f"s_lshl_b32 s{S_T0}, s{S_WAVE}, 8")
        a(f"v_add_u32 v30, s{S_T0}, v30")
        a(f"ds_write_b64 v30, v[88:89] offset:{L_G}")
        a("s_waitcnt lgkmcnt(0)")
        a("s_barrier")
        self.stamp(8)
        if self.dbg:
            a(f"s_getreg_b32 s{S_TS+18}, hwreg(HW_REG_XCC_ID)"); a(f"s_mov_b32 s{S_TS+19}, 0")
            self.dump_stamps(10, 0)
        a("s_branch L_end")

    def gemv16_loads(self, srd_, reg, rowstride):
        a = self.a
        a(f"s_mov_b32 s{S_OFF}, 0")
        for i in range(16):
            a(f"buffer_load_dwordx4 {V4(reg+4*i)}, v1, {S(srd_)}, s{S_OFF} offen {self.wflag}")
            if i < 15: a(f"s_add_u32 s{S_OFF}, s{S_OFF}, {32*rowstride}")

    def gemv16_compute(self, reg, tb, acc, wait_first, outA, outB):
        a = self.a
        for k in range(8): a(f"v_mov_b32 v{acc+k}, 0")
        for i in range(16):
            if wait_first is not None:
                a(f"s_waitcnt vmcnt({wait_first + 15 - i})")
            for k in range(4):
                a(f"v_dot2c_f32_bf16 v{acc+2*k}, v{reg+4*i+k}, v{tb+2*i}")
                a(f"v_dot2c_f32_bf16 v{acc+2*k+1}, v{reg+4*i+k}, v{tb+2*i+1}")
        for k in range(4):
            a(f"v_permlane32_swap_b32 v{acc+k}, v{acc+4+k}")
        for k in range(4):
            a(f"v_add_f32 v{acc+k}, v{acc+k}, v{acc+4+k}")
        a(f"v_permlane16_swap_b32 v{acc}, v{acc+2}")
        a(f"v_permlane16_swap_b32 v{acc+1}, v{acc+3}")
        a(f"v_add_f32 v{outA}, v{acc}, v{acc+2}")
        a(f"v_add_f32 v{outB}, v{acc+1}, v{acc+3}")
        for rr in (2, 4, 8):
            a(f"v_add_f32_dpp v{outA}, v{outA}, v{outA} row_ror:{rr} row_mask:0xf bank_mask:0xf")
            a(f"v_add_f32_dpp v{outB}, v{outB}, v{outB} row_ror:{rr} row_mask:0xf bank_mask:0xf")

    def read_T(self, tb):
        a = self.a
        a("v_lshrrev_b32 v2, 1, v0"); a("v_lshlrev_b32 v2, 3, v2")
        for i in range(16):
            a(f"ds_read_b64 {V2(tb+2*i)}, v2 offset:{L_T+256*i}")

    def qwave(self):
        a = self.a
        a.label("L_Q")
        a("s_setprio 3")
        srd(a, SRD_A, S_X, size=1024)
        srd(a, SRD_B, S_WR, size=1024)
        a(f"s_lshl_b32 s{S_T0}, s{S_G}, 10"); a(f"s_lshl_b32 s{S_T0+1}, s{S_SP}, 5")
        a(f"s_add_u32 s{S_T0}, s{S_T0}, s{S_T0+1}")
        a(f"s_add_u32 s{SRD_C}, s{S_WQ}, s{S_T0}"); a(f"s_addc_u32 s{SRD_C+1}, s{S_WQ+1}, 0")
        a(f"s_sub_u32 s{SRD_C+2}, {512*8192}, s{S_T0}"); a(f"s_mov_b32 s{SRD_C+3}, 0x00020000")
        a("v_lshlrev_b32 v3, 4, v0")
        a(f"buffer_load_dwordx4 v[4:7], v3, {S(SRD_A)}, 0 offen")
        a(f"buffer_load_dwordx4 v[8:11], v3, {S(SRD_B)}, 0 offen")
        a("v_lshrrev_b32 v1, 1, v0"); a("v_lshlrev_b32 v1, 13, v1")
        a("v_and_b32 v2, 1, v0"); a("v_lshlrev_b32 v2, 4, v2"); a("v_add_u32 v1, v1, v2")
        self.gemv16_loads(SRD_C, 64, 8192)
        if self.a0: a("s_barrier")
        a("s_waitcnt vmcnt(17)")
        for k in range(4):
            a(f"v_lshlrev_b32 v{16+2*k}, 16, v{4+k}")
            a(f"v_and_b32 v{17+2*k}, s{S_HI}, v{4+k}")
        a("v_pk_add_f32 v[24:25], v[16:17], v[18:19]")
        a("v_pk_add_f32 v[26:27], v[20:21], v[22:23]")
        a("v_pk_add_f32 v[24:25], v[24:25], v[26:27]")
        a("v_add_f32 v24, v24, v25")
        allreduce64(a, 24, 25, "v_add_f32")
        a("v_mul_f32 v24, 0x3b000000, v24")
        for k in range(8): a(f"v_sub_f32 v{28+k}, v{16+k}, v24")
        a("v_mul_f32 v26, v28, v28")
        for k in range(1, 8): a(f"v_fma_f32 v26, v{28+k}, v{28+k}, v26")
        allreduce64(a, 26, 25, "v_add_f32")
        a("v_mul_f32 v26, 0x3b000000, v26")
        rnd(a, 24); rnd(a, 26)
        a("v_add_f32 v26, 0x3727c5ac, v26"); rnd(a, 26)
        a("v_sqrt_f32 v26, v26"); rnd(a, 26)
        a("v_rcp_f32 v26, v26")
        for k in range(8): a(f"v_sub_f32 v{16+k}, v{16+k}, v24")
        for k in range(4): a(f"v_cvt_pk_bf16_f32 v{28+k}, v{16+2*k}, v{17+2*k}")
        for k in range(4):
            a(f"v_lshlrev_b32 v{16+2*k}, 16, v{28+k}")
            a(f"v_and_b32 v{17+2*k}, s{S_HI}, v{28+k}")
        for k in range(8): a(f"v_mul_f32 v{16+k}, v{16+k}, v26")
        for k in range(4): a(f"v_cvt_pk_bf16_f32 v{12+k}, v{16+2*k}, v{17+2*k}")
        a("v_lshlrev_b32 v2, 6, v0")
        for k in range(4):
            a(f"v_and_b32 v28, 0xffff, v{12+k}")
            a(f"v_lshlrev_b32 v29, 16, v{12+k}")
            a(f"v_lshrrev_b32 v30, 16, v{12+k}")
            a(f"v_and_b32 v31, s{S_HI}, v{12+k}")
            a(f"ds_write_b128 v2, v[28:31] offset:{L_T+16*k}")
            if k < 3:
                a("s_nop 1")
        a("s_waitcnt lgkmcnt(0)")
        self.read_T(128)
        a("s_waitcnt lgkmcnt(0)")
        self.stamp(1)
        self.gemv16_compute(64, 128, 16, 0, 24, 25)
        self.get_tag()
        a("v_cvt_pk_bf16_f32 v26, v24, v25")
        a(f"v_mov_b32 v27, s{S_TAG}")
        a("v_and_b32 v2, 1, v0"); a("v_lshlrev_b32 v2, 5, v2")
        a("v_lshrrev_b32 v3, 4, v0"); a("v_lshlrev_b32 v3, 3, v3"); a("v_add_u32 v2, v2, v3")
        a(f"s_lshl_b32 s{S_T0}, s{S_G}, 11"); a(f"s_add_u32 s{S_T0}, s{S_T0}, {WS_QG}")
        a(f"s_lshl_b32 s{S_T0+1}, s{S_SP}, 6"); a(f"s_add_u32 s{S_T0+1}, s{S_T0+1}, s{S_T0}")
        a("s_mov_b32 exec_lo, 0x00030003"); a("s_mov_b32 exec_hi, 0x00030003")
        a(f"buffer_store_dwordx2 v[26:27], v2, {S(SRD_WS)}, s{S_T0+1} offen sc1")
        a("s_mov_b64 exec, -1")
        self.stamp(2)
        a("v_mov_b32 v28, 0")
        for k in range(4): a(f"v_dot2c_f32_bf16 v28, v{12+k}, v{8+k}")
        allreduce64(a, 28, 29, "v_add_f32")
        rnd(a, 28)
        a(f"v_mul_f32 v28, s{S_LOG2E}, v28")
        a("v_sub_f32 v28, 0, v28")
        a("v_exp_f32 v28, v28")
        a("v_add_f32 v28, 1.0, v28")
        a("v_rcp_f32 v28, v28")
        rnd(a, 28)
        a(f"v_mov_b32 v29, {L_RS}")
        a("ds_write_b32 v29, v28")
        if self.qdelay: a(f"s_sleep {self.qdelay}")
        a("v_lshlrev_b32 v2, 4, v0")
        a("v_lshlrev_b32 v3, 3, v0")
        first = True
        a(f"buffer_load_dwordx4 v[32:35], v2, {S(SRD_WS)}, s{S_T0} offen sc1")
        a(f"buffer_load_dwordx4 v[36:39], v2, {S(SRD_WS)}, s{S_T0} offen offset:1024 sc1")
        if self.early >= 0: a("s_barrier")
        a("s_branch L_Q_chk")
        a.label("L_Q_poll")
        a(f"buffer_load_dwordx4 v[32:35], v2, {S(SRD_WS)}, s{S_T0} offen sc1")
        a(f"buffer_load_dwordx4 v[36:39], v2, {S(SRD_WS)}, s{S_T0} offen offset:1024 sc1")
        a.label("L_Q_chk")
        a("s_waitcnt vmcnt(0)")
        a(f"v_xor_b32 v30, s{S_TAG}, v33")
        for r in (35, 37, 39):
            a(f"v_xor_b32 v31, s{S_TAG}, v{r}"); a("v_or_b32 v30, v30, v31")
        a("v_cmp_ne_u32 vcc, 0, v30")
        a("s_cbranch_vccz L_Q_got")
        self.spin_guard("L_Q_poll", "L_Q_got")
        a.label("L_Q_got")
        a(f"v_add_u32 v3, {L_Q}, v3")
        a("ds_write2_b32 v3, v32, v34 offset0:0 offset1:1")
        a("ds_write2_b32 v3, v36, v38 offset0:128 offset1:129")
        a("s_waitcnt lgkmcnt(0)")
        self.stamp(3)
        a("s_barrier")
        self.dump_stamps(4, 1)
        a("s_branch L_end")

    def mwave(self):
        a = self.a
        a.label("L_M")
        a(f"s_cmp_ge_u32 s{S_SP}, 14")
        a("s_cbranch_scc1 L_end")
        a(f"s_mul_i32 s{S_T0+12}, s{S_G}, 14"); a(f"s_add_u32 s{S_T0+12}, s{S_T0+12}, s{S_SP}")
        a(f"s_lshl_b32 s{S_T0}, s{S_T0+12}, 5")
        for d, base in ((SRD_A, S_WG), (SRD_B, S_WU)):
            a(f"s_add_u32 s{d}, s{base}, s{S_T0}"); a(f"s_addc_u32 s{d+1}, s{base+1}, 0")
            a(f"s_sub_u32 s{d+2}, {512*3584}, s{S_T0}"); a(f"s_mov_b32 s{d+3}, 0x00020000")
        a(f"s_lshl_b32 s{S_T0+1}, s{S_T0+12}, 14")
        srd(a, SRD_C, S_WD, S_T0+1, size=16384)
        a("v_lshrrev_b32 v1, 1, v0"); a(f"s_mov_b32 s{S_T0+2}, 3584"); a(f"v_mul_lo_u32 v1, v1, s{S_T0+2}")
        a("v_and_b32 v2, 1, v0"); a("v_lshlrev_b32 v2, 4, v2"); a("v_add_u32 v1, v1, v2")
        self.get_tag()
        if self.mprio: a(f"s_setprio {self.mprio}")
        if self.a0: a("s_barrier")
        if self.early >= 0: a("s_barrier")
        a("s_barrier")
        self.stamp(1)
        self.gemv16_loads(SRD_A, 64, 3584)
        self.gemv16_loads(SRD_B, 128, 3584)
        a("v_lshlrev_b32 v3, 4, v0")
        a(f"s_mov_b32 s{S_OFF}, 0")
        for r in range(16):
            a(f"buffer_load_dwordx4 {V4(192+4*r)}, v3, {S(SRD_C)}, s{S_OFF} offen offset:{1024*(r&3)} {self.wflag}")
            if (r & 3) == 3 and r < 15: a(f"s_add_u32 s{S_OFF}, s{S_OFF}, 4096")
        self.read_T(32)
        a("s_waitcnt lgkmcnt(0)")
        self.gemv16_compute(64, 32, 16, 32, 24, 25)
        self.gemv16_compute(128, 32, 16, 16, 26, 27)
        for v in (24, 25, 26, 27): rnd(a, v)
        for v in (24, 25):
            a(f"v_mul_f32 v28, s{S_LOG2E}, v{v}")
            a("v_sub_f32 v28, 0, v28")
            a("v_exp_f32 v28, v28")
            a("v_add_f32 v28, 1.0, v28")
            a("v_rcp_f32 v28, v28")
            a(f"v_mul_f32 v{v}, v{v}, v28")
            rnd(a, v)
        a("v_mul_f32 v24, v24, v26"); a("v_mul_f32 v25, v25, v27")
        a("v_cvt_pk_bf16_f32 v24, v24, v25")
        SH = S_T0
        for k in range(8):
            a(f"v_readlane_b32 s{SH+k}, v24, {16*(k&3) + (k>>2)}")
        for k in range(8): a(f"v_mov_b32 v{16+k}, 0")
        TA, TB = 74, 75
        for r in range(16):
            k = r >> 1
            if r & 1 == 0:
                a(f"s_and_b32 s{TA}, s{SH+k}, 0xffff"); a(f"s_lshl_b32 s{TB}, s{SH+k}, 16")
            else:
                a(f"s_lshr_b32 s{TA}, s{SH+k}, 16"); a(f"s_and_b32 s{TB}, s{SH+k}, 0xffff0000")
            a(f"s_waitcnt vmcnt({15-r})")
            for j in range(4):
                a(f"v_dot2c_f32_bf16 v{16+2*j}, s{TA}, v{192+4*r+j}")
                a(f"v_dot2c_f32_bf16 v{17+2*j}, s{TB}, v{192+4*r+j}")
        a(f"s_lshl_b32 s{S_T0+12}, s{S_T0+12}, 12"); a(f"s_add_u32 s{S_T0+12}, s{S_T0+12}, {WS_YP}")
        for j in range(4):
            r = 32 + 4*j
            a(f"v_mov_b32 v{r}, v{16+2*j}"); a(f"v_mov_b32 v{r+1}, s{S_TAG}")
            a(f"v_mov_b32 v{r+2}, v{17+2*j}"); a(f"v_mov_b32 v{r+3}, s{S_TAG}")
        for j in range(4):
            a(f"buffer_store_dwordx4 {V4(32+4*j)}, v3, {S(SRD_WS)}, s{S_T0+12} offen offset:{1024*j} sc1")
        self.stamp(2)
        self.dump_stamps(3, 2)
        a("s_waitcnt vmcnt(0)")
        a("s_branch L_end")

    def wwave(self):
        a = self.a
        a.label("L_W")
        RB, CB = S_T0+10, S_T0+11
        a(f"s_lshr_b32 s{RB}, s{S_SP}, 2"); a(f"s_and_b32 s{CB}, s{S_SP}, 3")
        a(f"s_lshl_b32 s{S_T0}, s{S_G}, 19"); a(f"s_lshl_b32 s{S_T0+1}, s{RB}, 16")
        a(f"s_add_u32 s{S_T0}, s{S_T0}, s{S_T0+1}")
        a(f"s_lshl_b32 s{S_T0+1}, s{CB}, 8"); a(f"s_add_u32 s{S_T0}, s{S_T0}, s{S_T0+1}")
        srd(a, SRD_A, S_WO, S_T0, size=65536)
        a(f"s_lshl_b32 s{S_T0+1}, s{CB}, 8"); a(f"s_sub_u32 s{SRD_A+2}, 65536, s{S_T0+1}")
        srd(a, SRD_B, S_X, size=1024)
        srd(a, SRD_C, S_OUT, size=1024)
        a("v_lshrrev_b32 v1, 4, v0"); a("v_lshlrev_b32 v1, 10, v1")
        a("v_and_b32 v2, 15, v0"); a("v_lshlrev_b32 v2, 4, v2"); a("v_add_u32 v1, v1, v2")
        self.get_tag()
        if self.mprio: a(f"s_setprio {self.mprio}")
        if self.a0: a("s_barrier")
        if self.early >= 0: a("s_barrier")
        a("s_barrier")
        WO = 64
        a(f"s_mov_b32 s{S_OFF}, 0")
        for i in range(16):
            a(f"buffer_load_dwordx4 {V4(WO+4*i)}, v1, {S(SRD_A)}, s{S_OFF} offen {self.wflag}")
            if i < 15: a(f"s_add_u32 s{S_OFF}, s{S_OFF}, 4096")
        a(f"s_lshl_b32 s{S_T0+2}, s2, 2")
        a(f"v_mov_b32 v2, s{S_T0+2}")
        a(f"buffer_load_dword v8, v2, {S(SRD_B)}, 0 offen")
        a(f"s_lshl_b32 s{S_T0+3}, s2, 4")
        a(f"v_mov_b32 v3, s{S_T0+3}")
        a(f"ds_read_b128 v[12:15], v3 offset:{L_T}")
        a(f"v_mov_b32 v3, {L_RS}")
        a("ds_read_b32 v9, v3")
        self.masksXY(5, 7, 28)
        for k in range(5):
            a(f"v_mov_b32 v{32+4*k}, 0"); a(f"v_mov_b32 v{33+4*k}, 0")
        for k in range(8): a(f"v_mov_b32 v{56+k}, 0")
        a(f"s_mov_b32 s{S_M1}, 0xffff0000"); a(f"s_mov_b32 s{S_M1+1}, 0xffff0000")
        a(f"s_mov_b32 s{S_M2}, 0"); a(f"s_mov_b32 s{S_M2+1}, -1")
        a(f"s_and_b32 s{S_T0+4}, s2, 3"); a(f"s_lshl_b32 s{S_T0+4}, s{S_T0+4}, 6")
        a(f"s_lshr_b32 s{S_T0+5}, s2, 2"); a(f"s_add_u32 s{S_T0+4}, s{S_T0+4}, s{S_T0+5}")
        a(f"s_lshl_b32 s{S_T0+4}, s{S_T0+4}, 4"); a(f"s_add_u32 s{S_T0+4}, s{S_T0+4}, {WS_YP}")
        a("v_lshlrev_b32 v10, 12, v0")
        a("v_add_u32 v11, 64, v0"); a("v_min_u32 v11, 111, v11"); a("v_lshlrev_b32 v11, 12, v11")
        a("s_sleep 64")
        a.label("L_W_ypoll")
        a(f"buffer_load_dwordx4 v[16:19], v10, {S(SRD_WS)}, s{S_T0+4} offen sc1")
        a(f"buffer_load_dwordx4 v[20:23], v11, {S(SRD_WS)}, s{S_T0+4} offen sc1")
        a("s_waitcnt vmcnt(0)")
        a(f"v_xor_b32 v30, s{S_TAG}, v17")
        for r in (19, 21, 23):
            a(f"v_xor_b32 v31, s{S_TAG}, v{r}"); a("v_or_b32 v30, v30, v31")
        a("v_cmp_ne_u32 vcc, 0, v30")
        a("s_cbranch_vccz L_W_ygot")
        self.spin_guard("L_W_ypoll", "L_W_ygot", sleep=16)
        a.label("L_W_ygot")
        a("v_cmp_gt_u32 vcc, 48, v0")
        a("v_cndmask_b32 v20, 0, v20, vcc"); a("v_cndmask_b32 v22, 0, v22, vcc")
        a("v_add_f32 v16, v16, v20"); a("v_add_f32 v18, v18, v22")
        allreduce64(a, 16, 30, "v_add_f32"); allreduce64(a, 18, 30, "v_add_f32")
        a("s_waitcnt lgkmcnt(0)")
        rnd(a, 16); rnd(a, 18)
        a("v_mul_f32 v16, v16, v9"); a("v_mul_f32 v18, v18, v9")
        rnd(a, 16); rnd(a, 18)
        a("v_add_f32 v16, v16, v13"); a("v_add_f32 v18, v18, v15")
        rnd(a, 16); rnd(a, 18)
        a("v_lshlrev_b32 v12, 16, v8"); a(f"v_and_b32 v14, s{S_HI}, v8")
        a(f"s_lshl_b32 s{S_T0+6}, s{S_G}, 3"); a(f"s_add_u32 s{S_T0+6}, s{S_T0+6}, s{RB}")
        a(f"s_lshl_b32 s{S_T0+6}, s{S_T0+6}, 12")
        a(f"s_lshl_b32 s{S_T0+7}, s{CB}, 10"); a(f"s_add_u32 s{S_T0+6}, s{S_T0+6}, s{S_T0+7}")
        a(f"s_add_u32 s{S_T0+6}, s{S_T0+6}, {WS_AP}")
        a("v_and_b32 v20, 15, v0"); a("v_lshlrev_b32 v20, 6, v20")
        a("v_lshrrev_b32 v21, 4, v0"); a("v_lshlrev_b32 v21, 4, v21"); a("v_add_u32 v20, v20, v21")
        a(f"s_lshl_b32 s{S_T0+7}, s2, 4"); a(f"s_add_u32 s{S_T0+7}, s{S_T0+7}, {WS_AP}")
        a("v_lshlrev_b32 v22, 2, v0")
        a("v_and_b32 v23, 3, v0"); a("v_lshlrev_b32 v23, 6, v23")
        a("v_lshrrev_b32 v24, 2, v0"); a("v_lshlrev_b32 v24, 2, v24"); a("v_add_u32 v23, v23, v24")
        a("v_lshrrev_b32 v24, 4, v0"); a("v_lshlrev_b32 v24, 6, v24")
        a(f"s_mov_b32 s{S_SPIN}, {SPIN_LIMIT}")
        self.stamp(1)
        a("s_barrier")
        a("s_barrier")
        self.stamp(2)
        for k in range(4):
            a(f"ds_read_b32 v{26+k}, v22 offset:{L_G+256*k}")
        a("s_waitcnt lgkmcnt(0)")
        a("v_add_f32 v26, v26, v27"); a("v_add_f32 v28, v28, v29"); a("v_add_f32 v26, v26, v28")
        a("v_cvt_pk_bf16_f32 v26, v26, v26")
        a(f"ds_write_b32 v23, v26 offset:{L_PP}")
        a("s_waitcnt lgkmcnt(0)")
        PPV = 128
        for k in range(4):
            a(f"ds_read_b128 {V4(PPV+4*k)}, v24 offset:{L_PP+16*k}")
        a("s_waitcnt lgkmcnt(0)")
        PB = 32; D0 = 56; D1 = 60
        for i0 in range(0, 16, 4):
            for r in range(4):
                a(f"v_and_b32 v{PB+4*r+2}, v{PPV+i0+r}, v5")
                a(f"v_and_b32 v{PB+4*r+3}, v{PPV+i0+r}, v7")
            for r in range(4):
                wb = WO + 4*(i0+r)
                a(f"v_mfma_f32_16x16x32_bf16 {V4(D0)}, {V4(PB+4*r+2)}, {V4(wb)}, {V4(D0)}")
                a(f"v_mfma_f32_16x16x32_bf16 {V4(D1)}, {V4(PB+4*r)}, {V4(wb)}, {V4(D1)}")
        m1 = f"s[{S_M1}:{S_M1+1}]"; m2 = f"s[{S_M2}:{S_M2+1}]"
        a(f"v_cndmask_b32 v26, v{D0}, v{D0+2}, {m1}")
        a(f"v_cndmask_b32 v27, v{D1}, v{D1+2}, {m1}")
        a(f"v_cndmask_b32 v28, v26, v27, {m2}")
        a(f"v_cndmask_b32 v26, v{D0+1}, v{D0+3}, {m1}")
        a(f"v_cndmask_b32 v27, v{D1+1}, v{D1+3}, {m1}")
        a(f"v_cndmask_b32 v30, v26, v27, {m2}")
        a(f"v_mov_b32 v29, s{S_TAG}"); a(f"v_mov_b32 v31, s{S_TAG}")
        a(f"buffer_store_dwordx4 v[28:31], v20, {S(SRD_WS)}, s{S_T0+6} offen sc1")
        self.stamp(3)
        a.label("L_W_apoll")
        a(f"buffer_load_dwordx4 v[24:27], v10, {S(SRD_WS)}, s{S_T0+7} offen sc1")
        a("s_waitcnt vmcnt(0)")
        a(f"v_xor_b32 v30, s{S_TAG}, v25")
        a(f"v_xor_b32 v31, s{S_TAG}, v27"); a("v_or_b32 v30, v30, v31")
        a("v_cmp_ne_u32 vcc, 0, v30")
        a("s_cbranch_vccz L_W_agot")
        self.spin_guard("L_W_apoll", "L_W_agot")
        a.label("L_W_agot")
        self.stamp(4)
        allreduce64(a, 24, 30, "v_add_f32"); allreduce64(a, 26, 30, "v_add_f32")
        rnd(a, 24); rnd(a, 26)
        a("v_add_f32 v24, v24, v12"); a("v_add_f32 v26, v26, v14")
        rnd(a, 24); rnd(a, 26)
        a("v_add_f32 v24, v24, v16"); a("v_add_f32 v26, v26, v18")
        a("v_cvt_pk_bf16_f32 v24, v24, v26")
        a("s_mov_b64 exec, 1")
        a(f"buffer_store_dword v24, v2, {S(SRD_C)}, 0 offen")
        a("s_cmp_lg_u32 s2, 0")
        a("s_cbranch_scc1 L_W_noep")
        a(f"v_mov_b32 v25, s{S_TAG}"); a("v_mov_b32 v26, 0")
        a(f"buffer_store_dword v25, v26, {S(SRD_WS)}, 0 offen sc1")
        a.label("L_W_noep")
        a("s_mov_b64 exec, -1")
        self.stamp(5)
        self.dump_stamps(6, 3)
        a("s_waitcnt vmcnt(0)")

    def build(self):
        self.prologue()
        self.swave()
        self.qwave()
        self.mwave()
        self.wwave()
        self.a.label("L_end")
        self.a("s_endpgm")
        body = self.a.text()
        stub = open("parallel_sum__gqa_block_cached__moe_arch_mod__decode.s.ref").read()
        head = stub[:stub.index("; @launch")]
        txt = head + f"; @launch grid=(256,1,1) block=(448,1,1) lds={LDS_BYTES}\n"
        txt += f""".amdgcn_target "amdgcn-amd-amdhsa--gfx950"
.text
.globl {KNAME}
.p2align 8
.type {KNAME},@function
{KNAME}:
{body}
.section .rodata,"a"
.p2align 6
.amdhsa_kernel {KNAME}
  .amdhsa_next_free_vgpr 256
  .amdhsa_next_free_sgpr 102
  .amdhsa_accum_offset 256
  .amdhsa_group_segment_fixed_size 0
  .amdhsa_kernarg_size 104
  .amdhsa_user_sgpr_count 2
  .amdhsa_user_sgpr_kernarg_segment_ptr 1
  .amdhsa_system_sgpr_workgroup_id_x 1
.end_amdhsa_kernel
"""
        return txt

if __name__ == "__main__":
    import argparse
    p = argparse.ArgumentParser()
    p.add_argument("--dbg", action="store_true")
    p.add_argument("--early", type=int, default=3)
    p.add_argument("--qdelay", type=int, default=0)
    p.add_argument("--wflag", default="nt")
    p.add_argument("--noa0", action="store_true")
    p.add_argument("--pace", type=int, default=0)
    p.add_argument("--paceto", type=int, default=48)
    p.add_argument("--mprio", type=int, default=0)
    p.add_argument("-o", default="parallel_sum__gqa_block_cached__moe_arch_mod__decode.s")
    args = p.parse_args()
    g = Gen(dbg=args.dbg, early=args.early, qdelay=args.qdelay, wflag=args.wflag, a0=not args.noa0, pace=args.pace, mprio=args.mprio, paceto=args.paceto)
    t = g.build()
    open(args.o, "w").write(t)
    print("wrote", args.o, len(t), "bytes")
```

```python
import sys
from asmlib import Asm

KNAME = "parallel_sum__gqa_block_cached__moe_arch_mod__decode_kernel"
WS_QG = 0x1000
WS_ST = 0x8000
WS_AP = 0x10000
WS_YP = 0x80000
WS_OP = 0x100000
WS_DBG = 0x200000
WS_SIZE = 0x300000
L_T = 0; L_Q = 4096; L_O = 5120; L_ST = 13312; L_G = 13568; L_PP = 14592; L_RS = 14848
LDS_BYTES = 15360
SPIN_LIMIT = 40000

S_X, S_K, S_V, S_WQ, S_WO, S_WR, S_WG, S_WU, S_WD, S_OUT, S_WS = 8, 10, 12, 14, 16, 20, 22, 24, 26, 28, 32
S_G, S_SP, S_WAVE, S_TAG = 34, 35, 36, 37
SRD_WS = 40
SRD_A = 44
SRD_B = 48
SRD_C = 52
S_OFF = 56
S_SPIN = 57
S_HI = 58
S_LOG2E = 59
S_SCALE = 60
S_M1 = 62
S_M2 = 64
S_T0 = 66
S_TS = 80

def srd(a, d, base, off_sgpr=None, off_imm=0, size=0):
    if off_sgpr is not None:
        a(f"s_add_u32 s{d}, s{base}, s{off_sgpr}")
        a(f"s_addc_u32 s{d+1}, s{base+1}, 0")
    else:
        a(f"s_mov_b32 s{d}, s{base}")
        a(f"s_mov_b32 s{d+1}, s{base+1}")
    a(f"s_mov_b32 s{d+2}, {size:#x}")
    a(f"s_mov_b32 s{d+3}, 0x00020000")

def S(d): return f"s[{d}:{d+3}]"
def V4(r): return f"v[{r}:{r+3}]"
def V2(r): return f"v[{r}:{r+1}]"

def allreduce64(a, v, t, op):
    a(f"{op}_dpp v{v}, v{v}, v{v} quad_perm:[1,0,3,2] row_mask:0xf bank_mask:0xf")
    a(f"{op}_dpp v{v}, v{v}, v{v} quad_perm:[2,3,0,1] row_mask:0xf bank_mask:0xf")
    a(f"{op}_dpp v{v}, v{v}, v{v} row_half_mirror row_mask:0xf bank_mask:0xf")
    a(f"{op}_dpp v{v}, v{v}, v{v} row_mirror row_mask:0xf bank_mask:0xf")
    rows_reduce(a, v, t, op)

def rows_reduce(a, v, t, op):
    a(f"v_mov_b32 v{t}, v{v}")
    a(f"v_permlane16_swap_b32 v{v}, v{t}")
    a(f"{op} v{v}, v{v}, v{t}")
    a(f"v_mov_b32 v{t}, v{v}")
    a(f"v_permlane32_swap_b32 v{v}, v{t}")
    a(f"{op} v{v}, v{v}, v{t}")

def rnd(a, v):
    a(f"v_cvt_pk_bf16_f32 v{v}, v{v}, v{v}")
    a(f"v_and_b32 v{v}, s{S_HI}, v{v}")

class Gen:
    def __init__(self, dbg=False, early=3, qdelay=0, wflag="nt", a0=True, pace=0, mprio=0, paceto=48, hdbg=False):
        self.hdbg = hdbg
        if hdbg: dbg = False
        self.dbg = dbg; self.early = early; self.qdelay = qdelay; self.wflag = wflag; self.a0 = a0
        self.pace = pace; self.mprio = mprio; self.paceto = paceto; self.nissued = None
        self.a = Asm()

    def hdump(self, items):
        if not self.hdbg: return
        a = self.a
        a("s_waitcnt lgkmcnt(0) vmcnt(0)")
        srd(a, SRD_C, 30, size=256)
        a("s_mov_b64 exec, 1")
        for (st, w, mode) in items:
            if mode == "min":
                a(f"s_not_b32 s{S_T0}, s{S_TS+2*st}")
                a(f"v_mov_b32 v2, s{S_T0}")
            else:
                a(f"v_mov_b32 v2, s{S_TS+2*st}")
            a(f"v_mov_b32 v3, {4*w}")
            a(f"buffer_atomic_umax v2, v3, {S(SRD_C)}, 0 offen sc1")
            a("s_waitcnt vmcnt(0)")
        a("s_mov_b64 exec, -1")

    def stamp(self, idx):
        if self.dbg or self.hdbg:
            self.a(f"s_memrealtime s[{S_TS+2*idx}:{S_TS+2*idx+1}]")

    def dump_stamps(self, n, slot, vt=2):
        if not self.dbg: return
        a = self.a
        a("s_waitcnt lgkmcnt(0) vmcnt(0)")
        a(f"s_lshl_b32 s{S_T0}, s2, 10")
        a(f"s_lshl_b32 s{S_T0+1}, s{S_WAVE}, 7")
        a(f"s_add_u32 s{S_T0}, s{S_T0}, s{S_T0+1}")
        a(f"s_add_u32 s{S_T0}, s{S_T0}, {WS_DBG}")
        a("s_mov_b64 exec, 1")
        a(f"v_mov_b32 v{vt+2}, s{S_T0}")
        for i in range(n):
            a(f"v_mov_b32 v{vt}, s{S_TS+2*i}")
            a(f"v_mov_b32 v{vt+1}, s{S_TS+2*i+1}")
            a(f"buffer_store_dwordx2 {V2(vt)}, v{vt+2}, {S(SRD_WS)}, 0 offen offset:{8*i}")
            a("s_waitcnt vmcnt(0)")
        a("s_mov_b64 exec, -1")

    def spin_guard(self, lab_retry, lab_done, sleep=1):
        a = self.a
        a(f"s_sub_u32 s{S_SPIN}, s{S_SPIN}, 1")
        a(f"s_cmp_eq_u32 s{S_SPIN}, 0")
        a(f"s_cbranch_scc1 {lab_done}")
        if sleep: a(f"s_sleep {sleep}")
        a(f"s_branch {lab_retry}")

    def prologue(self):
        a = self.a
        a("s_cmp_ge_u32 s2, 256")
        a("s_cbranch_scc1 L_end")
        self.stamp(0)
        a("s_load_dwordx16 s[8:23], s[0:1], 0")
        a("s_load_dwordx8 s[24:31], s[0:1], 64")
        a(f"s_load_dwordx2 s[{S_WS}:{S_WS+1}], s[0:1], 96")
        a("v_lshrrev_b32 v1, 6, v0")
        a("v_and_b32 v0, 63, v0")
        a(f"s_and_b32 s{S_G}, s2, 7")
        a(f"s_lshr_b32 s{S_SP}, s2, 3")
        a(f"v_readfirstlane_b32 s{S_WAVE}, v1")
        a(f"s_mov_b32 s{S_HI}, 0xffff0000")
        a(f"s_mov_b32 s{S_LOG2E}, 0x3fb8aa3b")
        a(f"s_mov_b32 s{S_SPIN}, {SPIN_LIMIT}")
        a("s_waitcnt lgkmcnt(0)")
        a(f"s_load_dword s{S_TAG}, s[{S_WS}:{S_WS+1}], 0")
        srd(a, SRD_WS, S_WS, size=WS_SIZE)
        a(f"s_cmp_lt_u32 s{S_WAVE}, 4")
        a("s_cbranch_scc1 L_S")
        a(f"s_cmp_eq_u32 s{S_WAVE}, 4")
        a("s_cbranch_scc1 L_Q")
        a(f"s_cmp_eq_u32 s{S_WAVE}, 5")
        a("s_cbranch_scc1 L_M")
        a("s_branch L_W")

    def get_tag(self):
        a = self.a
        a("s_waitcnt lgkmcnt(0)")
        a(f"s_add_u32 s{S_TAG}, s{S_TAG}, 1")

    RING = 64
    def pace_wait(self):
        if self.nissued is None: return
        if self.pace and self.pace <= self.nissued < self.paceto:
            self.a(f"s_waitcnt vmcnt({self.pace-1})")
        self.nissued += 1
    def issueK(self, slot):
        a = self.a; b = self.RING + 64*slot
        for t in range(2):
            for c in range(4):
                r = b + 16*t + 4*c
                self.pace_wait()
                a(f"buffer_load_dwordx4 {V4(r)}, v{1+t}, {S(SRD_A)}, s{S_OFF} offen offset:{64*c} nt")
    def issueV(self, slot):
        a = self.a; b = self.RING + 64*slot + 32
        for r8 in range(8):
            r = b + 4*r8
            self.pace_wait()
            a(f"buffer_load_dwordx4 {V4(r)}, v{3+(r8>>2)}, {S(SRD_B)}, s{S_OFF} offen offset:{1024*(r8&3)} nt")
        a(f"s_add_u32 s{S_OFF}, s{S_OFF}, 32768")

    def group(self, slot, kwait, vwait, reissue):
        a = self.a
        b = self.RING + 64*slot
        SC = 32; PB = 10; D0 = 40; D1 = 44; Q = 48
        vM, vMC, vL, vMX, vMY = 6, 8, 9, 5, 7
        a(f"s_waitcnt vmcnt({kwait})")
        for c in range(4):
            for t in range(2):
                cc = "0" if c == 0 else V4(SC+4*t)
                a(f"v_mfma_f32_16x16x32_bf16 {V4(SC+4*t)}, {V4(b+16*t+4*c)}, {V4(Q+4*c)}, {cc}")
        if reissue: self.issueK(slot)
        for k in range(4):
            s0 = SC+2*k; t = 28+k
            a(f"v_cvt_pk_bf16_f32 v{t}, v{s0}, v{s0+1}")
        for k in range(4):
            s0 = SC+2*k; t = 28+k
            a(f"v_lshlrev_b32 v{s0}, 16, v{t}")
            a(f"v_and_b32 v{s0+1}, s{S_HI}, v{t}")
        for k in range(4):
            s0 = SC+2*k
            a(f"v_pk_mul_f32 {V2(s0)}, {V2(s0)}, s[{S_SCALE}:{S_SCALE+1}]")
        for k in range(4):
            s0 = SC+2*k; t = 28+k
            a(f"v_cvt_pk_bf16_f32 v{t}, v{s0}, v{s0+1}")
        for k in range(4):
            s0 = SC+2*k; t = 28+k
            a(f"v_lshlrev_b32 v{s0}, 16, v{t}")
            a(f"v_and_b32 v{s0+1}, s{S_HI}, v{t}")
        a(f"v_max3_f32 v28, v{SC}, v{SC+1}, v{SC+2}")
        a(f"v_max3_f32 v29, v{SC+3}, v{SC+4}, v{SC+5}")
        a(f"v_max3_f32 v28, v28, v{SC+6}, v{SC+7}")
        a(f"v_max_f32 v28, v28, v29")
        a(f"v_cmp_gt_f32 vcc, v28, v{vM}")
        skip = a.uniq("L_skip")
        a(f"s_cbranch_vccz {skip}")
        rows_reduce(a, 28, 29, "v_max_f32")
        a(f"v_max_f32 v28, v28, v{vM}")
        a(f"v_mul_f32 v29, s{S_LOG2E}, v28")
        a(f"v_sub_f32 v30, v{vMC}, v29")
        a(f"v_exp_f32 v30, v30")
        a(f"v_mov_b32 v{vM}, v28")
        a(f"v_mov_b32 v{vMC}, v29")
        a(f"v_mul_f32 v{vL}, v{vL}, v30")
        for h in range(4):
            a(f"v_mov_b32_dpp v31, v30 row_newbcast:{4*h} row_mask:{1<<h:#x} bank_mask:0xf")
        for k in range(8):
            a(f"v_mul_f32 v{D0+k}, v{D0+k}, v31")
        a.label(skip)
        for k in range(8):
            a(f"v_fma_f32 v{SC+k}, v{SC+k}, s{S_LOG2E}, -v{vMC}")
        for k in range(8):
            a(f"v_exp_f32 v{SC+k}, v{SC+k}")
        for t in range(2):
            for r in range(4):
                a(f"v_cvt_pk_bf16_f32 v{28+r}, v{SC+4*t+r}, v{SC+4*t+r}")
            for r in range(4):
                a(f"v_and_b32 v{PB+4*r+2}, v{28+r}, v{vMX}")
                a(f"v_and_b32 v{PB+4*r+3}, v{28+r}, v{vMY}")
            if t == 0:
                a(f"s_waitcnt vmcnt({vwait})")
            for r in range(4):
                vb = b + 32 + 4*(4*t+r)
                a(f"v_mfma_f32_16x16x32_bf16 {V4(D0)}, {V4(PB+4*r+2)}, {V4(vb)}, {V4(D0)}")
                a(f"v_mfma_f32_16x16x32_bf16 {V4(D1)}, {V4(PB+4*r)}, {V4(vb)}, {V4(D1)}")
        if reissue: self.issueV(slot)
        a(f"v_pk_add_f32 v[28:29], {V2(SC)}, {V2(SC+2)}")
        a(f"v_pk_add_f32 v[30:31], {V2(SC+4)}, {V2(SC+6)}")
        a(f"v_pk_add_f32 v[28:29], v[28:29], v[30:31]")
        a(f"v_add_f32 v28, v28, v29")
        a(f"v_add_f32 v{vL}, v{vL}, v28")

    def masksXY(self, vX, vY, t):
        a = self.a
        a(f"v_and_b32 v{t}, 3, v0")
        a(f"v_mov_b32 v{vX}, 0"); a(f"v_mov_b32 v{vY}, 0")
        a(f"v_mov_b32 v{t+1}, 0xffff")
        a(f"v_mov_b32 v{t+2}, s{S_HI}")
        a(f"v_cmp_eq_u32 vcc, 0, v{t}"); a(f"v_cndmask_b32 v{vX}, v{vX}, v{t+1}, vcc")
        a(f"v_cmp_eq_u32 vcc, 1, v{t}"); a(f"v_cndmask_b32 v{vX}, v{vX}, v{t+2}, vcc")
        a(f"v_cmp_eq_u32 vcc, 2, v{t}"); a(f"v_cndmask_b32 v{vY}, v{vY}, v{t+1}, vcc")
        a(f"v_cmp_eq_u32 vcc, 3, v{t}"); a(f"v_cndmask_b32 v{vY}, v{vY}, v{t+2}, vcc")

    def swave(self):
        a = self.a
        a.label("L_S")
        a(f"s_lshl_b32 s{S_T0}, s{S_G}, 24")
        a(f"s_lshl_b32 s{S_T0+1}, s{S_SP}, 19")
        a(f"s_add_u32 s{S_T0}, s{S_T0}, s{S_T0+1}")
        srd(a, SRD_A, S_K, S_T0, size=0x80000)
        srd(a, SRD_B, S_V, S_T0, size=0x80000)
        a("v_and_b32 v1, 3, v0"); a("v_lshlrev_b32 v1, 10, v1")
        a("v_bfe_u32 v2, v0, 2, 2"); a("v_lshlrev_b32 v2, 8, v2"); a("v_add_u32 v1, v1, v2")
        a("v_lshrrev_b32 v2, 4, v0"); a("v_lshlrev_b32 v2, 4, v2"); a("v_add_u32 v1, v1, v2")
        a("v_add_u32 v2, 0x1000, v1")
        a("v_lshlrev_b32 v3, 4, v0"); a("v_add_u32 v4, 0x1000, v3")
        a(f"s_lshl_b32 s{S_OFF}, s{S_WAVE}, 13")
        if self.a0: a("s_barrier")
        self.stamp(1)
        self.nissued = 0
        for slot in range(3):
            if slot == self.early: a("s_barrier")
            self.issueK(slot); self.issueV(slot)
        self.nissued = None
        if self.early >= 3: a("s_barrier")
        self.masksXY(5, 7, 28)
        for k in range(5):
            a(f"v_mov_b32 v{10+4*k}, 0"); a(f"v_mov_b32 v{11+4*k}, 0")
        for k in range(8): a(f"v_mov_b32 v{40+k}, 0")
        a("v_mov_b32 v6, 0xff800000"); a("v_mov_b32 v8, 0xff800000"); a("v_mov_b32 v9, 0")
        a(f"s_mov_b32 s{S_SCALE}, 0x3db504f3"); a(f"s_mov_b32 s{S_SCALE+1}, 0x3db504f3")
        a("v_bfe_u32 v28, v0, 2, 2"); a("v_lshlrev_b32 v28, 8, v28")
        a("v_lshrrev_b32 v29, 4, v0"); a("v_lshlrev_b32 v29, 4, v29"); a("v_add_u32 v28, v28, v29")
        self.stamp(2)
        a("s_barrier")
        self.stamp(3)
        for c in range(4):
            a(f"ds_read_b128 {V4(48+4*c)}, v28 offset:{L_Q+64*c}")
        a("s_waitcnt lgkmcnt(0)")
        a(f"s_mov_b32 s{S_T0}, 4")
        a.label("L_S_loop")
        for slot in range(3):
            self.group(slot, 40, 40, True)
        a(f"s_sub_u32 s{S_T0}, s{S_T0}, 1")
        a(f"s_cmp_lg_u32 s{S_T0}, 0")
        a("s_cbranch_scc1 L_S_loop")
        self.group(0, 40, 40, True)
        self.group(1, 40, 32, False)
        self.group(2, 24, 16, False)
        self.group(0, 8, 0, False)
        self.stamp(4)
        rows_reduce(a, 9, 28, "v_add_f32")
        a("v_lshlrev_b32 v28, 5, v0")
        a(f"s_lshl_b32 s{S_T0}, s{S_WAVE}, 11")
        a(f"v_add_u32 v28, s{S_T0}, v28")
        a(f"ds_write_b128 v28, {V4(40)} offset:{L_O}")
        a(f"ds_write_b128 v28, {V4(44)} offset:{L_O+16}")
        a("v_lshlrev_b32 v29, 3, v0")
        a(f"s_lshl_b32 s{S_T0}, s{S_WAVE}, 3")
        a(f"v_add_u32 v29, s{S_T0}, v29")
        a("s_mov_b64 exec, 0x1111")
        a(f"ds_write_b64 v29, v[8:9] offset:{L_ST}")
        a("s_mov_b64 exec, -1")
        self.get_tag()
        a("s_barrier")
        self.stamp(5)
        a(f"s_lshl_b32 s{S_T0}, s{S_WAVE}, 5")
        a(f"v_mov_b32 v28, s{S_T0}")
        a(f"ds_read_b128 v[64:67], v28 offset:{L_ST}")
        a(f"ds_read_b128 v[68:71], v28 offset:{L_ST+16}")
        a(f"s_lshl_b32 s{S_T0}, s{S_WAVE}, 9")
        a("v_lshlrev_b32 v29, 3, v0")
        a(f"v_add_u32 v29, s{S_T0}, v29")
        for k in range(4):
            a(f"ds_read_b64 {V2(72+2*k)}, v29 offset:{L_O+2048*k}")
        a("s_waitcnt lgkmcnt(4)")
        a("v_max3_f32 v30, v64, v66, v68")
        a("v_max_f32 v30, v30, v70")
        for k in range(4):
            a(f"v_sub_f32 v{64+2*k}, v{64+2*k}, v30")
        for k in range(4):
            a(f"v_exp_f32 v{64+2*k}, v{64+2*k}")
        a("v_mul_f32 v82, v64, v65")
        a("v_fma_f32 v82, v66, v67, v82")
        a("v_fma_f32 v82, v68, v69, v82")
        a("v_fma_f32 v82, v70, v71, v82")
        a("s_waitcnt lgkmcnt(0)")
        a("v_mul_f32 v84, v64, v72"); a("v_mul_f32 v86, v64, v73")
        for k in range(1, 4):
            a(f"v_fma_f32 v84, v{64+2*k}, v{72+2*k}, v84")
            a(f"v_fma_f32 v86, v{64+2*k}, v{73+2*k}, v86")
        a(f"v_mov_b32 v85, s{S_TAG}"); a(f"v_mov_b32 v87, s{S_TAG}")
        a("v_mov_b32 v80, v30"); a(f"v_mov_b32 v81, s{S_TAG}"); a(f"v_mov_b32 v83, s{S_TAG}")
        a(f"s_lshl_b32 s{S_T0}, s{S_G}, 5"); a(f"s_add_u32 s{S_T0}, s{S_T0}, s{S_SP}")
        a(f"s_lshl_b32 s{S_T0}, s{S_T0}, 12")
        a(f"s_lshl_b32 s{S_T0+1}, s{S_WAVE}, 10")
        a(f"s_add_u32 s{S_T0}, s{S_T0}, s{S_T0+1}")
        a(f"s_add_u32 s{S_T0}, s{S_T0}, {WS_OP}")
        a("v_lshlrev_b32 v28, 4, v0")
        a(f"buffer_store_dwordx4 v[84:87], v28, {S(SRD_WS)}, s{S_T0} offen sc1")
        a(f"s_lshl_b32 s{S_T0+1}, s{S_G}, 2"); a(f"s_add_u32 s{S_T0+1}, s{S_T0+1}, s{S_WAVE}")
        a(f"s_lshl_b32 s{S_T0+1}, s{S_T0+1}, 5"); a(f"s_add_u32 s{S_T0+1}, s{S_T0+1}, s{S_SP}")
        a(f"s_lshl_b32 s{S_T0+1}, s{S_T0+1}, 4"); a(f"s_add_u32 s{S_T0+1}, s{S_T0+1}, {WS_ST}")
        a("v_mov_b32 v29, 0")
        a("s_mov_b64 exec, 1")
        a(f"buffer_store_dwordx4 v[80:83], v29, {S(SRD_WS)}, s{S_T0+1} offen sc1")
        a("s_mov_b64 exec, -1")
        self.stamp(6)
        a(f"s_lshr_b32 s{S_T0+2}, s{S_SP}, 3")
        a(f"s_bfe_u32 s{S_T0+3}, s{S_SP}, 0x10002")
        a(f"s_lshl_b32 s{S_T0}, s{S_G}, 5"); a(f"s_lshl_b32 s{S_T0+1}, s{S_WAVE}, 3")
        a(f"s_add_u32 s{S_T0}, s{S_T0}, s{S_T0+1}"); a(f"s_lshl_b32 s{S_T0}, s{S_T0}, 12")
        a(f"s_lshl_b32 s{S_T0+1}, s{S_T0+2}, 10"); a(f"s_add_u32 s{S_T0}, s{S_T0}, s{S_T0+1}")
        a(f"s_lshl_b32 s{S_T0+1}, s{S_T0+3}, 9"); a(f"s_add_u32 s{S_T0}, s{S_T0}, s{S_T0+1}")
        a(f"s_add_u32 s{S_T0+4}, s{S_T0}, {WS_OP}")
        for u in range(1, 4):
            a(f"s_add_u32 s{S_T0+4+u}, s{S_T0+4}, {8192*u}")
        a("v_lshrrev_b32 v28, 5, v0"); a("v_lshlrev_b32 v28, 12, v28")
        a("v_and_b32 v29, 31, v0"); a("v_lshlrev_b32 v29, 4, v29"); a("v_add_u32 v28, v28, v29")
        a(f"s_lshl_b32 s{S_T0+8}, s{S_G}, 2"); a(f"s_add_u32 s{S_T0+8}, s{S_T0+8}, s{S_T0+2}")
        a(f"s_lshl_b32 s{S_T0+8}, s{S_T0+8}, 9"); a(f"s_add_u32 s{S_T0+8}, s{S_T0+8}, {WS_ST}")
        a.label("L_S_poll")
        for u in range(4):
            a(f"buffer_load_dwordx4 {V4(64+4*u)}, v28, {S(SRD_WS)}, s{S_T0+4+u} offen sc1")
        a(f"buffer_load_dwordx4 v[80:83], v29, {S(SRD_WS)}, s{S_T0+8} offen sc1")
        a("s_waitcnt vmcnt(0)")
        a(f"v_xor_b32 v30, s{S_TAG}, v65")
        for r in [67, 69, 71, 73, 75, 77, 79, 81, 83]:
            a(f"v_xor_b32 v31, s{S_TAG}, v{r}")
            a("v_or_b32 v30, v30, v31")
        a("v_cmp_ne_u32 vcc, 0, v30")
        a("s_cbranch_vccz L_S_got")
        self.spin_guard("L_S_poll", "L_S_got")
        a.label("L_S_got")
        self.stamp(7)
        a("v_mov_b32 v30, v80")
        allreduce64(a, 30, 31, "v_max_f32")
        a("v_sub_f32 v80, v80, v30")
        a("v_exp_f32 v80, v80")
        a("v_mul_f32 v82, v80, v82")
        allreduce64(a, 82, 31, "v_add_f32")
        a("v_rcp_f32 v82, v82")
        a("v_add_f32 v80, v80, v80")
        a("v_mul_f32 v80, v80, v82")
        a("v_lshrrev_b32 v30, 5, v0")
        a(f"s_lshl_b32 s{S_T0}, s{S_WAVE}, 3")
        a(f"v_add_u32 v30, s{S_T0}, v30")
        a("v_lshlrev_b32 v30, 2, v30")
        for u in range(4):
            if u: a("v_add_u32 v30, 8, v30")
            a(f"ds_bpermute_b32 v{84+u}, v30, v80")
        a("s_waitcnt lgkmcnt(0)")
        a("v_mul_f32 v88, v84, v64"); a("v_mul_f32 v89, v84, v66")
        for u in range(1, 4):
            a(f"v_fma_f32 v88, v{84+u}, v{64+4*u}, v88")
            a(f"v_fma_f32 v89, v{84+u}, v{66+4*u}, v89")
        a("v_mov_b32 v90, v88"); a("v_mov_b32 v91, v89")
        a("v_permlane32_swap_b32 v88, v90"); a("v_permlane32_swap_b32 v89, v91")
        a("v_add_f32 v88, v88, v90"); a("v_add_f32 v89, v89, v91")
        a("v_and_b32 v30, 31, v0"); a("v_lshlrev_b32 v30, 3, v30")
        a(f"s_lshl_b32 s{S_T0}, s{S_WAVE}, 8")
        a(f"v_add_u32 v30, s{S_T0}, v30")
        a(f"ds_write_b64 v30, v[88:89] offset:{L_G}")
        a("s_waitcnt lgkmcnt(0)")
        a("s_barrier")
        self.stamp(8)
        if self.dbg:
            a(f"s_getreg_b32 s{S_TS+18}, hwreg(HW_REG_XCC_ID)"); a(f"s_mov_b32 s{S_TS+19}, 0")
            self.dump_stamps(10, 0)
        self.hdump([(3, 2, "max"), (4, 3, "max"), (4, 4, "min"), (5, 5, "max"), (7, 6, "max"), (2, 15, "max")])
        a("s_branch L_end")

    def gemv16_loads(self, srd_, reg, rowstride):
        a = self.a
        a(f"s_mov_b32 s{S_OFF}, 0")
        for i in range(16):
            a(f"buffer_load_dwordx4 {V4(reg+4*i)}, v1, {S(srd_)}, s{S_OFF} offen {self.wflag}")
            if i < 15: a(f"s_add_u32 s{S_OFF}, s{S_OFF}, {32*rowstride}")

    def gemv16_compute(self, reg, tb, acc, wait_first, outA, outB):
        a = self.a
        for k in range(8): a(f"v_mov_b32 v{acc+k}, 0")
        for i in range(16):
            if wait_first is not None:
                a(f"s_waitcnt vmcnt({wait_first + 15 - i})")
            for k in range(4):
                a(f"v_dot2c_f32_bf16 v{acc+2*k}, v{reg+4*i+k}, v{tb+2*i}")
                a(f"v_dot2c_f32_bf16 v{acc+2*k+1}, v{reg+4*i+k}, v{tb+2*i+1}")
        for k in range(4):
            a(f"v_permlane32_swap_b32 v{acc+k}, v{acc+4+k}")
        for k in range(4):
            a(f"v_add_f32 v{acc+k}, v{acc+k}, v{acc+4+k}")
        a(f"v_permlane16_swap_b32 v{acc}, v{acc+2}")
        a(f"v_permlane16_swap_b32 v{acc+1}, v{acc+3}")
        a(f"v_add_f32 v{outA}, v{acc}, v{acc+2}")
        a(f"v_add_f32 v{outB}, v{acc+1}, v{acc+3}")
        for rr in (2, 4, 8):
            a(f"v_add_f32_dpp v{outA}, v{outA}, v{outA} row_ror:{rr} row_mask:0xf bank_mask:0xf")
            a(f"v_add_f32_dpp v{outB}, v{outB}, v{outB} row_ror:{rr} row_mask:0xf bank_mask:0xf")

    def read_T(self, tb):
        a = self.a
        a("v_lshrrev_b32 v2, 1, v0"); a("v_lshlrev_b32 v2, 3, v2")
        for i in range(16):
            a(f"ds_read_b64 {V2(tb+2*i)}, v2 offset:{L_T+256*i}")

    def qwave(self):
        a = self.a
        a.label("L_Q")
        a("s_setprio 3")
        srd(a, SRD_A, S_X, size=1024)
        srd(a, SRD_B, S_WR, size=1024)
        a(f"s_lshl_b32 s{S_T0}, s{S_G}, 10"); a(f"s_lshl_b32 s{S_T0+1}, s{S_SP}, 5")
        a(f"s_add_u32 s{S_T0}, s{S_T0}, s{S_T0+1}")
        a(f"s_add_u32 s{SRD_C}, s{S_WQ}, s{S_T0}"); a(f"s_addc_u32 s{SRD_C+1}, s{S_WQ+1}, 0")
        a(f"s_sub_u32 s{SRD_C+2}, {512*8192}, s{S_T0}"); a(f"s_mov_b32 s{SRD_C+3}, 0x00020000")
        a("v_lshlrev_b32 v3, 4, v0")
        a(f"buffer_load_dwordx4 v[4:7], v3, {S(SRD_A)}, 0 offen")
        a(f"buffer_load_dwordx4 v[8:11], v3, {S(SRD_B)}, 0 offen")
        a("v_lshrrev_b32 v1, 1, v0"); a("v_lshlrev_b32 v1, 13, v1")
        a("v_and_b32 v2, 1, v0"); a("v_lshlrev_b32 v2, 4, v2"); a("v_add_u32 v1, v1, v2")
        self.gemv16_loads(SRD_C, 64, 8192)
        if self.a0: a("s_barrier")
        a("s_waitcnt vmcnt(17)")
        for k in range(4):
            a(f"v_lshlrev_b32 v{16+2*k}, 16, v{4+k}")
            a(f"v_and_b32 v{17+2*k}, s{S_HI}, v{4+k}")
        a("v_pk_add_f32 v[24:25], v[16:17], v[18:19]")
        a("v_pk_add_f32 v[26:27], v[20:21], v[22:23]")
        a("v_pk_add_f32 v[24:25], v[24:25], v[26:27]")
        a("v_add_f32 v24, v24, v25")
        allreduce64(a, 24, 25, "v_add_f32")
        a("v_mul_f32 v24, 0x3b000000, v24")
        for k in range(8): a(f"v_sub_f32 v{28+k}, v{16+k}, v24")
        a("v_mul_f32 v26, v28, v28")
        for k in range(1, 8): a(f"v_fma_f32 v26, v{28+k}, v{28+k}, v26")
        allreduce64(a, 26, 25, "v_add_f32")
        a("v_mul_f32 v26, 0x3b000000, v26")
        rnd(a, 24); rnd(a, 26)
        a("v_add_f32 v26, 0x3727c5ac, v26"); rnd(a, 26)
        a("v_sqrt_f32 v26, v26"); rnd(a, 26)
        a("v_rcp_f32 v26, v26")
        for k in range(8): a(f"v_sub_f32 v{16+k}, v{16+k}, v24")
        for k in range(4): a(f"v_cvt_pk_bf16_f32 v{28+k}, v{16+2*k}, v{17+2*k}")
        for k in range(4):
            a(f"v_lshlrev_b32 v{16+2*k}, 16, v{28+k}")
            a(f"v_and_b32 v{17+2*k}, s{S_HI}, v{28+k}")
        for k in range(8): a(f"v_mul_f32 v{16+k}, v{16+k}, v26")
        for k in range(4): a(f"v_cvt_pk_bf16_f32 v{12+k}, v{16+2*k}, v{17+2*k}")
        a("v_lshlrev_b32 v2, 6, v0")
        for k in range(4):
            a(f"v_and_b32 v28, 0xffff, v{12+k}")
            a(f"v_lshlrev_b32 v29, 16, v{12+k}")
            a(f"v_lshrrev_b32 v30, 16, v{12+k}")
            a(f"v_and_b32 v31, s{S_HI}, v{12+k}")
            a(f"ds_write_b128 v2, v[28:31] offset:{L_T+16*k}")
            if k < 3:
                a("s_nop 1")
        a("s_waitcnt lgkmcnt(0)")
        self.read_T(128)
        a("s_waitcnt lgkmcnt(0)")
        self.stamp(1)
        self.gemv16_compute(64, 128, 16, 0, 24, 25)
        self.get_tag()
        a("v_cvt_pk_bf16_f32 v26, v24, v25")
        a(f"v_mov_b32 v27, s{S_TAG}")
        a("v_and_b32 v2, 1, v0"); a("v_lshlrev_b32 v2, 5, v2")
        a("v_lshrrev_b32 v3, 4, v0"); a("v_lshlrev_b32 v3, 3, v3"); a("v_add_u32 v2, v2, v3")
        a(f"s_lshl_b32 s{S_T0}, s{S_G}, 11"); a(f"s_add_u32 s{S_T0}, s{S_T0}, {WS_QG}")
        a(f"s_lshl_b32 s{S_T0+1}, s{S_SP}, 6"); a(f"s_add_u32 s{S_T0+1}, s{S_T0+1}, s{S_T0}")
        a("s_mov_b32 exec_lo, 0x00030003"); a("s_mov_b32 exec_hi, 0x00030003")
        a(f"buffer_store_dwordx2 v[26:27], v2, {S(SRD_WS)}, s{S_T0+1} offen sc1")
        a("s_mov_b64 exec, -1")
        self.stamp(2)
        a("v_mov_b32 v28, 0")
        for k in range(4): a(f"v_dot2c_f32_bf16 v28, v{12+k}, v{8+k}")
        allreduce64(a, 28, 29, "v_add_f32")
        rnd(a, 28)
        a(f"v_mul_f32 v28, s{S_LOG2E}, v28")
        a("v_sub_f32 v28, 0, v28")
        a("v_exp_f32 v28, v28")
        a("v_add_f32 v28, 1.0, v28")
        a("v_rcp_f32 v28, v28")
        rnd(a, 28)
        a(f"v_mov_b32 v29, {L_RS}")
        a("ds_write_b32 v29, v28")
        if self.qdelay: a(f"s_sleep {self.qdelay}")
        a("v_lshlrev_b32 v2, 4, v0")
        a("v_lshlrev_b32 v3, 3, v0")
        first = True
        a(f"buffer_load_dwordx4 v[32:35], v2, {S(SRD_WS)}, s{S_T0} offen sc1")
        a(f"buffer_load_dwordx4 v[36:39], v2, {S(SRD_WS)}, s{S_T0} offen offset:1024 sc1")
        if self.early >= 0: a("s_barrier")
        a("s_branch L_Q_chk")
        a.label("L_Q_poll")
        a(f"buffer_load_dwordx4 v[32:35], v2, {S(SRD_WS)}, s{S_T0} offen sc1")
        a(f"buffer_load_dwordx4 v[36:39], v2, {S(SRD_WS)}, s{S_T0} offen offset:1024 sc1")
        a.label("L_Q_chk")
        a("s_waitcnt vmcnt(0)")
        a(f"v_xor_b32 v30, s{S_TAG}, v33")
        for r in (35, 37, 39):
            a(f"v_xor_b32 v31, s{S_TAG}, v{r}"); a("v_or_b32 v30, v30, v31")
        a("v_cmp_ne_u32 vcc, 0, v30")
        a("s_cbranch_vccz L_Q_got")
        self.spin_guard("L_Q_poll", "L_Q_got")
        a.label("L_Q_got")
        a(f"v_add_u32 v3, {L_Q}, v3")
        a("ds_write2_b32 v3, v32, v34 offset0:0 offset1:1")
        a("ds_write2_b32 v3, v36, v38 offset0:128 offset1:129")
        a("s_waitcnt lgkmcnt(0)")
        self.stamp(3)
        a("s_barrier")
        self.dump_stamps(4, 1)
        self.hdump([(2, 7, "max"), (3, 8, "max"), (1, 14, "max")])
        a("s_branch L_end")

    def mwave(self):
        a = self.a
        a.label("L_M")
        a(f"s_cmp_ge_u32 s{S_SP}, 14")
        a("s_cbranch_scc1 L_end")
        a(f"s_mul_i32 s{S_T0+12}, s{S_G}, 14"); a(f"s_add_u32 s{S_T0+12}, s{S_T0+12}, s{S_SP}")
        a(f"s_lshl_b32 s{S_T0}, s{S_T0+12}, 5")
        for d, base in ((SRD_A, S_WG), (SRD_B, S_WU)):
            a(f"s_add_u32 s{d}, s{base}, s{S_T0}"); a(f"s_addc_u32 s{d+1}, s{base+1}, 0")
            a(f"s_sub_u32 s{d+2}, {512*3584}, s{S_T0}"); a(f"s_mov_b32 s{d+3}, 0x00020000")
        a(f"s_lshl_b32 s{S_T0+1}, s{S_T0+12}, 14")
        srd(a, SRD_C, S_WD, S_T0+1, size=16384)
        a("v_lshrrev_b32 v1, 1, v0"); a(f"s_mov_b32 s{S_T0+2}, 3584"); a(f"v_mul_lo_u32 v1, v1, s{S_T0+2}")
        a("v_and_b32 v2, 1, v0"); a("v_lshlrev_b32 v2, 4, v2"); a("v_add_u32 v1, v1, v2")
        self.get_tag()
        if self.mprio: a(f"s_setprio {self.mprio}")
        if self.a0: a("s_barrier")
        if self.early >= 0: a("s_barrier")
        a("s_barrier")
        self.stamp(1)
        self.gemv16_loads(SRD_A, 64, 3584)
        self.gemv16_loads(SRD_B, 128, 3584)
        a("v_lshlrev_b32 v3, 4, v0")
        a(f"s_mov_b32 s{S_OFF}, 0")
        for r in range(16):
            a(f"buffer_load_dwordx4 {V4(192+4*r)}, v3, {S(SRD_C)}, s{S_OFF} offen offset:{1024*(r&3)} {self.wflag}")
            if (r & 3) == 3 and r < 15: a(f"s_add_u32 s{S_OFF}, s{S_OFF}, 4096")
        self.read_T(32)
        a("s_waitcnt lgkmcnt(0)")
        self.gemv16_compute(64, 32, 16, 32, 24, 25)
        self.gemv16_compute(128, 32, 16, 16, 26, 27)
        for v in (24, 25, 26, 27): rnd(a, v)
        for v in (24, 25):
            a(f"v_mul_f32 v28, s{S_LOG2E}, v{v}")
            a("v_sub_f32 v28, 0, v28")
            a("v_exp_f32 v28, v28")
            a("v_add_f32 v28, 1.0, v28")
            a("v_rcp_f32 v28, v28")
            a(f"v_mul_f32 v{v}, v{v}, v28")
            rnd(a, v)
        a("v_mul_f32 v24, v24, v26"); a("v_mul_f32 v25, v25, v27")
        a("v_cvt_pk_bf16_f32 v24, v24, v25")
        SH = S_T0
        for k in range(8):
            a(f"v_readlane_b32 s{SH+k}, v24, {16*(k&3) + (k>>2)}")
        for k in range(8): a(f"v_mov_b32 v{16+k}, 0")
        TA, TB = 74, 75
        for r in range(16):
            k = r >> 1
            if r & 1 == 0:
                a(f"s_and_b32 s{TA}, s{SH+k}, 0xffff"); a(f"s_lshl_b32 s{TB}, s{SH+k}, 16")
            else:
                a(f"s_lshr_b32 s{TA}, s{SH+k}, 16"); a(f"s_and_b32 s{TB}, s{SH+k}, 0xffff0000")
            a(f"s_waitcnt vmcnt({15-r})")
            for j in range(4):
                a(f"v_dot2c_f32_bf16 v{16+2*j}, s{TA}, v{192+4*r+j}")
                a(f"v_dot2c_f32_bf16 v{17+2*j}, s{TB}, v{192+4*r+j}")
        a(f"s_lshl_b32 s{S_T0+12}, s{S_T0+12}, 12"); a(f"s_add_u32 s{S_T0+12}, s{S_T0+12}, {WS_YP}")
        for j in range(4):
            r = 32 + 4*j
            a(f"v_mov_b32 v{r}, v{16+2*j}"); a(f"v_mov_b32 v{r+1}, s{S_TAG}")
            a(f"v_mov_b32 v{r+2}, v{17+2*j}"); a(f"v_mov_b32 v{r+3}, s{S_TAG}")
        for j in range(4):
            a(f"buffer_store_dwordx4 {V4(32+4*j)}, v3, {S(SRD_WS)}, s{S_T0+12} offen offset:{1024*j} sc1")
        self.stamp(2)
        self.dump_stamps(3, 2)
        self.hdump([(2, 9, "max")])
        a("s_waitcnt vmcnt(0)")
        a("s_branch L_end")

    def wwave(self):
        a = self.a
        a.label("L_W")
        RB, CB = S_T0+10, S_T0+11
        a(f"s_lshr_b32 s{RB}, s{S_SP}, 2"); a(f"s_and_b32 s{CB}, s{S_SP}, 3")
        a(f"s_lshl_b32 s{S_T0}, s{S_G}, 19"); a(f"s_lshl_b32 s{S_T0+1}, s{RB}, 16")
        a(f"s_add_u32 s{S_T0}, s{S_T0}, s{S_T0+1}")
        a(f"s_lshl_b32 s{S_T0+1}, s{CB}, 8"); a(f"s_add_u32 s{S_T0}, s{S_T0}, s{S_T0+1}")
        srd(a, SRD_A, S_WO, S_T0, size=65536)
        a(f"s_lshl_b32 s{S_T0+1}, s{CB}, 8"); a(f"s_sub_u32 s{SRD_A+2}, 65536, s{S_T0+1}")
        srd(a, SRD_B, S_X, size=1024)
        srd(a, SRD_C, S_OUT, size=1024)
        a("v_lshrrev_b32 v1, 4, v0"); a("v_lshlrev_b32 v1, 10, v1")
        a("v_and_b32 v2, 15, v0"); a("v_lshlrev_b32 v2, 4, v2"); a("v_add_u32 v1, v1, v2")
        self.get_tag()
        if self.mprio: a(f"s_setprio {self.mprio}")
        if self.a0: a("s_barrier")
        if self.early >= 0: a("s_barrier")
        a("s_barrier")
        WO = 64
        a(f"s_mov_b32 s{S_OFF}, 0")
        for i in range(16):
            a(f"buffer_load_dwordx4 {V4(WO+4*i)}, v1, {S(SRD_A)}, s{S_OFF} offen {self.wflag}")
            if i < 15: a(f"s_add_u32 s{S_OFF}, s{S_OFF}, 4096")
        a(f"s_lshl_b32 s{S_T0+2}, s2, 2")
        a(f"v_mov_b32 v2, s{S_T0+2}")
        a(f"buffer_load_dword v8, v2, {S(SRD_B)}, 0 offen")
        a(f"s_lshl_b32 s{S_T0+3}, s2, 4")
        a(f"v_mov_b32 v3, s{S_T0+3}")
        a(f"ds_read_b128 v[12:15], v3 offset:{L_T}")
        a(f"v_mov_b32 v3, {L_RS}")
        a("ds_read_b32 v9, v3")
        self.masksXY(5, 7, 28)
        for k in range(5):
            a(f"v_mov_b32 v{32+4*k}, 0"); a(f"v_mov_b32 v{33+4*k}, 0")
        for k in range(8): a(f"v_mov_b32 v{56+k}, 0")
        a(f"s_mov_b32 s{S_M1}, 0xffff0000"); a(f"s_mov_b32 s{S_M1+1}, 0xffff0000")
        a(f"s_mov_b32 s{S_M2}, 0"); a(f"s_mov_b32 s{S_M2+1}, -1")
        a(f"s_and_b32 s{S_T0+4}, s2, 3"); a(f"s_lshl_b32 s{S_T0+4}, s{S_T0+4}, 6")
        a(f"s_lshr_b32 s{S_T0+5}, s2, 2"); a(f"s_add_u32 s{S_T0+4}, s{S_T0+4}, s{S_T0+5}")
        a(f"s_lshl_b32 s{S_T0+4}, s{S_T0+4}, 4"); a(f"s_add_u32 s{S_T0+4}, s{S_T0+4}, {WS_YP}")
        a("v_lshlrev_b32 v10, 12, v0")
        a("v_add_u32 v11, 64, v0"); a("v_min_u32 v11, 111, v11"); a("v_lshlrev_b32 v11, 12, v11")
        a("s_sleep 64")
        a.label("L_W_ypoll")
        a(f"buffer_load_dwordx4 v[16:19], v10, {S(SRD_WS)}, s{S_T0+4} offen sc1")
        a(f"buffer_load_dwordx4 v[20:23], v11, {S(SRD_WS)}, s{S_T0+4} offen sc1")
        a("s_waitcnt vmcnt(0)")
        a(f"v_xor_b32 v30, s{S_TAG}, v17")
        for r in (19, 21, 23):
            a(f"v_xor_b32 v31, s{S_TAG}, v{r}"); a("v_or_b32 v30, v30, v31")
        a("v_cmp_ne_u32 vcc, 0, v30")
        a("s_cbranch_vccz L_W_ygot")
        self.spin_guard("L_W_ypoll", "L_W_ygot", sleep=16)
        a.label("L_W_ygot")
        a("v_cmp_gt_u32 vcc, 48, v0")
        a("v_cndmask_b32 v20, 0, v20, vcc"); a("v_cndmask_b32 v22, 0, v22, vcc")
        a("v_add_f32 v16, v16, v20"); a("v_add_f32 v18, v18, v22")
        allreduce64(a, 16, 30, "v_add_f32"); allreduce64(a, 18, 30, "v_add_f32")
        a("s_waitcnt lgkmcnt(0)")
        rnd(a, 16); rnd(a, 18)
        a("v_mul_f32 v16, v16, v9"); a("v_mul_f32 v18, v18, v9")
        rnd(a, 16); rnd(a, 18)
        a("v_add_f32 v16, v16, v13"); a("v_add_f32 v18, v18, v15")
        rnd(a, 16); rnd(a, 18)
        a("v_lshlrev_b32 v12, 16, v8"); a(f"v_and_b32 v14, s{S_HI}, v8")
        a(f"s_lshl_b32 s{S_T0+6}, s{S_G}, 3"); a(f"s_add_u32 s{S_T0+6}, s{S_T0+6}, s{RB}")
        a(f"s_lshl_b32 s{S_T0+6}, s{S_T0+6}, 12")
        a(f"s_lshl_b32 s{S_T0+7}, s{CB}, 10"); a(f"s_add_u32 s{S_T0+6}, s{S_T0+6}, s{S_T0+7}")
        a(f"s_add_u32 s{S_T0+6}, s{S_T0+6}, {WS_AP}")
        a("v_and_b32 v20, 15, v0"); a("v_lshlrev_b32 v20, 6, v20")
        a("v_lshrrev_b32 v21, 4, v0"); a("v_lshlrev_b32 v21, 4, v21"); a("v_add_u32 v20, v20, v21")
        a(f"s_lshl_b32 s{S_T0+7}, s2, 4"); a(f"s_add_u32 s{S_T0+7}, s{S_T0+7}, {WS_AP}")
        a("v_lshlrev_b32 v22, 2, v0")
        a("v_and_b32 v23, 3, v0"); a("v_lshlrev_b32 v23, 6, v23")
        a("v_lshrrev_b32 v24, 2, v0"); a("v_lshlrev_b32 v24, 2, v24"); a("v_add_u32 v23, v23, v24")
        a("v_lshrrev_b32 v24, 4, v0"); a("v_lshlrev_b32 v24, 6, v24")
        a(f"s_mov_b32 s{S_SPIN}, {SPIN_LIMIT}")
        self.stamp(1)
        a("s_barrier")
        a("s_barrier")
        self.stamp(2)
        for k in range(4):
            a(f"ds_read_b32 v{26+k}, v22 offset:{L_G+256*k}")
        a("s_waitcnt lgkmcnt(0)")
        a("v_add_f32 v26, v26, v27"); a("v_add_f32 v28, v28, v29"); a("v_add_f32 v26, v26, v28")
        a("v_cvt_pk_bf16_f32 v26, v26, v26")
        a(f"ds_write_b32 v23, v26 offset:{L_PP}")
        a("s_waitcnt lgkmcnt(0)")
        PPV = 128
        for k in range(4):
            a(f"ds_read_b128 {V4(PPV+4*k)}, v24 offset:{L_PP+16*k}")
        a("s_waitcnt lgkmcnt(0)")
        PB = 32; D0 = 56; D1 = 60
        for i0 in range(0, 16, 4):
            for r in range(4):
                a(f"v_and_b32 v{PB+4*r+2}, v{PPV+i0+r}, v5")
                a(f"v_and_b32 v{PB+4*r+3}, v{PPV+i0+r}, v7")
            for r in range(4):
                wb = WO + 4*(i0+r)
                a(f"v_mfma_f32_16x16x32_bf16 {V4(D0)}, {V4(PB+4*r+2)}, {V4(wb)}, {V4(D0)}")
                a(f"v_mfma_f32_16x16x32_bf16 {V4(D1)}, {V4(PB+4*r)}, {V4(wb)}, {V4(D1)}")
        m1 = f"s[{S_M1}:{S_M1+1}]"; m2 = f"s[{S_M2}:{S_M2+1}]"
        a(f"v_cndmask_b32 v26, v{D0}, v{D0+2}, {m1}")
        a(f"v_cndmask_b32 v27, v{D1}, v{D1+2}, {m1}")
        a(f"v_cndmask_b32 v28, v26, v27, {m2}")
        a(f"v_cndmask_b32 v26, v{D0+1}, v{D0+3}, {m1}")
        a(f"v_cndmask_b32 v27, v{D1+1}, v{D1+3}, {m1}")
        a(f"v_cndmask_b32 v30, v26, v27, {m2}")
        a(f"v_mov_b32 v29, s{S_TAG}"); a(f"v_mov_b32 v31, s{S_TAG}")
        a(f"buffer_store_dwordx4 v[28:31], v20, {S(SRD_WS)}, s{S_T0+6} offen sc1")
        self.stamp(3)
        a.label("L_W_apoll")
        a(f"buffer_load_dwordx4 v[24:27], v10, {S(SRD_WS)}, s{S_T0+7} offen sc1")
        a("s_waitcnt vmcnt(0)")
        a(f"v_xor_b32 v30, s{S_TAG}, v25")
        a(f"v_xor_b32 v31, s{S_TAG}, v27"); a("v_or_b32 v30, v30, v31")
        a("v_cmp_ne_u32 vcc, 0, v30")
        a("s_cbranch_vccz L_W_agot")
        self.spin_guard("L_W_apoll", "L_W_agot")
        a.label("L_W_agot")
        self.stamp(4)
        allreduce64(a, 24, 30, "v_add_f32"); allreduce64(a, 26, 30, "v_add_f32")
        rnd(a, 24); rnd(a, 26)
        a("v_add_f32 v24, v24, v12"); a("v_add_f32 v26, v26, v14")
        rnd(a, 24); rnd(a, 26)
        a("v_add_f32 v24, v24, v16"); a("v_add_f32 v26, v26, v18")
        a("v_cvt_pk_bf16_f32 v24, v24, v26")
        a("s_mov_b64 exec, 1")
        a(f"buffer_store_dword v24, v2, {S(SRD_C)}, 0 offen")
        a("s_cmp_lg_u32 s2, 0")
        a("s_cbranch_scc1 L_W_noep")
        a(f"v_mov_b32 v25, s{S_TAG}"); a("v_mov_b32 v26, 0")
        a(f"buffer_store_dword v25, v26, {S(SRD_WS)}, 0 offen sc1")
        a.label("L_W_noep")
        a("s_mov_b64 exec, -1")
        self.stamp(5)
        self.dump_stamps(6, 3)
        self.hdump([(0, 0, "min"), (5, 1, "max"), (1, 10, "max"), (3, 11, "max"), (4, 12, "max"), (0, 13, "max")])
        a("s_waitcnt vmcnt(0)")

    def build(self):
        self.prologue()
        self.swave()
        self.qwave()
        self.mwave()
        self.wwave()
        self.a.label("L_end")
        self.a("s_endpgm")
        body = self.a.text()
        stub = open("parallel_sum__gqa_block_cached__moe_arch_mod__decode.s.ref").read()
        head = stub[:stub.index("; @launch")]
        txt = head + f"; @launch grid=(256,1,1) block=(448,1,1) lds={LDS_BYTES}\n"
        txt += f""".amdgcn_target "amdgcn-amd-amdhsa--gfx950"
.text
.globl {KNAME}
.p2align 8
.type {KNAME},@function
{KNAME}:
{body}
.section .rodata,"a"
.p2align 6
.amdhsa_kernel {KNAME}
  .amdhsa_next_free_vgpr 256
  .amdhsa_next_free_sgpr 102
  .amdhsa_accum_offset 256
  .amdhsa_group_segment_fixed_size 0
  .amdhsa_kernarg_size 104
  .amdhsa_user_sgpr_count 2
  .amdhsa_user_sgpr_kernarg_segment_ptr 1
  .amdhsa_system_sgpr_workgroup_id_x 1
.end_amdhsa_kernel
"""
        return txt

if __name__ == "__main__":
    import argparse
    p = argparse.ArgumentParser()
    p.add_argument("--dbg", action="store_true")
    p.add_argument("--early", type=int, default=3)
    p.add_argument("--qdelay", type=int, default=0)
    p.add_argument("--wflag", default="nt")
    p.add_argument("--noa0", action="store_true")
    p.add_argument("--pace", type=int, default=0)
    p.add_argument("--paceto", type=int, default=48)
    p.add_argument("--mprio", type=int, default=0)
    p.add_argument("--hdbg", action="store_true")
    p.add_argument("-o", default="parallel_sum__gqa_block_cached__moe_arch_mod__decode.s")
    args = p.parse_args()
    g = Gen(dbg=args.dbg, early=args.early, qdelay=args.qdelay, wflag=args.wflag, a0=not args.noa0, pace=args.pace, mprio=args.mprio, paceto=args.paceto, hdbg=args.hdbg)
    t = g.build()
    open(args.o, "w").write(t)
    print("wrote", args.o, len(t), "bytes")
```

```python
import sys
from asmlib import Asm

KNAME = "parallel_sum__gqa_block_cached__moe_arch_mod__decode_kernel"
WS_QG = 0x1000
WS_ST = 0x8000
WS_AP = 0x10000
WS_YP = 0x80000
WS_OP = 0x100000
WS_DBG = 0x200000
WS_SIZE = 0x300000
L_T = 0; L_Q = 4096; L_O = 5120; L_ST = 13312; L_G = 13568; L_PP = 14592; L_RS = 14848
LDS_BYTES = 15360
SPIN_LIMIT = 40000

S_X, S_K, S_V, S_WQ, S_WO, S_WR, S_WG, S_WU, S_WD, S_OUT, S_WS = 8, 10, 12, 14, 16, 20, 22, 24, 26, 28, 32
S_G, S_SP, S_WAVE, S_TAG = 34, 35, 36, 37
SRD_WS = 40
SRD_A = 44
SRD_B = 48
SRD_C = 52
S_OFF = 56
S_SPIN = 57
S_HI = 58
S_LOG2E = 59
S_SCALE = 60
S_M1 = 62
S_M2 = 64
S_T0 = 66
S_TS = 80

def srd(a, d, base, off_sgpr=None, off_imm=0, size=0):
    if off_sgpr is not None:
        a(f"s_add_u32 s{d}, s{base}, s{off_sgpr}")
        a(f"s_addc_u32 s{d+1}, s{base+1}, 0")
    else:
        a(f"s_mov_b32 s{d}, s{base}")
        a(f"s_mov_b32 s{d+1}, s{base+1}")
    a(f"s_mov_b32 s{d+2}, {size:#x}")
    a(f"s_mov_b32 s{d+3}, 0x00020000")

def S(d): return f"s[{d}:{d+3}]"
def V4(r): return f"v[{r}:{r+3}]"
def V2(r): return f"v[{r}:{r+1}]"

def allreduce64(a, v, t, op):
    a(f"{op}_dpp v{v}, v{v}, v{v} quad_perm:[1,0,3,2] row_mask:0xf bank_mask:0xf")
    a(f"{op}_dpp v{v}, v{v}, v{v} quad_perm:[2,3,0,1] row_mask:0xf bank_mask:0xf")
    a(f"{op}_dpp v{v}, v{v}, v{v} row_half_mirror row_mask:0xf bank_mask:0xf")
    a(f"{op}_dpp v{v}, v{v}, v{v} row_mirror row_mask:0xf bank_mask:0xf")
    rows_reduce(a, v, t, op)

def rows_reduce(a, v, t, op):
    a(f"v_mov_b32 v{t}, v{v}")
    a(f"v_permlane16_swap_b32 v{v}, v{t}")
    a(f"{op} v{v}, v{v}, v{t}")
    a(f"v_mov_b32 v{t}, v{v}")
    a(f"v_permlane32_swap_b32 v{v}, v{t}")
    a(f"{op} v{v}, v{v}, v{t}")

def rnd(a, v):
    a(f"v_cvt_pk_bf16_f32 v{v}, v{v}, v{v}")
    a(f"v_and_b32 v{v}, s{S_HI}, v{v}")

class Gen:
    def __init__(self, dbg=False, early=3, qdelay=0, wflag="nt", a0=True, pace=0, mprio=0, paceto=48, hdbg=False):
        self.hdbg = hdbg
        if hdbg: dbg = False
        self.dbg = dbg; self.early = early; self.qdelay = qdelay; self.wflag = wflag; self.a0 = a0
        self.pace = pace; self.mprio = mprio; self.paceto = paceto; self.nissued = None
        self.a = Asm()

    def hdump(self, items, nsleep=5):
        if not self.hdbg: return
        a = self.a
        a("s_waitcnt lgkmcnt(0) vmcnt(0)")
        a("s_setprio 0")
        for _ in range(nsleep): a("s_sleep 127")
        srd(a, SRD_C, 30, size=256)
        a("s_mov_b64 exec, 1")
        for (st, w, mode) in items:
            if mode == "min":
                a(f"s_not_b32 s{S_T0}, s{S_TS+2*st}")
                a(f"v_mov_b32 v2, s{S_T0}")
            else:
                a(f"v_mov_b32 v2, s{S_TS+2*st}")
            a(f"v_mov_b32 v3, {4*w}")
            a(f"buffer_atomic_umax v2, v3, {S(SRD_C)}, 0 offen sc1")
            a("s_waitcnt vmcnt(0)")
        a("s_mov_b64 exec, -1")

    def stamp(self, idx):
        if self.dbg or self.hdbg:
            self.a(f"s_memrealtime s[{S_TS+2*idx}:{S_TS+2*idx+1}]")

    def dump_stamps(self, n, slot, vt=2):
        if not self.dbg: return
        a = self.a
        a("s_waitcnt lgkmcnt(0) vmcnt(0)")
        a(f"s_lshl_b32 s{S_T0}, s2, 10")
        a(f"s_lshl_b32 s{S_T0+1}, s{S_WAVE}, 7")
        a(f"s_add_u32 s{S_T0}, s{S_T0}, s{S_T0+1}")
        a(f"s_add_u32 s{S_T0}, s{S_T0}, {WS_DBG}")
        a("s_mov_b64 exec, 1")
        a(f"v_mov_b32 v{vt+2}, s{S_T0}")
        for i in range(n):
            a(f"v_mov_b32 v{vt}, s{S_TS+2*i}")
            a(f"v_mov_b32 v{vt+1}, s{S_TS+2*i+1}")
            a(f"buffer_store_dwordx2 {V2(vt)}, v{vt+2}, {S(SRD_WS)}, 0 offen offset:{8*i}")
            a("s_waitcnt vmcnt(0)")
        a("s_mov_b64 exec, -1")

    def spin_guard(self, lab_retry, lab_done, sleep=1):
        a = self.a
        a(f"s_sub_u32 s{S_SPIN}, s{S_SPIN}, 1")
        a(f"s_cmp_eq_u32 s{S_SPIN}, 0")
        a(f"s_cbranch_scc1 {lab_done}")
        if sleep: a(f"s_sleep {sleep}")
        a(f"s_branch {lab_retry}")

    def prologue(self):
        a = self.a
        a("s_cmp_ge_u32 s2, 256")
        a("s_cbranch_scc1 L_end")
        self.stamp(0)
        a("s_load_dwordx16 s[8:23], s[0:1], 0")
        a("s_load_dwordx8 s[24:31], s[0:1], 64")
        a(f"s_load_dwordx2 s[{S_WS}:{S_WS+1}], s[0:1], 96")
        a("v_lshrrev_b32 v1, 6, v0")
        a("v_and_b32 v0, 63, v0")
        a(f"s_and_b32 s{S_G}, s2, 7")
        a(f"s_lshr_b32 s{S_SP}, s2, 3")
        a(f"v_readfirstlane_b32 s{S_WAVE}, v1")
        a(f"s_mov_b32 s{S_HI}, 0xffff0000")
        a(f"s_mov_b32 s{S_LOG2E}, 0x3fb8aa3b")
        a(f"s_mov_b32 s{S_SPIN}, {SPIN_LIMIT}")
        a("s_waitcnt lgkmcnt(0)")
        a(f"s_load_dword s{S_TAG}, s[{S_WS}:{S_WS+1}], 0")
        srd(a, SRD_WS, S_WS, size=WS_SIZE)
        a(f"s_cmp_lt_u32 s{S_WAVE}, 4")
        a("s_cbranch_scc1 L_S")
        a(f"s_cmp_eq_u32 s{S_WAVE}, 4")
        a("s_cbranch_scc1 L_Q")
        a(f"s_cmp_eq_u32 s{S_WAVE}, 5")
        a("s_cbranch_scc1 L_M")
        a("s_branch L_W")

    def get_tag(self):
        a = self.a
        a("s_waitcnt lgkmcnt(0)")
        a(f"s_add_u32 s{S_TAG}, s{S_TAG}, 1")

    RING = 64
    def pace_wait(self):
        if self.nissued is None: return
        if self.pace and self.pace <= self.nissued < self.paceto:
            self.a(f"s_waitcnt vmcnt({self.pace-1})")
        self.nissued += 1
    def issueK(self, slot):
        a = self.a; b = self.RING + 64*slot
        for t in range(2):
            for c in range(4):
                r = b + 16*t + 4*c
                self.pace_wait()
                a(f"buffer_load_dwordx4 {V4(r)}, v{1+t}, {S(SRD_A)}, s{S_OFF} offen offset:{64*c} nt")
    def issueV(self, slot):
        a = self.a; b = self.RING + 64*slot + 32
        for r8 in range(8):
            r = b + 4*r8
            self.pace_wait()
            a(f"buffer_load_dwordx4 {V4(r)}, v{3+(r8>>2)}, {S(SRD_B)}, s{S_OFF} offen offset:{1024*(r8&3)} nt")
        a(f"s_add_u32 s{S_OFF}, s{S_OFF}, 32768")

    def group(self, slot, kwait, vwait, reissue):
        a = self.a
        b = self.RING + 64*slot
        SC = 32; PB = 10; D0 = 40; D1 = 44; Q = 48
        vM, vMC, vL, vMX, vMY = 6, 8, 9, 5, 7
        a(f"s_waitcnt vmcnt({kwait})")
        for c in range(4):
            for t in range(2):
                cc = "0" if c == 0 else V4(SC+4*t)
                a(f"v_mfma_f32_16x16x32_bf16 {V4(SC+4*t)}, {V4(b+16*t+4*c)}, {V4(Q+4*c)}, {cc}")
        if reissue: self.issueK(slot)
        for k in range(4):
            s0 = SC+2*k; t = 28+k
            a(f"v_cvt_pk_bf16_f32 v{t}, v{s0}, v{s0+1}")
        for k in range(4):
            s0 = SC+2*k; t = 28+k
            a(f"v_lshlrev_b32 v{s0}, 16, v{t}")
            a(f"v_and_b32 v{s0+1}, s{S_HI}, v{t}")
        for k in range(4):
            s0 = SC+2*k
            a(f"v_pk_mul_f32 {V2(s0)}, {V2(s0)}, s[{S_SCALE}:{S_SCALE+1}]")
        for k in range(4):
            s0 = SC+2*k; t = 28+k
            a(f"v_cvt_pk_bf16_f32 v{t}, v{s0}, v{s0+1}")
        for k in range(4):
            s0 = SC+2*k; t = 28+k
            a(f"v_lshlrev_b32 v{s0}, 16, v{t}")
            a(f"v_and_b32 v{s0+1}, s{S_HI}, v{t}")
        a(f"v_max3_f32 v28, v{SC}, v{SC+1}, v{SC+2}")
        a(f"v_max3_f32 v29, v{SC+3}, v{SC+4}, v{SC+5}")
        a(f"v_max3_f32 v28, v28, v{SC+6}, v{SC+7}")
        a(f"v_max_f32 v28, v28, v29")
        a(f"v_cmp_gt_f32 vcc, v28, v{vM}")
        skip = a.uniq("L_skip")
        a(f"s_cbranch_vccz {skip}")
        rows_reduce(a, 28, 29, "v_max_f32")
        a(f"v_max_f32 v28, v28, v{vM}")
        a(f"v_mul_f32 v29, s{S_LOG2E}, v28")
        a(f"v_sub_f32 v30, v{vMC}, v29")
        a(f"v_exp_f32 v30, v30")
        a(f"v_mov_b32 v{vM}, v28")
        a(f"v_mov_b32 v{vMC}, v29")
        a(f"v_mul_f32 v{vL}, v{vL}, v30")
        for h in range(4):
            a(f"v_mov_b32_dpp v31, v30 row_newbcast:{4*h} row_mask:{1<<h:#x} bank_mask:0xf")
        for k in range(8):
            a(f"v_mul_f32 v{D0+k}, v{D0+k}, v31")
        a.label(skip)
        for k in range(8):
            a(f"v_fma_f32 v{SC+k}, v{SC+k}, s{S_LOG2E}, -v{vMC}")
        for k in range(8):
            a(f"v_exp_f32 v{SC+k}, v{SC+k}")
        for t in range(2):
            for r in range(4):
                a(f"v_cvt_pk_bf16_f32 v{28+r}, v{SC+4*t+r}, v{SC+4*t+r}")
            for r in range(4):
                a(f"v_and_b32 v{PB+4*r+2}, v{28+r}, v{vMX}")
                a(f"v_and_b32 v{PB+4*r+3}, v{28+r}, v{vMY}")
            if t == 0:
                a(f"s_waitcnt vmcnt({vwait})")
            for r in range(4):
                vb = b + 32 + 4*(4*t+r)
                a(f"v_mfma_f32_16x16x32_bf16 {V4(D0)}, {V4(PB+4*r+2)}, {V4(vb)}, {V4(D0)}")
                a(f"v_mfma_f32_16x16x32_bf16 {V4(D1)}, {V4(PB+4*r)}, {V4(vb)}, {V4(D1)}")
        if reissue: self.issueV(slot)
        a(f"v_pk_add_f32 v[28:29], {V2(SC)}, {V2(SC+2)}")
        a(f"v_pk_add_f32 v[30:31], {V2(SC+4)}, {V2(SC+6)}")
        a(f"v_pk_add_f32 v[28:29], v[28:29], v[30:31]")
        a(f"v_add_f32 v28, v28, v29")
        a(f"v_add_f32 v{vL}, v{vL}, v28")

    def masksXY(self, vX, vY, t):
        a = self.a
        a(f"v_and_b32 v{t}, 3, v0")
        a(f"v_mov_b32 v{vX}, 0"); a(f"v_mov_b32 v{vY}, 0")
        a(f"v_mov_b32 v{t+1}, 0xffff")
        a(f"v_mov_b32 v{t+2}, s{S_HI}")
        a(f"v_cmp_eq_u32 vcc, 0, v{t}"); a(f"v_cndmask_b32 v{vX}, v{vX}, v{t+1}, vcc")
        a(f"v_cmp_eq_u32 vcc, 1, v{t}"); a(f"v_cndmask_b32 v{vX}, v{vX}, v{t+2}, vcc")
        a(f"v_cmp_eq_u32 vcc, 2, v{t}"); a(f"v_cndmask_b32 v{vY}, v{vY}, v{t+1}, vcc")
        a(f"v_cmp_eq_u32 vcc, 3, v{t}"); a(f"v_cndmask_b32 v{vY}, v{vY}, v{t+2}, vcc")

    def swave(self):
        a = self.a
        a.label("L_S")
        a(f"s_lshl_b32 s{S_T0}, s{S_G}, 24")
        a(f"s_lshl_b32 s{S_T0+1}, s{S_SP}, 19")
        a(f"s_add_u32 s{S_T0}, s{S_T0}, s{S_T0+1}")
        srd(a, SRD_A, S_K, S_T0, size=0x80000)
        srd(a, SRD_B, S_V, S_T0, size=0x80000)
        a("v_and_b32 v1, 3, v0"); a("v_lshlrev_b32 v1, 10, v1")
        a("v_bfe_u32 v2, v0, 2, 2"); a("v_lshlrev_b32 v2, 8, v2"); a("v_add_u32 v1, v1, v2")
        a("v_lshrrev_b32 v2, 4, v0"); a("v_lshlrev_b32 v2, 4, v2"); a("v_add_u32 v1, v1, v2")
        a("v_add_u32 v2, 0x1000, v1")
        a("v_lshlrev_b32 v3, 4, v0"); a("v_add_u32 v4, 0x1000, v3")
        a(f"s_lshl_b32 s{S_OFF}, s{S_WAVE}, 13")
        if self.a0: a("s_barrier")
        self.stamp(1)
        self.nissued = 0
        for slot in range(3):
            if slot == self.early: a("s_barrier")
            self.issueK(slot); self.issueV(slot)
        self.nissued = None
        if self.early >= 3: a("s_barrier")
        self.masksXY(5, 7, 28)
        for k in range(5):
            a(f"v_mov_b32 v{10+4*k}, 0"); a(f"v_mov_b32 v{11+4*k}, 0")
        for k in range(8): a(f"v_mov_b32 v{40+k}, 0")
        a("v_mov_b32 v6, 0xff800000"); a("v_mov_b32 v8, 0xff800000"); a("v_mov_b32 v9, 0")
        a(f"s_mov_b32 s{S_SCALE}, 0x3db504f3"); a(f"s_mov_b32 s{S_SCALE+1}, 0x3db504f3")
        a("v_bfe_u32 v28, v0, 2, 2"); a("v_lshlrev_b32 v28, 8, v28")
        a("v_lshrrev_b32 v29, 4, v0"); a("v_lshlrev_b32 v29, 4, v29"); a("v_add_u32 v28, v28, v29")
        self.stamp(2)
        a("s_barrier")
        self.stamp(3)
        for c in range(4):
            a(f"ds_read_b128 {V4(48+4*c)}, v28 offset:{L_Q+64*c}")
        a("s_waitcnt lgkmcnt(0)")
        a(f"s_mov_b32 s{S_T0}, 4")
        a.label("L_S_loop")
        for slot in range(3):
            self.group(slot, 40, 40, True)
        a(f"s_sub_u32 s{S_T0}, s{S_T0}, 1")
        a(f"s_cmp_lg_u32 s{S_T0}, 0")
        a("s_cbranch_scc1 L_S_loop")
        self.group(0, 40, 40, True)
        self.group(1, 40, 32, False)
        self.group(2, 24, 16, False)
        self.group(0, 8, 0, False)
        self.stamp(4)
        rows_reduce(a, 9, 28, "v_add_f32")
        a("v_lshlrev_b32 v28, 5, v0")
        a(f"s_lshl_b32 s{S_T0}, s{S_WAVE}, 11")
        a(f"v_add_u32 v28, s{S_T0}, v28")
        a(f"ds_write_b128 v28, {V4(40)} offset:{L_O}")
        a(f"ds_write_b128 v28, {V4(44)} offset:{L_O+16}")
        a("v_lshlrev_b32 v29, 3, v0")
        a(f"s_lshl_b32 s{S_T0}, s{S_WAVE}, 3")
        a(f"v_add_u32 v29, s{S_T0}, v29")
        a("s_mov_b64 exec, 0x1111")
        a(f"ds_write_b64 v29, v[8:9] offset:{L_ST}")
        a("s_mov_b64 exec, -1")
        self.get_tag()
        a("s_barrier")
        self.stamp(5)
        a(f"s_lshl_b32 s{S_T0}, s{S_WAVE}, 5")
        a(f"v_mov_b32 v28, s{S_T0}")
        a(f"ds_read_b128 v[64:67], v28 offset:{L_ST}")
        a(f"ds_read_b128 v[68:71], v28 offset:{L_ST+16}")
        a(f"s_lshl_b32 s{S_T0}, s{S_WAVE}, 9")
        a("v_lshlrev_b32 v29, 3, v0")
        a(f"v_add_u32 v29, s{S_T0}, v29")
        for k in range(4):
            a(f"ds_read_b64 {V2(72+2*k)}, v29 offset:{L_O+2048*k}")
        a("s_waitcnt lgkmcnt(4)")
        a("v_max3_f32 v30, v64, v66, v68")
        a("v_max_f32 v30, v30, v70")
        for k in range(4):
            a(f"v_sub_f32 v{64+2*k}, v{64+2*k}, v30")
        for k in range(4):
            a(f"v_exp_f32 v{64+2*k}, v{64+2*k}")
        a("v_mul_f32 v82, v64, v65")
        a("v_fma_f32 v82, v66, v67, v82")
        a("v_fma_f32 v82, v68, v69, v82")
        a("v_fma_f32 v82, v70, v71, v82")
        a("s_waitcnt lgkmcnt(0)")
        a("v_mul_f32 v84, v64, v72"); a("v_mul_f32 v86, v64, v73")
        for k in range(1, 4):
            a(f"v_fma_f32 v84, v{64+2*k}, v{72+2*k}, v84")
            a(f"v_fma_f32 v86, v{64+2*k}, v{73+2*k}, v86")
        a(f"v_mov_b32 v85, s{S_TAG}"); a(f"v_mov_b32 v87, s{S_TAG}")
        a("v_mov_b32 v80, v30"); a(f"v_mov_b32 v81, s{S_TAG}"); a(f"v_mov_b32 v83, s{S_TAG}")
        a(f"s_lshl_b32 s{S_T0}, s{S_G}, 5"); a(f"s_add_u32 s{S_T0}, s{S_T0}, s{S_SP}")
        a(f"s_lshl_b32 s{S_T0}, s{S_T0}, 12")
        a(f"s_lshl_b32 s{S_T0+1}, s{S_WAVE}, 10")
        a(f"s_add_u32 s{S_T0}, s{S_T0}, s{S_T0+1}")
        a(f"s_add_u32 s{S_T0}, s{S_T0}, {WS_OP}")
        a("v_lshlrev_b32 v28, 4, v0")
        a(f"buffer_store_dwordx4 v[84:87], v28, {S(SRD_WS)}, s{S_T0} offen sc1")
        a(f"s_lshl_b32 s{S_T0+1}, s{S_G}, 2"); a(f"s_add_u32 s{S_T0+1}, s{S_T0+1}, s{S_WAVE}")
        a(f"s_lshl_b32 s{S_T0+1}, s{S_T0+1}, 5"); a(f"s_add_u32 s{S_T0+1}, s{S_T0+1}, s{S_SP}")
        a(f"s_lshl_b32 s{S_T0+1}, s{S_T0+1}, 4"); a(f"s_add_u32 s{S_T0+1}, s{S_T0+1}, {WS_ST}")
        a("v_mov_b32 v29, 0")
        a("s_mov_b64 exec, 1")
        a(f"buffer_store_dwordx4 v[80:83], v29, {S(SRD_WS)}, s{S_T0+1} offen sc1")
        a("s_mov_b64 exec, -1")
        self.stamp(6)
        a(f"s_lshr_b32 s{S_T0+2}, s{S_SP}, 3")
        a(f"s_bfe_u32 s{S_T0+3}, s{S_SP}, 0x10002")
        a(f"s_lshl_b32 s{S_T0}, s{S_G}, 5"); a(f"s_lshl_b32 s{S_T0+1}, s{S_WAVE}, 3")
        a(f"s_add_u32 s{S_T0}, s{S_T0}, s{S_T0+1}"); a(f"s_lshl_b32 s{S_T0}, s{S_T0}, 12")
        a(f"s_lshl_b32 s{S_T0+1}, s{S_T0+2}, 10"); a(f"s_add_u32 s{S_T0}, s{S_T0}, s{S_T0+1}")
        a(f"s_lshl_b32 s{S_T0+1}, s{S_T0+3}, 9"); a(f"s_add_u32 s{S_T0}, s{S_T0}, s{S_T0+1}")
        a(f"s_add_u32 s{S_T0+4}, s{S_T0}, {WS_OP}")
        for u in range(1, 4):
            a(f"s_add_u32 s{S_T0+4+u}, s{S_T0+4}, {8192*u}")
        a("v_lshrrev_b32 v28, 5, v0"); a("v_lshlrev_b32 v28, 12, v28")
        a("v_and_b32 v29, 31, v0"); a("v_lshlrev_b32 v29, 4, v29"); a("v_add_u32 v28, v28, v29")
        a(f"s_lshl_b32 s{S_T0+8}, s{S_G}, 2"); a(f"s_add_u32 s{S_T0+8}, s{S_T0+8}, s{S_T0+2}")
        a(f"s_lshl_b32 s{S_T0+8}, s{S_T0+8}, 9"); a(f"s_add_u32 s{S_T0+8}, s{S_T0+8}, {WS_ST}")
        a.label("L_S_poll")
        for u in range(4):
            a(f"buffer_load_dwordx4 {V4(64+4*u)}, v28, {S(SRD_WS)}, s{S_T0+4+u} offen sc1")
        a(f"buffer_load_dwordx4 v[80:83], v29, {S(SRD_WS)}, s{S_T0+8} offen sc1")
        a("s_waitcnt vmcnt(0)")
        a(f"v_xor_b32 v30, s{S_TAG}, v65")
        for r in [67, 69, 71, 73, 75, 77, 79, 81, 83]:
            a(f"v_xor_b32 v31, s{S_TAG}, v{r}")
            a("v_or_b32 v30, v30, v31")
        a("v_cmp_ne_u32 vcc, 0, v30")
        a("s_cbranch_vccz L_S_got")
        self.spin_guard("L_S_poll", "L_S_got")
        a.label("L_S_got")
        self.stamp(7)
        a("v_mov_b32 v30, v80")
        allreduce64(a, 30, 31, "v_max_f32")
        a("v_sub_f32 v80, v80, v30")
        a("v_exp_f32 v80, v80")
        a("v_mul_f32 v82, v80, v82")
        allreduce64(a, 82, 31, "v_add_f32")
        a("v_rcp_f32 v82, v82")
        a("v_add_f32 v80, v80, v80")
        a("v_mul_f32 v80, v80, v82")
        a("v_lshrrev_b32 v30, 5, v0")
        a(f"s_lshl_b32 s{S_T0}, s{S_WAVE}, 3")
        a(f"v_add_u32 v30, s{S_T0}, v30")
        a("v_lshlrev_b32 v30, 2, v30")
        for u in range(4):
            if u: a("v_add_u32 v30, 8, v30")
            a(f"ds_bpermute_b32 v{84+u}, v30, v80")
        a("s_waitcnt lgkmcnt(0)")
        a("v_mul_f32 v88, v84, v64"); a("v_mul_f32 v89, v84, v66")
        for u in range(1, 4):
            a(f"v_fma_f32 v88, v{84+u}, v{64+4*u}, v88")
            a(f"v_fma_f32 v89, v{84+u}, v{66+4*u}, v89")
        a("v_mov_b32 v90, v88"); a("v_mov_b32 v91, v89")
        a("v_permlane32_swap_b32 v88, v90"); a("v_permlane32_swap_b32 v89, v91")
        a("v_add_f32 v88, v88, v90"); a("v_add_f32 v89, v89, v91")
        a("v_and_b32 v30, 31, v0"); a("v_lshlrev_b32 v30, 3, v30")
        a(f"s_lshl_b32 s{S_T0}, s{S_WAVE}, 8")
        a(f"v_add_u32 v30, s{S_T0}, v30")
        a(f"ds_write_b64 v30, v[88:89] offset:{L_G}")
        a("s_waitcnt lgkmcnt(0)")
        a("s_barrier")
        self.stamp(8)
        if self.dbg:
            a(f"s_getreg_b32 s{S_TS+18}, hwreg(HW_REG_XCC_ID)"); a(f"s_mov_b32 s{S_TS+19}, 0")
            self.dump_stamps(10, 0)
        self.hdump([(3, 2, "max"), (4, 3, "max"), (4, 4, "min"), (5, 5, "max"), (7, 6, "max"), (2, 15, "max")])
        a("s_branch L_end")

    def gemv16_loads(self, srd_, reg, rowstride):
        a = self.a
        a(f"s_mov_b32 s{S_OFF}, 0")
        for i in range(16):
            a(f"buffer_load_dwordx4 {V4(reg+4*i)}, v1, {S(srd_)}, s{S_OFF} offen {self.wflag}")
            if i < 15: a(f"s_add_u32 s{S_OFF}, s{S_OFF}, {32*rowstride}")

    def gemv16_compute(self, reg, tb, acc, wait_first, outA, outB):
        a = self.a
        for k in range(8): a(f"v_mov_b32 v{acc+k}, 0")
        for i in range(16):
            if wait_first is not None:
                a(f"s_waitcnt vmcnt({wait_first + 15 - i})")
            for k in range(4):
                a(f"v_dot2c_f32_bf16 v{acc+2*k}, v{reg+4*i+k}, v{tb+2*i}")
                a(f"v_dot2c_f32_bf16 v{acc+2*k+1}, v{reg+4*i+k}, v{tb+2*i+1}")
        for k in range(4):
            a(f"v_permlane32_swap_b32 v{acc+k}, v{acc+4+k}")
        for k in range(4):
            a(f"v_add_f32 v{acc+k}, v{acc+k}, v{acc+4+k}")
        a(f"v_permlane16_swap_b32 v{acc}, v{acc+2}")
        a(f"v_permlane16_swap_b32 v{acc+1}, v{acc+3}")
        a(f"v_add_f32 v{outA}, v{acc}, v{acc+2}")
        a(f"v_add_f32 v{outB}, v{acc+1}, v{acc+3}")
        for rr in (2, 4, 8):
            a(f"v_add_f32_dpp v{outA}, v{outA}, v{outA} row_ror:{rr} row_mask:0xf bank_mask:0xf")
            a(f"v_add_f32_dpp v{outB}, v{outB}, v{outB} row_ror:{rr} row_mask:0xf bank_mask:0xf")

    def read_T(self, tb):
        a = self.a
        a("v_lshrrev_b32 v2, 1, v0"); a("v_lshlrev_b32 v2, 3, v2")
        for i in range(16):
            a(f"ds_read_b64 {V2(tb+2*i)}, v2 offset:{L_T+256*i}")

    def qwave(self):
        a = self.a
        a.label("L_Q")
        a("s_setprio 3")
        srd(a, SRD_A, S_X, size=1024)
        srd(a, SRD_B, S_WR, size=1024)
        a(f"s_lshl_b32 s{S_T0}, s{S_G}, 10"); a(f"s_lshl_b32 s{S_T0+1}, s{S_SP}, 5")
        a(f"s_add_u32 s{S_T0}, s{S_T0}, s{S_T0+1}")
        a(f"s_add_u32 s{SRD_C}, s{S_WQ}, s{S_T0}"); a(f"s_addc_u32 s{SRD_C+1}, s{S_WQ+1}, 0")
        a(f"s_sub_u32 s{SRD_C+2}, {512*8192}, s{S_T0}"); a(f"s_mov_b32 s{SRD_C+3}, 0x00020000")
        a("v_lshlrev_b32 v3, 4, v0")
        a(f"buffer_load_dwordx4 v[4:7], v3, {S(SRD_A)}, 0 offen")
        a(f"buffer_load_dwordx4 v[8:11], v3, {S(SRD_B)}, 0 offen")
        a("v_lshrrev_b32 v1, 1, v0"); a("v_lshlrev_b32 v1, 13, v1")
        a("v_and_b32 v2, 1, v0"); a("v_lshlrev_b32 v2, 4, v2"); a("v_add_u32 v1, v1, v2")
        self.gemv16_loads(SRD_C, 64, 8192)
        if self.a0: a("s_barrier")
        a("s_waitcnt vmcnt(17)")
        for k in range(4):
            a(f"v_lshlrev_b32 v{16+2*k}, 16, v{4+k}")
            a(f"v_and_b32 v{17+2*k}, s{S_HI}, v{4+k}")
        a("v_pk_add_f32 v[24:25], v[16:17], v[18:19]")
        a("v_pk_add_f32 v[26:27], v[20:21], v[22:23]")
        a("v_pk_add_f32 v[24:25], v[24:25], v[26:27]")
        a("v_add_f32 v24, v24, v25")
        allreduce64(a, 24, 25, "v_add_f32")
        a("v_mul_f32 v24, 0x3b000000, v24")
        for k in range(8): a(f"v_sub_f32 v{28+k}, v{16+k}, v24")
        a("v_mul_f32 v26, v28, v28")
        for k in range(1, 8): a(f"v_fma_f32 v26, v{28+k}, v{28+k}, v26")
        allreduce64(a, 26, 25, "v_add_f32")
        a("v_mul_f32 v26, 0x3b000000, v26")
        rnd(a, 24); rnd(a, 26)
        a("v_add_f32 v26, 0x3727c5ac, v26"); rnd(a, 26)
        a("v_sqrt_f32 v26, v26"); rnd(a, 26)
        a("v_rcp_f32 v26, v26")
        for k in range(8): a(f"v_sub_f32 v{16+k}, v{16+k}, v24")
        for k in range(4): a(f"v_cvt_pk_bf16_f32 v{28+k}, v{16+2*k}, v{17+2*k}")
        for k in range(4):
            a(f"v_lshlrev_b32 v{16+2*k}, 16, v{28+k}")
            a(f"v_and_b32 v{17+2*k}, s{S_HI}, v{28+k}")
        for k in range(8): a(f"v_mul_f32 v{16+k}, v{16+k}, v26")
        for k in range(4): a(f"v_cvt_pk_bf16_f32 v{12+k}, v{16+2*k}, v{17+2*k}")
        a("v_lshlrev_b32 v2, 6, v0")
        for k in range(4):
            a(f"v_and_b32 v28, 0xffff, v{12+k}")
            a(f"v_lshlrev_b32 v29, 16, v{12+k}")
            a(f"v_lshrrev_b32 v30, 16, v{12+k}")
            a(f"v_and_b32 v31, s{S_HI}, v{12+k}")
            a(f"ds_write_b128 v2, v[28:31] offset:{L_T+16*k}")
            if k < 3:
                a("s_nop 1")
        a("s_waitcnt lgkmcnt(0)")
        self.read_T(128)
        a("s_waitcnt lgkmcnt(0)")
        self.stamp(1)
        self.gemv16_compute(64, 128, 16, 0, 24, 25)
        self.get_tag()
        a("v_cvt_pk_bf16_f32 v26, v24, v25")
        a(f"v_mov_b32 v27, s{S_TAG}")
        a("v_and_b32 v2, 1, v0"); a("v_lshlrev_b32 v2, 5, v2")
        a("v_lshrrev_b32 v3, 4, v0"); a("v_lshlrev_b32 v3, 3, v3"); a("v_add_u32 v2, v2, v3")
        a(f"s_lshl_b32 s{S_T0}, s{S_G}, 11"); a(f"s_add_u32 s{S_T0}, s{S_T0}, {WS_QG}")
        a(f"s_lshl_b32 s{S_T0+1}, s{S_SP}, 6"); a(f"s_add_u32 s{S_T0+1}, s{S_T0+1}, s{S_T0}")
        a("s_mov_b32 exec_lo, 0x00030003"); a("s_mov_b32 exec_hi, 0x00030003")
        a(f"buffer_store_dwordx2 v[26:27], v2, {S(SRD_WS)}, s{S_T0+1} offen sc1")
        a("s_mov_b64 exec, -1")
        self.stamp(2)
        a("v_mov_b32 v28, 0")
        for k in range(4): a(f"v_dot2c_f32_bf16 v28, v{12+k}, v{8+k}")
        allreduce64(a, 28, 29, "v_add_f32")
        rnd(a, 28)
        a(f"v_mul_f32 v28, s{S_LOG2E}, v28")
        a("v_sub_f32 v28, 0, v28")
        a("v_exp_f32 v28, v28")
        a("v_add_f32 v28, 1.0, v28")
        a("v_rcp_f32 v28, v28")
        rnd(a, 28)
        a(f"v_mov_b32 v29, {L_RS}")
        a("ds_write_b32 v29, v28")
        if self.qdelay: a(f"s_sleep {self.qdelay}")
        a("v_lshlrev_b32 v2, 4, v0")
        a("v_lshlrev_b32 v3, 3, v0")
        first = True
        a(f"buffer_load_dwordx4 v[32:35], v2, {S(SRD_WS)}, s{S_T0} offen sc1")
        a(f"buffer_load_dwordx4 v[36:39], v2, {S(SRD_WS)}, s{S_T0} offen offset:1024 sc1")
        if self.early >= 0: a("s_barrier")
        a("s_branch L_Q_chk")
        a.label("L_Q_poll")
        a(f"buffer_load_dwordx4 v[32:35], v2, {S(SRD_WS)}, s{S_T0} offen sc1")
        a(f"buffer_load_dwordx4 v[36:39], v2, {S(SRD_WS)}, s{S_T0} offen offset:1024 sc1")
        a.label("L_Q_chk")
        a("s_waitcnt vmcnt(0)")
        a(f"v_xor_b32 v30, s{S_TAG}, v33")
        for r in (35, 37, 39):
            a(f"v_xor_b32 v31, s{S_TAG}, v{r}"); a("v_or_b32 v30, v30, v31")
        a("v_cmp_ne_u32 vcc, 0, v30")
        a("s_cbranch_vccz L_Q_got")
        self.spin_guard("L_Q_poll", "L_Q_got")
        a.label("L_Q_got")
        a(f"v_add_u32 v3, {L_Q}, v3")
        a("ds_write2_b32 v3, v32, v34 offset0:0 offset1:1")
        a("ds_write2_b32 v3, v36, v38 offset0:128 offset1:129")
        a("s_waitcnt lgkmcnt(0)")
        self.stamp(3)
        a("s_barrier")
        self.dump_stamps(4, 1)
        self.hdump([(2, 7, "max"), (3, 8, "max"), (1, 14, "max")], nsleep=18)
        a("s_branch L_end")

    def mwave(self):
        a = self.a
        a.label("L_M")
        a(f"s_cmp_ge_u32 s{S_SP}, 14")
        a("s_cbranch_scc1 L_end")
        a(f"s_mul_i32 s{S_T0+12}, s{S_G}, 14"); a(f"s_add_u32 s{S_T0+12}, s{S_T0+12}, s{S_SP}")
        a(f"s_lshl_b32 s{S_T0}, s{S_T0+12}, 5")
        for d, base in ((SRD_A, S_WG), (SRD_B, S_WU)):
            a(f"s_add_u32 s{d}, s{base}, s{S_T0}"); a(f"s_addc_u32 s{d+1}, s{base+1}, 0")
            a(f"s_sub_u32 s{d+2}, {512*3584}, s{S_T0}"); a(f"s_mov_b32 s{d+3}, 0x00020000")
        a(f"s_lshl_b32 s{S_T0+1}, s{S_T0+12}, 14")
        srd(a, SRD_C, S_WD, S_T0+1, size=16384)
        a("v_lshrrev_b32 v1, 1, v0"); a(f"s_mov_b32 s{S_T0+2}, 3584"); a(f"v_mul_lo_u32 v1, v1, s{S_T0+2}")
        a("v_and_b32 v2, 1, v0"); a("v_lshlrev_b32 v2, 4, v2"); a("v_add_u32 v1, v1, v2")
        self.get_tag()
        if self.mprio: a(f"s_setprio {self.mprio}")
        if self.a0: a("s_barrier")
        if self.early >= 0: a("s_barrier")
        a("s_barrier")
        self.stamp(1)
        self.gemv16_loads(SRD_A, 64, 3584)
        self.gemv16_loads(SRD_B, 128, 3584)
        a("v_lshlrev_b32 v3, 4, v0")
        a(f"s_mov_b32 s{S_OFF}, 0")
        for r in range(16):
            a(f"buffer_load_dwordx4 {V4(192+4*r)}, v3, {S(SRD_C)}, s{S_OFF} offen offset:{1024*(r&3)} {self.wflag}")
            if (r & 3) == 3 and r < 15: a(f"s_add_u32 s{S_OFF}, s{S_OFF}, 4096")
        self.read_T(32)
        a("s_waitcnt lgkmcnt(0)")
        self.gemv16_compute(64, 32, 16, 32, 24, 25)
        self.gemv16_compute(128, 32, 16, 16, 26, 27)
        for v in (24, 25, 26, 27): rnd(a, v)
        for v in (24, 25):
            a(f"v_mul_f32 v28, s{S_LOG2E}, v{v}")
            a("v_sub_f32 v28, 0, v28")
            a("v_exp_f32 v28, v28")
            a("v_add_f32 v28, 1.0, v28")
            a("v_rcp_f32 v28, v28")
            a(f"v_mul_f32 v{v}, v{v}, v28")
            rnd(a, v)
        a("v_mul_f32 v24, v24, v26"); a("v_mul_f32 v25, v25, v27")
        a("v_cvt_pk_bf16_f32 v24, v24, v25")
        SH = S_T0
        for k in range(8):
            a(f"v_readlane_b32 s{SH+k}, v24, {16*(k&3) + (k>>2)}")
        for k in range(8): a(f"v_mov_b32 v{16+k}, 0")
        TA, TB = 74, 75
        for r in range(16):
            k = r >> 1
            if r & 1 == 0:
                a(f"s_and_b32 s{TA}, s{SH+k}, 0xffff"); a(f"s_lshl_b32 s{TB}, s{SH+k}, 16")
            else:
                a(f"s_lshr_b32 s{TA}, s{SH+k}, 16"); a(f"s_and_b32 s{TB}, s{SH+k}, 0xffff0000")
            a(f"s_waitcnt vmcnt({15-r})")
            for j in range(4):
                a(f"v_dot2c_f32_bf16 v{16+2*j}, s{TA}, v{192+4*r+j}")
                a(f"v_dot2c_f32_bf16 v{17+2*j}, s{TB}, v{192+4*r+j}")
        a(f"s_lshl_b32 s{S_T0+12}, s{S_T0+12}, 12"); a(f"s_add_u32 s{S_T0+12}, s{S_T0+12}, {WS_YP}")
        for j in range(4):
            r = 32 + 4*j
            a(f"v_mov_b32 v{r}, v{16+2*j}"); a(f"v_mov_b32 v{r+1}, s{S_TAG}")
            a(f"v_mov_b32 v{r+2}, v{17+2*j}"); a(f"v_mov_b32 v{r+3}, s{S_TAG}")
        for j in range(4):
            a(f"buffer_store_dwordx4 {V4(32+4*j)}, v3, {S(SRD_WS)}, s{S_T0+12} offen offset:{1024*j} sc1")
        self.stamp(2)
        self.dump_stamps(3, 2)
        self.hdump([(2, 9, "max")], nsleep=8)
        a("s_waitcnt vmcnt(0)")
        a("s_branch L_end")

    def wwave(self):
        a = self.a
        a.label("L_W")
        RB, CB = S_T0+10, S_T0+11
        a(f"s_lshr_b32 s{RB}, s{S_SP}, 2"); a(f"s_and_b32 s{CB}, s{S_SP}, 3")
        a(f"s_lshl_b32 s{S_T0}, s{S_G}, 19"); a(f"s_lshl_b32 s{S_T0+1}, s{RB}, 16")
        a(f"s_add_u32 s{S_T0}, s{S_T0}, s{S_T0+1}")
        a(f"s_lshl_b32 s{S_T0+1}, s{CB}, 8"); a(f"s_add_u32 s{S_T0}, s{S_T0}, s{S_T0+1}")
        srd(a, SRD_A, S_WO, S_T0, size=65536)
        a(f"s_lshl_b32 s{S_T0+1}, s{CB}, 8"); a(f"s_sub_u32 s{SRD_A+2}, 65536, s{S_T0+1}")
        srd(a, SRD_B, S_X, size=1024)
        srd(a, SRD_C, S_OUT, size=1024)
        a("v_lshrrev_b32 v1, 4, v0"); a("v_lshlrev_b32 v1, 10, v1")
        a("v_and_b32 v2, 15, v0"); a("v_lshlrev_b32 v2, 4, v2"); a("v_add_u32 v1, v1, v2")
        self.get_tag()
        if self.mprio: a(f"s_setprio {self.mprio}")
        if self.a0: a("s_barrier")
        if self.early >= 0: a("s_barrier")
        a("s_barrier")
        WO = 64
        a(f"s_mov_b32 s{S_OFF}, 0")
        for i in range(16):
            a(f"buffer_load_dwordx4 {V4(WO+4*i)}, v1, {S(SRD_A)}, s{S_OFF} offen {self.wflag}")
            if i < 15: a(f"s_add_u32 s{S_OFF}, s{S_OFF}, 4096")
        a(f"s_lshl_b32 s{S_T0+2}, s2, 2")
        a(f"v_mov_b32 v2, s{S_T0+2}")
        a(f"buffer_load_dword v8, v2, {S(SRD_B)}, 0 offen")
        a(f"s_lshl_b32 s{S_T0+3}, s2, 4")
        a(f"v_mov_b32 v3, s{S_T0+3}")
        a(f"ds_read_b128 v[12:15], v3 offset:{L_T}")
        a(f"v_mov_b32 v3, {L_RS}")
        a("ds_read_b32 v9, v3")
        self.masksXY(5, 7, 28)
        for k in range(5):
            a(f"v_mov_b32 v{32+4*k}, 0"); a(f"v_mov_b32 v{33+4*k}, 0")
        for k in range(8): a(f"v_mov_b32 v{56+k}, 0")
        a(f"s_mov_b32 s{S_M1}, 0xffff0000"); a(f"s_mov_b32 s{S_M1+1}, 0xffff0000")
        a(f"s_mov_b32 s{S_M2}, 0"); a(f"s_mov_b32 s{S_M2+1}, -1")
        a(f"s_and_b32 s{S_T0+4}, s2, 3"); a(f"s_lshl_b32 s{S_T0+4}, s{S_T0+4}, 6")
        a(f"s_lshr_b32 s{S_T0+5}, s2, 2"); a(f"s_add_u32 s{S_T0+4}, s{S_T0+4}, s{S_T0+5}")
        a(f"s_lshl_b32 s{S_T0+4}, s{S_T0+4}, 4"); a(f"s_add_u32 s{S_T0+4}, s{S_T0+4}, {WS_YP}")
        a("v_lshlrev_b32 v10, 12, v0")
        a("v_add_u32 v11, 64, v0"); a("v_min_u32 v11, 111, v11"); a("v_lshlrev_b32 v11, 12, v11")
        a("s_sleep 64")
        a.label("L_W_ypoll")
        a(f"buffer_load_dwordx4 v[16:19], v10, {S(SRD_WS)}, s{S_T0+4} offen sc1")
        a(f"buffer_load_dwordx4 v[20:23], v11, {S(SRD_WS)}, s{S_T0+4} offen sc1")
        a("s_waitcnt vmcnt(0)")
        a(f"v_xor_b32 v30, s{S_TAG}, v17")
        for r in (19, 21, 23):
            a(f"v_xor_b32 v31, s{S_TAG}, v{r}"); a("v_or_b32 v30, v30, v31")
        a("v_cmp_ne_u32 vcc, 0, v30")
        a("s_cbranch_vccz L_W_ygot")
        self.spin_guard("L_W_ypoll", "L_W_ygot", sleep=16)
        a.label("L_W_ygot")
        a("v_cmp_gt_u32 vcc, 48, v0")
        a("v_cndmask_b32 v20, 0, v20, vcc"); a("v_cndmask_b32 v22, 0, v22, vcc")
        a("v_add_f32 v16, v16, v20"); a("v_add_f32 v18, v18, v22")
        allreduce64(a, 16, 30, "v_add_f32"); allreduce64(a, 18, 30, "v_add_f32")
        a("s_waitcnt lgkmcnt(0)")
        rnd(a, 16); rnd(a, 18)
        a("v_mul_f32 v16, v16, v9"); a("v_mul_f32 v18, v18, v9")
        rnd(a, 16); rnd(a, 18)
        a("v_add_f32 v16, v16, v13"); a("v_add_f32 v18, v18, v15")
        rnd(a, 16); rnd(a, 18)
        a("v_lshlrev_b32 v12, 16, v8"); a(f"v_and_b32 v14, s{S_HI}, v8")
        a(f"s_lshl_b32 s{S_T0+6}, s{S_G}, 3"); a(f"s_add_u32 s{S_T0+6}, s{S_T0+6}, s{RB}")
        a(f"s_lshl_b32 s{S_T0+6}, s{S_T0+6}, 12")
        a(f"s_lshl_b32 s{S_T0+7}, s{CB}, 10"); a(f"s_add_u32 s{S_T0+6}, s{S_T0+6}, s{S_T0+7}")
        a(f"s_add_u32 s{S_T0+6}, s{S_T0+6}, {WS_AP}")
        a("v_and_b32 v20, 15, v0"); a("v_lshlrev_b32 v20, 6, v20")
        a("v_lshrrev_b32 v21, 4, v0"); a("v_lshlrev_b32 v21, 4, v21"); a("v_add_u32 v20, v20, v21")
        a(f"s_lshl_b32 s{S_T0+7}, s2, 4"); a(f"s_add_u32 s{S_T0+7}, s{S_T0+7}, {WS_AP}")
        a("v_lshlrev_b32 v22, 2, v0")
        a("v_and_b32 v23, 3, v0"); a("v_lshlrev_b32 v23, 6, v23")
        a("v_lshrrev_b32 v24, 2, v0"); a("v_lshlrev_b32 v24, 2, v24"); a("v_add_u32 v23, v23, v24")
        a("v_lshrrev_b32 v24, 4, v0"); a("v_lshlrev_b32 v24, 6, v24")
        a(f"s_mov_b32 s{S_SPIN}, {SPIN_LIMIT}")
        self.stamp(1)
        a("s_barrier")
        a("s_barrier")
        self.stamp(2)
        for k in range(4):
            a(f"ds_read_b32 v{26+k}, v22 offset:{L_G+256*k}")
        a("s_waitcnt lgkmcnt(0)")
        a("v_add_f32 v26, v26, v27"); a("v_add_f32 v28, v28, v29"); a("v_add_f32 v26, v26, v28")
        a("v_cvt_pk_bf16_f32 v26, v26, v26")
        a(f"ds_write_b32 v23, v26 offset:{L_PP}")
        a("s_waitcnt lgkmcnt(0)")
        PPV = 128
        for k in range(4):
            a(f"ds_read_b128 {V4(PPV+4*k)}, v24 offset:{L_PP+16*k}")
        a("s_waitcnt lgkmcnt(0)")
        PB = 32; D0 = 56; D1 = 60
        for i0 in range(0, 16, 4):
            for r in range(4):
                a(f"v_and_b32 v{PB+4*r+2}, v{PPV+i0+r}, v5")
                a(f"v_and_b32 v{PB+4*r+3}, v{PPV+i0+r}, v7")
            for r in range(4):
                wb = WO + 4*(i0+r)
                a(f"v_mfma_f32_16x16x32_bf16 {V4(D0)}, {V4(PB+4*r+2)}, {V4(wb)}, {V4(D0)}")
                a(f"v_mfma_f32_16x16x32_bf16 {V4(D1)}, {V4(PB+4*r)}, {V4(wb)}, {V4(D1)}")
        m1 = f"s[{S_M1}:{S_M1+1}]"; m2 = f"s[{S_M2}:{S_M2+1}]"
        a(f"v_cndmask_b32 v26, v{D0}, v{D0+2}, {m1}")
        a(f"v_cndmask_b32 v27, v{D1}, v{D1+2}, {m1}")
        a(f"v_cndmask_b32 v28, v26, v27, {m2}")
        a(f"v_cndmask_b32 v26, v{D0+1}, v{D0+3}, {m1}")
        a(f"v_cndmask_b32 v27, v{D1+1}, v{D1+3}, {m1}")
        a(f"v_cndmask_b32 v30, v26, v27, {m2}")
        a(f"v_mov_b32 v29, s{S_TAG}"); a(f"v_mov_b32 v31, s{S_TAG}")
        a(f"buffer_store_dwordx4 v[28:31], v20, {S(SRD_WS)}, s{S_T0+6} offen sc1")
        self.stamp(3)
        a.label("L_W_apoll")
        a(f"buffer_load_dwordx4 v[24:27], v10, {S(SRD_WS)}, s{S_T0+7} offen sc1")
        a("s_waitcnt vmcnt(0)")
        a(f"v_xor_b32 v30, s{S_TAG}, v25")
        a(f"v_xor_b32 v31, s{S_TAG}, v27"); a("v_or_b32 v30, v30, v31")
        a("v_cmp_ne_u32 vcc, 0, v30")
        a("s_cbranch_vccz L_W_agot")
        self.spin_guard("L_W_apoll", "L_W_agot")
        a.label("L_W_agot")
        self.stamp(4)
        allreduce64(a, 24, 30, "v_add_f32"); allreduce64(a, 26, 30, "v_add_f32")
        rnd(a, 24); rnd(a, 26)
        a("v_add_f32 v24, v24, v12"); a("v_add_f32 v26, v26, v14")
        rnd(a, 24); rnd(a, 26)
        a("v_add_f32 v24, v24, v16"); a("v_add_f32 v26, v26, v18")
        a("v_cvt_pk_bf16_f32 v24, v24, v26")
        a("s_mov_b64 exec, 1")
        a(f"buffer_store_dword v24, v2, {S(SRD_C)}, 0 offen")
        a("s_cmp_lg_u32 s2, 0")
        a("s_cbranch_scc1 L_W_noep")
        a(f"v_mov_b32 v25, s{S_TAG}"); a("v_mov_b32 v26, 0")
        a(f"buffer_store_dword v25, v26, {S(SRD_WS)}, 0 offen sc1")
        a.label("L_W_noep")
        a("s_mov_b64 exec, -1")
        self.stamp(5)
        self.dump_stamps(6, 3)
        self.hdump([(0, 0, "min"), (5, 1, "max"), (1, 10, "max"), (3, 11, "max"), (4, 12, "max"), (0, 13, "max")])
        a("s_waitcnt vmcnt(0)")

    def build(self):
        self.prologue()
        self.swave()
        self.qwave()
        self.mwave()
        self.wwave()
        self.a.label("L_end")
        self.a("s_endpgm")
        body = self.a.text()
        stub = open("parallel_sum__gqa_block_cached__moe_arch_mod__decode.s.ref").read()
        head = stub[:stub.index("; @launch")]
        txt = head + f"; @launch grid=(256,1,1) block=(448,1,1) lds={LDS_BYTES}\n"
        txt += f""".amdgcn_target "amdgcn-amd-amdhsa--gfx950"
.text
.globl {KNAME}
.p2align 8
.type {KNAME},@function
{KNAME}:
{body}
.section .rodata,"a"
.p2align 6
.amdhsa_kernel {KNAME}
  .amdhsa_next_free_vgpr 256
  .amdhsa_next_free_sgpr 102
  .amdhsa_accum_offset 256
  .amdhsa_group_segment_fixed_size 0
  .amdhsa_kernarg_size 104
  .amdhsa_user_sgpr_count 2
  .amdhsa_user_sgpr_kernarg_segment_ptr 1
  .amdhsa_system_sgpr_workgroup_id_x 1
.end_amdhsa_kernel
"""
        return txt

if __name__ == "__main__":
    import argparse
    p = argparse.ArgumentParser()
    p.add_argument("--dbg", action="store_true")
    p.add_argument("--early", type=int, default=3)
    p.add_argument("--qdelay", type=int, default=0)
    p.add_argument("--wflag", default="nt")
    p.add_argument("--noa0", action="store_true")
    p.add_argument("--pace", type=int, default=0)
    p.add_argument("--paceto", type=int, default=48)
    p.add_argument("--mprio", type=int, default=0)
    p.add_argument("--hdbg", action="store_true")
    p.add_argument("-o", default="parallel_sum__gqa_block_cached__moe_arch_mod__decode.s")
    args = p.parse_args()
    g = Gen(dbg=args.dbg, early=args.early, qdelay=args.qdelay, wflag=args.wflag, a0=not args.noa0, pace=args.pace, mprio=args.mprio, paceto=args.paceto, hdbg=args.hdbg)
    t = g.build()
    open(args.o, "w").write(t)
    print("wrote", args.o, len(t), "bytes")
```

```python
import sys
from asmlib import Asm

KNAME = "parallel_sum__gqa_block_cached__moe_arch_mod__decode_kernel"
WS_QG = 0x1000
WS_ST = 0x8000
WS_AP = 0x10000
WS_YP = 0x80000
WS_OP = 0x100000
WS_DBG = 0x200000
WS_SIZE = 0x300000
L_T = 0; L_Q = 4096; L_O = 5120; L_ST = 13312; L_G = 13568; L_PP = 14592; L_RS = 14848
LDS_BYTES = 15360
SPIN_LIMIT = 40000

S_X, S_K, S_V, S_WQ, S_WO, S_WR, S_WG, S_WU, S_WD, S_OUT, S_WS = 8, 10, 12, 14, 16, 20, 22, 24, 26, 28, 32
S_G, S_SP, S_WAVE, S_TAG = 34, 35, 36, 37
SRD_WS = 40
SRD_A = 44
SRD_B = 48
SRD_C = 52
S_OFF = 56
S_SPIN = 57
S_HI = 58
S_LOG2E = 59
S_SCALE = 60
S_M1 = 62
S_M2 = 64
S_T0 = 66
S_TS = 80

def srd(a, d, base, off_sgpr=None, off_imm=0, size=0):
    if off_sgpr is not None:
        a(f"s_add_u32 s{d}, s{base}, s{off_sgpr}")
        a(f"s_addc_u32 s{d+1}, s{base+1}, 0")
    else:
        a(f"s_mov_b32 s{d}, s{base}")
        a(f"s_mov_b32 s{d+1}, s{base+1}")
    a(f"s_mov_b32 s{d+2}, {size:#x}")
    a(f"s_mov_b32 s{d+3}, 0x00020000")

def S(d): return f"s[{d}:{d+3}]"
def V4(r): return f"v[{r}:{r+3}]"
def V2(r): return f"v[{r}:{r+1}]"

def allreduce64(a, v, t, op):
    a(f"{op}_dpp v{v}, v{v}, v{v} quad_perm:[1,0,3,2] row_mask:0xf bank_mask:0xf")
    a(f"{op}_dpp v{v}, v{v}, v{v} quad_perm:[2,3,0,1] row_mask:0xf bank_mask:0xf")
    a(f"{op}_dpp v{v}, v{v}, v{v} row_half_mirror row_mask:0xf bank_mask:0xf")
    a(f"{op}_dpp v{v}, v{v}, v{v} row_mirror row_mask:0xf bank_mask:0xf")
    rows_reduce(a, v, t, op)

def rows_reduce(a, v, t, op):
    a(f"v_mov_b32 v{t}, v{v}")
    a(f"v_permlane16_swap_b32 v{v}, v{t}")
    a(f"{op} v{v}, v{v}, v{t}")
    a(f"v_mov_b32 v{t}, v{v}")
    a(f"v_permlane32_swap_b32 v{v}, v{t}")
    a(f"{op} v{v}, v{v}, v{t}")

def rnd(a, v):
    a(f"v_cvt_pk_bf16_f32 v{v}, v{v}, v{v}")
    a(f"v_and_b32 v{v}, s{S_HI}, v{v}")

class Gen:
    def __init__(self, dbg=False, early=3, qdelay=0, wflag="nt", a0=True, pace=0, mprio=0, paceto=48, hdbg=False, spin=None):
        self.hdbg = hdbg; self.spin = spin
        if hdbg: dbg = False
        self.dbg = dbg; self.early = early; self.qdelay = qdelay; self.wflag = wflag; self.a0 = a0
        self.pace = pace; self.mprio = mprio; self.paceto = paceto; self.nissued = None
        self.a = Asm()

    def hdump(self, items, nsleep=5):
        if not self.hdbg: return
        a = self.a
        a("s_waitcnt lgkmcnt(0) vmcnt(0)")
        a("s_setprio 0")
        for _ in range(nsleep): a("s_sleep 127")
        srd(a, SRD_C, 30, size=256)
        a("s_mov_b64 exec, 1")
        for (st, w, mode) in items:
            if mode == "min":
                a(f"s_not_b32 s{S_T0}, s{S_TS+2*st}")
                a(f"v_mov_b32 v2, s{S_T0}")
            else:
                a(f"v_mov_b32 v2, s{S_TS+2*st}")
            a(f"v_mov_b32 v3, {4*w}")
            a(f"buffer_atomic_umax v2, v3, {S(SRD_C)}, 0 offen sc1")
            a("s_waitcnt vmcnt(0)")
        a("s_mov_b64 exec, -1")

    def stamp(self, idx):
        if self.dbg or self.hdbg or self.spin:
            self.a(f"s_memrealtime s[{S_TS+2*idx}:{S_TS+2*idx+1}]")

    def dump_stamps(self, n, slot, vt=2):
        if not self.dbg: return
        a = self.a
        a("s_waitcnt lgkmcnt(0) vmcnt(0)")
        a(f"s_lshl_b32 s{S_T0}, s2, 10")
        a(f"s_lshl_b32 s{S_T0+1}, s{S_WAVE}, 7")
        a(f"s_add_u32 s{S_T0}, s{S_T0}, s{S_T0+1}")
        a(f"s_add_u32 s{S_T0}, s{S_T0}, {WS_DBG}")
        a("s_mov_b64 exec, 1")
        a(f"v_mov_b32 v{vt+2}, s{S_T0}")
        for i in range(n):
            a(f"v_mov_b32 v{vt}, s{S_TS+2*i}")
            a(f"v_mov_b32 v{vt+1}, s{S_TS+2*i+1}")
            a(f"buffer_store_dwordx2 {V2(vt)}, v{vt+2}, {S(SRD_WS)}, 0 offen offset:{8*i}")
            a("s_waitcnt vmcnt(0)")
        a("s_mov_b64 exec, -1")

    def spin_guard(self, lab_retry, lab_done, sleep=1):
        a = self.a
        a(f"s_sub_u32 s{S_SPIN}, s{S_SPIN}, 1")
        a(f"s_cmp_eq_u32 s{S_SPIN}, 0")
        a(f"s_cbranch_scc1 {lab_done}")
        if sleep: a(f"s_sleep {sleep}")
        a(f"s_branch {lab_retry}")

    def prologue(self):
        a = self.a
        a("s_cmp_ge_u32 s2, 256")
        a("s_cbranch_scc1 L_end")
        self.stamp(0)
        a("s_load_dwordx16 s[8:23], s[0:1], 0")
        a("s_load_dwordx8 s[24:31], s[0:1], 64")
        a(f"s_load_dwordx2 s[{S_WS}:{S_WS+1}], s[0:1], 96")
        a("v_lshrrev_b32 v1, 6, v0")
        a("v_and_b32 v0, 63, v0")
        a(f"s_and_b32 s{S_G}, s2, 7")
        a(f"s_lshr_b32 s{S_SP}, s2, 3")
        a(f"v_readfirstlane_b32 s{S_WAVE}, v1")
        a(f"s_mov_b32 s{S_HI}, 0xffff0000")
        a(f"s_mov_b32 s{S_LOG2E}, 0x3fb8aa3b")
        a(f"s_mov_b32 s{S_SPIN}, {SPIN_LIMIT}")
        a("s_waitcnt lgkmcnt(0)")
        a(f"s_load_dword s{S_TAG}, s[{S_WS}:{S_WS+1}], 0")
        srd(a, SRD_WS, S_WS, size=WS_SIZE)
        a(f"s_cmp_lt_u32 s{S_WAVE}, 4")
        a("s_cbranch_scc1 L_S")
        a(f"s_cmp_eq_u32 s{S_WAVE}, 4")
        a("s_cbranch_scc1 L_Q")
        a(f"s_cmp_eq_u32 s{S_WAVE}, 5")
        a("s_cbranch_scc1 L_M")
        a("s_branch L_W")

    def get_tag(self):
        a = self.a
        a("s_waitcnt lgkmcnt(0)")
        a(f"s_add_u32 s{S_TAG}, s{S_TAG}, 1")

    RING = 64
    def pace_wait(self):
        if self.nissued is None: return
        if self.pace and self.pace <= self.nissued < self.paceto:
            self.a(f"s_waitcnt vmcnt({self.pace-1})")
        self.nissued += 1
    def issueK(self, slot):
        a = self.a; b = self.RING + 64*slot
        for t in range(2):
            for c in range(4):
                r = b + 16*t + 4*c
                self.pace_wait()
                a(f"buffer_load_dwordx4 {V4(r)}, v{1+t}, {S(SRD_A)}, s{S_OFF} offen offset:{64*c} nt")
    def issueV(self, slot):
        a = self.a; b = self.RING + 64*slot + 32
        for r8 in range(8):
            r = b + 4*r8
            self.pace_wait()
            a(f"buffer_load_dwordx4 {V4(r)}, v{3+(r8>>2)}, {S(SRD_B)}, s{S_OFF} offen offset:{1024*(r8&3)} nt")
        a(f"s_add_u32 s{S_OFF}, s{S_OFF}, 32768")

    def group(self, slot, kwait, vwait, reissue):
        a = self.a
        b = self.RING + 64*slot
        SC = 32; PB = 10; D0 = 40; D1 = 44; Q = 48
        vM, vMC, vL, vMX, vMY = 6, 8, 9, 5, 7
        a(f"s_waitcnt vmcnt({kwait})")
        for c in range(4):
            for t in range(2):
                cc = "0" if c == 0 else V4(SC+4*t)
                a(f"v_mfma_f32_16x16x32_bf16 {V4(SC+4*t)}, {V4(b+16*t+4*c)}, {V4(Q+4*c)}, {cc}")
        if reissue: self.issueK(slot)
        for k in range(4):
            s0 = SC+2*k; t = 28+k
            a(f"v_cvt_pk_bf16_f32 v{t}, v{s0}, v{s0+1}")
        for k in range(4):
            s0 = SC+2*k; t = 28+k
            a(f"v_lshlrev_b32 v{s0}, 16, v{t}")
            a(f"v_and_b32 v{s0+1}, s{S_HI}, v{t}")
        for k in range(4):
            s0 = SC+2*k
            a(f"v_pk_mul_f32 {V2(s0)}, {V2(s0)}, s[{S_SCALE}:{S_SCALE+1}]")
        for k in range(4):
            s0 = SC+2*k; t = 28+k
            a(f"v_cvt_pk_bf16_f32 v{t}, v{s0}, v{s0+1}")
        for k in range(4):
            s0 = SC+2*k; t = 28+k
            a(f"v_lshlrev_b32 v{s0}, 16, v{t}")
            a(f"v_and_b32 v{s0+1}, s{S_HI}, v{t}")
        a(f"v_max3_f32 v28, v{SC}, v{SC+1}, v{SC+2}")
        a(f"v_max3_f32 v29, v{SC+3}, v{SC+4}, v{SC+5}")
        a(f"v_max3_f32 v28, v28, v{SC+6}, v{SC+7}")
        a(f"v_max_f32 v28, v28, v29")
        a(f"v_cmp_gt_f32 vcc, v28, v{vM}")
        skip = a.uniq("L_skip")
        a(f"s_cbranch_vccz {skip}")
        rows_reduce(a, 28, 29, "v_max_f32")
        a(f"v_max_f32 v28, v28, v{vM}")
        a(f"v_mul_f32 v29, s{S_LOG2E}, v28")
        a(f"v_sub_f32 v30, v{vMC}, v29")
        a(f"v_exp_f32 v30, v30")
        a(f"v_mov_b32 v{vM}, v28")
        a(f"v_mov_b32 v{vMC}, v29")
        a(f"v_mul_f32 v{vL}, v{vL}, v30")
        for h in range(4):
            a(f"v_mov_b32_dpp v31, v30 row_newbcast:{4*h} row_mask:{1<<h:#x} bank_mask:0xf")
        for k in range(8):
            a(f"v_mul_f32 v{D0+k}, v{D0+k}, v31")
        a.label(skip)
        for k in range(8):
            a(f"v_fma_f32 v{SC+k}, v{SC+k}, s{S_LOG2E}, -v{vMC}")
        for k in range(8):
            a(f"v_exp_f32 v{SC+k}, v{SC+k}")
        for t in range(2):
            for r in range(4):
                a(f"v_cvt_pk_bf16_f32 v{28+r}, v{SC+4*t+r}, v{SC+4*t+r}")
            for r in range(4):
                a(f"v_and_b32 v{PB+4*r+2}, v{28+r}, v{vMX}")
                a(f"v_and_b32 v{PB+4*r+3}, v{28+r}, v{vMY}")
            if t == 0:
                a(f"s_waitcnt vmcnt({vwait})")
            for r in range(4):
                vb = b + 32 + 4*(4*t+r)
                a(f"v_mfma_f32_16x16x32_bf16 {V4(D0)}, {V4(PB+4*r+2)}, {V4(vb)}, {V4(D0)}")
                a(f"v_mfma_f32_16x16x32_bf16 {V4(D1)}, {V4(PB+4*r)}, {V4(vb)}, {V4(D1)}")
        if reissue: self.issueV(slot)
        a(f"v_pk_add_f32 v[28:29], {V2(SC)}, {V2(SC+2)}")
        a(f"v_pk_add_f32 v[30:31], {V2(SC+4)}, {V2(SC+6)}")
        a(f"v_pk_add_f32 v[28:29], v[28:29], v[30:31]")
        a(f"v_add_f32 v28, v28, v29")
        a(f"v_add_f32 v{vL}, v{vL}, v28")

    def masksXY(self, vX, vY, t):
        a = self.a
        a(f"v_and_b32 v{t}, 3, v0")
        a(f"v_mov_b32 v{vX}, 0"); a(f"v_mov_b32 v{vY}, 0")
        a(f"v_mov_b32 v{t+1}, 0xffff")
        a(f"v_mov_b32 v{t+2}, s{S_HI}")
        a(f"v_cmp_eq_u32 vcc, 0, v{t}"); a(f"v_cndmask_b32 v{vX}, v{vX}, v{t+1}, vcc")
        a(f"v_cmp_eq_u32 vcc, 1, v{t}"); a(f"v_cndmask_b32 v{vX}, v{vX}, v{t+2}, vcc")
        a(f"v_cmp_eq_u32 vcc, 2, v{t}"); a(f"v_cndmask_b32 v{vY}, v{vY}, v{t+1}, vcc")
        a(f"v_cmp_eq_u32 vcc, 3, v{t}"); a(f"v_cndmask_b32 v{vY}, v{vY}, v{t+2}, vcc")

    def swave(self):
        a = self.a
        a.label("L_S")
        a(f"s_lshl_b32 s{S_T0}, s{S_G}, 24")
        a(f"s_lshl_b32 s{S_T0+1}, s{S_SP}, 19")
        a(f"s_add_u32 s{S_T0}, s{S_T0}, s{S_T0+1}")
        srd(a, SRD_A, S_K, S_T0, size=0x80000)
        srd(a, SRD_B, S_V, S_T0, size=0x80000)
        a("v_and_b32 v1, 3, v0"); a("v_lshlrev_b32 v1, 10, v1")
        a("v_bfe_u32 v2, v0, 2, 2"); a("v_lshlrev_b32 v2, 8, v2"); a("v_add_u32 v1, v1, v2")
        a("v_lshrrev_b32 v2, 4, v0"); a("v_lshlrev_b32 v2, 4, v2"); a("v_add_u32 v1, v1, v2")
        a("v_add_u32 v2, 0x1000, v1")
        a("v_lshlrev_b32 v3, 4, v0"); a("v_add_u32 v4, 0x1000, v3")
        a(f"s_lshl_b32 s{S_OFF}, s{S_WAVE}, 13")
        if self.a0: a("s_barrier")
        self.stamp(1)
        self.nissued = 0
        for slot in range(3):
            if slot == self.early: a("s_barrier")
            self.issueK(slot); self.issueV(slot)
        self.nissued = None
        if self.early >= 3: a("s_barrier")
        self.masksXY(5, 7, 28)
        for k in range(5):
            a(f"v_mov_b32 v{10+4*k}, 0"); a(f"v_mov_b32 v{11+4*k}, 0")
        for k in range(8): a(f"v_mov_b32 v{40+k}, 0")
        a("v_mov_b32 v6, 0xff800000"); a("v_mov_b32 v8, 0xff800000"); a("v_mov_b32 v9, 0")
        a(f"s_mov_b32 s{S_SCALE}, 0x3db504f3"); a(f"s_mov_b32 s{S_SCALE+1}, 0x3db504f3")
        a("v_bfe_u32 v28, v0, 2, 2"); a("v_lshlrev_b32 v28, 8, v28")
        a("v_lshrrev_b32 v29, 4, v0"); a("v_lshlrev_b32 v29, 4, v29"); a("v_add_u32 v28, v28, v29")
        self.stamp(2)
        a("s_barrier")
        self.stamp(3)
        for c in range(4):
            a(f"ds_read_b128 {V4(48+4*c)}, v28 offset:{L_Q+64*c}")
        a("s_waitcnt lgkmcnt(0)")
        a(f"s_mov_b32 s{S_T0}, 4")
        a.label("L_S_loop")
        for slot in range(3):
            self.group(slot, 40, 40, True)
        a(f"s_sub_u32 s{S_T0}, s{S_T0}, 1")
        a(f"s_cmp_lg_u32 s{S_T0}, 0")
        a("s_cbranch_scc1 L_S_loop")
        self.group(0, 40, 40, True)
        self.group(1, 40, 32, False)
        self.group(2, 24, 16, False)
        self.group(0, 8, 0, False)
        self.stamp(4)
        rows_reduce(a, 9, 28, "v_add_f32")
        a("v_lshlrev_b32 v28, 5, v0")
        a(f"s_lshl_b32 s{S_T0}, s{S_WAVE}, 11")
        a(f"v_add_u32 v28, s{S_T0}, v28")
        a(f"ds_write_b128 v28, {V4(40)} offset:{L_O}")
        a(f"ds_write_b128 v28, {V4(44)} offset:{L_O+16}")
        a("v_lshlrev_b32 v29, 3, v0")
        a(f"s_lshl_b32 s{S_T0}, s{S_WAVE}, 3")
        a(f"v_add_u32 v29, s{S_T0}, v29")
        a("s_mov_b64 exec, 0x1111")
        a(f"ds_write_b64 v29, v[8:9] offset:{L_ST}")
        a("s_mov_b64 exec, -1")
        self.get_tag()
        a("s_barrier")
        self.stamp(5)
        a(f"s_lshl_b32 s{S_T0}, s{S_WAVE}, 5")
        a(f"v_mov_b32 v28, s{S_T0}")
        a(f"ds_read_b128 v[64:67], v28 offset:{L_ST}")
        a(f"ds_read_b128 v[68:71], v28 offset:{L_ST+16}")
        a(f"s_lshl_b32 s{S_T0}, s{S_WAVE}, 9")
        a("v_lshlrev_b32 v29, 3, v0")
        a(f"v_add_u32 v29, s{S_T0}, v29")
        for k in range(4):
            a(f"ds_read_b64 {V2(72+2*k)}, v29 offset:{L_O+2048*k}")
        a("s_waitcnt lgkmcnt(4)")
        a("v_max3_f32 v30, v64, v66, v68")
        a("v_max_f32 v30, v30, v70")
        for k in range(4):
            a(f"v_sub_f32 v{64+2*k}, v{64+2*k}, v30")
        for k in range(4):
            a(f"v_exp_f32 v{64+2*k}, v{64+2*k}")
        a("v_mul_f32 v82, v64, v65")
        a("v_fma_f32 v82, v66, v67, v82")
        a("v_fma_f32 v82, v68, v69, v82")
        a("v_fma_f32 v82, v70, v71, v82")
        a("s_waitcnt lgkmcnt(0)")
        a("v_mul_f32 v84, v64, v72"); a("v_mul_f32 v86, v64, v73")
        for k in range(1, 4):
            a(f"v_fma_f32 v84, v{64+2*k}, v{72+2*k}, v84")
            a(f"v_fma_f32 v86, v{64+2*k}, v{73+2*k}, v86")
        a(f"v_mov_b32 v85, s{S_TAG}"); a(f"v_mov_b32 v87, s{S_TAG}")
        a("v_mov_b32 v80, v30"); a(f"v_mov_b32 v81, s{S_TAG}"); a(f"v_mov_b32 v83, s{S_TAG}")
        a(f"s_lshl_b32 s{S_T0}, s{S_G}, 5"); a(f"s_add_u32 s{S_T0}, s{S_T0}, s{S_SP}")
        a(f"s_lshl_b32 s{S_T0}, s{S_T0}, 12")
        a(f"s_lshl_b32 s{S_T0+1}, s{S_WAVE}, 10")
        a(f"s_add_u32 s{S_T0}, s{S_T0}, s{S_T0+1}")
        a(f"s_add_u32 s{S_T0}, s{S_T0}, {WS_OP}")
        a("v_lshlrev_b32 v28, 4, v0")
        a(f"buffer_store_dwordx4 v[84:87], v28, {S(SRD_WS)}, s{S_T0} offen sc1")
        a(f"s_lshl_b32 s{S_T0+1}, s{S_G}, 2"); a(f"s_add_u32 s{S_T0+1}, s{S_T0+1}, s{S_WAVE}")
        a(f"s_lshl_b32 s{S_T0+1}, s{S_T0+1}, 5"); a(f"s_add_u32 s{S_T0+1}, s{S_T0+1}, s{S_SP}")
        a(f"s_lshl_b32 s{S_T0+1}, s{S_T0+1}, 4"); a(f"s_add_u32 s{S_T0+1}, s{S_T0+1}, {WS_ST}")
        a("v_mov_b32 v29, 0")
        a("s_mov_b64 exec, 1")
        a(f"buffer_store_dwordx4 v[80:83], v29, {S(SRD_WS)}, s{S_T0+1} offen sc1")
        a("s_mov_b64 exec, -1")
        self.stamp(6)
        a(f"s_lshr_b32 s{S_T0+2}, s{S_SP}, 3")
        a(f"s_bfe_u32 s{S_T0+3}, s{S_SP}, 0x10002")
        a(f"s_lshl_b32 s{S_T0}, s{S_G}, 5"); a(f"s_lshl_b32 s{S_T0+1}, s{S_WAVE}, 3")
        a(f"s_add_u32 s{S_T0}, s{S_T0}, s{S_T0+1}"); a(f"s_lshl_b32 s{S_T0}, s{S_T0}, 12")
        a(f"s_lshl_b32 s{S_T0+1}, s{S_T0+2}, 10"); a(f"s_add_u32 s{S_T0}, s{S_T0}, s{S_T0+1}")
        a(f"s_lshl_b32 s{S_T0+1}, s{S_T0+3}, 9"); a(f"s_add_u32 s{S_T0}, s{S_T0}, s{S_T0+1}")
        a(f"s_add_u32 s{S_T0+4}, s{S_T0}, {WS_OP}")
        for u in range(1, 4):
            a(f"s_add_u32 s{S_T0+4+u}, s{S_T0+4}, {8192*u}")
        a("v_lshrrev_b32 v28, 5, v0"); a("v_lshlrev_b32 v28, 12, v28")
        a("v_and_b32 v29, 31, v0"); a("v_lshlrev_b32 v29, 4, v29"); a("v_add_u32 v28, v28, v29")
        a(f"s_lshl_b32 s{S_T0+8}, s{S_G}, 2"); a(f"s_add_u32 s{S_T0+8}, s{S_T0+8}, s{S_T0+2}")
        a(f"s_lshl_b32 s{S_T0+8}, s{S_T0+8}, 9"); a(f"s_add_u32 s{S_T0+8}, s{S_T0+8}, {WS_ST}")
        a.label("L_S_poll")
        for u in range(4):
            a(f"buffer_load_dwordx4 {V4(64+4*u)}, v28, {S(SRD_WS)}, s{S_T0+4+u} offen sc1")
        a(f"buffer_load_dwordx4 v[80:83], v29, {S(SRD_WS)}, s{S_T0+8} offen sc1")
        a("s_waitcnt vmcnt(0)")
        a(f"v_xor_b32 v30, s{S_TAG}, v65")
        for r in [67, 69, 71, 73, 75, 77, 79, 81, 83]:
            a(f"v_xor_b32 v31, s{S_TAG}, v{r}")
            a("v_or_b32 v30, v30, v31")
        a("v_cmp_ne_u32 vcc, 0, v30")
        a("s_cbranch_vccz L_S_got")
        self.spin_guard("L_S_poll", "L_S_got")
        a.label("L_S_got")
        self.stamp(7)
        a("v_mov_b32 v30, v80")
        allreduce64(a, 30, 31, "v_max_f32")
        a("v_sub_f32 v80, v80, v30")
        a("v_exp_f32 v80, v80")
        a("v_mul_f32 v82, v80, v82")
        allreduce64(a, 82, 31, "v_add_f32")
        a("v_rcp_f32 v82, v82")
        a("v_add_f32 v80, v80, v80")
        a("v_mul_f32 v80, v80, v82")
        a("v_lshrrev_b32 v30, 5, v0")
        a(f"s_lshl_b32 s{S_T0}, s{S_WAVE}, 3")
        a(f"v_add_u32 v30, s{S_T0}, v30")
        a("v_lshlrev_b32 v30, 2, v30")
        for u in range(4):
            if u: a("v_add_u32 v30, 8, v30")
            a(f"ds_bpermute_b32 v{84+u}, v30, v80")
        a("s_waitcnt lgkmcnt(0)")
        a("v_mul_f32 v88, v84, v64"); a("v_mul_f32 v89, v84, v66")
        for u in range(1, 4):
            a(f"v_fma_f32 v88, v{84+u}, v{64+4*u}, v88")
            a(f"v_fma_f32 v89, v{84+u}, v{66+4*u}, v89")
        a("v_mov_b32 v90, v88"); a("v_mov_b32 v91, v89")
        a("v_permlane32_swap_b32 v88, v90"); a("v_permlane32_swap_b32 v89, v91")
        a("v_add_f32 v88, v88, v90"); a("v_add_f32 v89, v89, v91")
        a("v_and_b32 v30, 31, v0"); a("v_lshlrev_b32 v30, 3, v30")
        a(f"s_lshl_b32 s{S_T0}, s{S_WAVE}, 8")
        a(f"v_add_u32 v30, s{S_T0}, v30")
        a(f"ds_write_b64 v30, v[88:89] offset:{L_G}")
        a("s_waitcnt lgkmcnt(0)")
        if self.spin and self.spin.startswith("S"):
            k = int(self.spin[1:])
            a(f"s_lshl_b32 s{S_T0}, s{S_WAVE}, 2"); a(f"s_add_u32 s{S_T0}, s{S_T0}, {L_RS+16}")
            a(f"v_mov_b32 v30, s{S_T0}"); a(f"v_mov_b32 v31, s{S_TS+2*k}")
            a("ds_write_b32 v30, v31"); a("s_waitcnt lgkmcnt(0)")
        a("s_barrier")
        self.stamp(8)
        if self.dbg:
            a(f"s_getreg_b32 s{S_TS+18}, hwreg(HW_REG_XCC_ID)"); a(f"s_mov_b32 s{S_TS+19}, 0")
            self.dump_stamps(10, 0)
        self.hdump([(3, 2, "max"), (4, 3, "max"), (4, 4, "min"), (5, 5, "max"), (7, 6, "max"), (2, 15, "max")])
        a("s_branch L_end")

    def gemv16_loads(self, srd_, reg, rowstride):
        a = self.a
        a(f"s_mov_b32 s{S_OFF}, 0")
        for i in range(16):
            a(f"buffer_load_dwordx4 {V4(reg+4*i)}, v1, {S(srd_)}, s{S_OFF} offen {self.wflag}")
            if i < 15: a(f"s_add_u32 s{S_OFF}, s{S_OFF}, {32*rowstride}")

    def gemv16_compute(self, reg, tb, acc, wait_first, outA, outB):
        a = self.a
        for k in range(8): a(f"v_mov_b32 v{acc+k}, 0")
        for i in range(16):
            if wait_first is not None:
                a(f"s_waitcnt vmcnt({wait_first + 15 - i})")
            for k in range(4):
                a(f"v_dot2c_f32_bf16 v{acc+2*k}, v{reg+4*i+k}, v{tb+2*i}")
                a(f"v_dot2c_f32_bf16 v{acc+2*k+1}, v{reg+4*i+k}, v{tb+2*i+1}")
        for k in range(4):
            a(f"v_permlane32_swap_b32 v{acc+k}, v{acc+4+k}")
        for k in range(4):
            a(f"v_add_f32 v{acc+k}, v{acc+k}, v{acc+4+k}")
        a(f"v_permlane16_swap_b32 v{acc}, v{acc+2}")
        a(f"v_permlane16_swap_b32 v{acc+1}, v{acc+3}")
        a(f"v_add_f32 v{outA}, v{acc}, v{acc+2}")
        a(f"v_add_f32 v{outB}, v{acc+1}, v{acc+3}")
        for rr in (2, 4, 8):
            a(f"v_add_f32_dpp v{outA}, v{outA}, v{outA} row_ror:{rr} row_mask:0xf bank_mask:0xf")
            a(f"v_add_f32_dpp v{outB}, v{outB}, v{outB} row_ror:{rr} row_mask:0xf bank_mask:0xf")

    def read_T(self, tb):
        a = self.a
        a("v_lshrrev_b32 v2, 1, v0"); a("v_lshlrev_b32 v2, 3, v2")
        for i in range(16):
            a(f"ds_read_b64 {V2(tb+2*i)}, v2 offset:{L_T+256*i}")

    def qwave(self):
        a = self.a
        a.label("L_Q")
        a("s_setprio 3")
        srd(a, SRD_A, S_X, size=1024)
        srd(a, SRD_B, S_WR, size=1024)
        a(f"s_lshl_b32 s{S_T0}, s{S_G}, 10"); a(f"s_lshl_b32 s{S_T0+1}, s{S_SP}, 5")
        a(f"s_add_u32 s{S_T0}, s{S_T0}, s{S_T0+1}")
        a(f"s_add_u32 s{SRD_C}, s{S_WQ}, s{S_T0}"); a(f"s_addc_u32 s{SRD_C+1}, s{S_WQ+1}, 0")
        a(f"s_sub_u32 s{SRD_C+2}, {512*8192}, s{S_T0}"); a(f"s_mov_b32 s{SRD_C+3}, 0x00020000")
        a("v_lshlrev_b32 v3, 4, v0")
        a(f"buffer_load_dwordx4 v[4:7], v3, {S(SRD_A)}, 0 offen")
        a(f"buffer_load_dwordx4 v[8:11], v3, {S(SRD_B)}, 0 offen")
        a("v_lshrrev_b32 v1, 1, v0"); a("v_lshlrev_b32 v1, 13, v1")
        a("v_and_b32 v2, 1, v0"); a("v_lshlrev_b32 v2, 4, v2"); a("v_add_u32 v1, v1, v2")
        self.gemv16_loads(SRD_C, 64, 8192)
        if self.a0: a("s_barrier")
        a("s_waitcnt vmcnt(17)")
        for k in range(4):
            a(f"v_lshlrev_b32 v{16+2*k}, 16, v{4+k}")
            a(f"v_and_b32 v{17+2*k}, s{S_HI}, v{4+k}")
        a("v_pk_add_f32 v[24:25], v[16:17], v[18:19]")
        a("v_pk_add_f32 v[26:27], v[20:21], v[22:23]")
        a("v_pk_add_f32 v[24:25], v[24:25], v[26:27]")
        a("v_add_f32 v24, v24, v25")
        allreduce64(a, 24, 25, "v_add_f32")
        a("v_mul_f32 v24, 0x3b000000, v24")
        for k in range(8): a(f"v_sub_f32 v{28+k}, v{16+k}, v24")
        a("v_mul_f32 v26, v28, v28")
        for k in range(1, 8): a(f"v_fma_f32 v26, v{28+k}, v{28+k}, v26")
        allreduce64(a, 26, 25, "v_add_f32")
        a("v_mul_f32 v26, 0x3b000000, v26")
        rnd(a, 24); rnd(a, 26)
        a("v_add_f32 v26, 0x3727c5ac, v26"); rnd(a, 26)
        a("v_sqrt_f32 v26, v26"); rnd(a, 26)
        a("v_rcp_f32 v26, v26")
        for k in range(8): a(f"v_sub_f32 v{16+k}, v{16+k}, v24")
        for k in range(4): a(f"v_cvt_pk_bf16_f32 v{28+k}, v{16+2*k}, v{17+2*k}")
        for k in range(4):
            a(f"v_lshlrev_b32 v{16+2*k}, 16, v{28+k}")
            a(f"v_and_b32 v{17+2*k}, s{S_HI}, v{28+k}")
        for k in range(8): a(f"v_mul_f32 v{16+k}, v{16+k}, v26")
        for k in range(4): a(f"v_cvt_pk_bf16_f32 v{12+k}, v{16+2*k}, v{17+2*k}")
        a("v_lshlrev_b32 v2, 6, v0")
        for k in range(4):
            a(f"v_and_b32 v28, 0xffff, v{12+k}")
            a(f"v_lshlrev_b32 v29, 16, v{12+k}")
            a(f"v_lshrrev_b32 v30, 16, v{12+k}")
            a(f"v_and_b32 v31, s{S_HI}, v{12+k}")
            a(f"ds_write_b128 v2, v[28:31] offset:{L_T+16*k}")
            if k < 3:
                a("s_nop 1")
        a("s_waitcnt lgkmcnt(0)")
        self.read_T(128)
        a("s_waitcnt lgkmcnt(0)")
        self.stamp(1)
        self.gemv16_compute(64, 128, 16, 0, 24, 25)
        self.get_tag()
        a("v_cvt_pk_bf16_f32 v26, v24, v25")
        a(f"v_mov_b32 v27, s{S_TAG}")
        a("v_and_b32 v2, 1, v0"); a("v_lshlrev_b32 v2, 5, v2")
        a("v_lshrrev_b32 v3, 4, v0"); a("v_lshlrev_b32 v3, 3, v3"); a("v_add_u32 v2, v2, v3")
        a(f"s_lshl_b32 s{S_T0}, s{S_G}, 11"); a(f"s_add_u32 s{S_T0}, s{S_T0}, {WS_QG}")
        a(f"s_lshl_b32 s{S_T0+1}, s{S_SP}, 6"); a(f"s_add_u32 s{S_T0+1}, s{S_T0+1}, s{S_T0}")
        a("s_mov_b32 exec_lo, 0x00030003"); a("s_mov_b32 exec_hi, 0x00030003")
        a(f"buffer_store_dwordx2 v[26:27], v2, {S(SRD_WS)}, s{S_T0+1} offen sc1")
        a("s_mov_b64 exec, -1")
        self.stamp(2)
        a("v_mov_b32 v28, 0")
        for k in range(4): a(f"v_dot2c_f32_bf16 v28, v{12+k}, v{8+k}")
        allreduce64(a, 28, 29, "v_add_f32")
        rnd(a, 28)
        a(f"v_mul_f32 v28, s{S_LOG2E}, v28")
        a("v_sub_f32 v28, 0, v28")
        a("v_exp_f32 v28, v28")
        a("v_add_f32 v28, 1.0, v28")
        a("v_rcp_f32 v28, v28")
        rnd(a, 28)
        a(f"v_mov_b32 v29, {L_RS}")
        a("ds_write_b32 v29, v28")
        if self.qdelay: a(f"s_sleep {self.qdelay}")
        a("v_lshlrev_b32 v2, 4, v0")
        a("v_lshlrev_b32 v3, 3, v0")
        first = True
        a(f"buffer_load_dwordx4 v[32:35], v2, {S(SRD_WS)}, s{S_T0} offen sc1")
        a(f"buffer_load_dwordx4 v[36:39], v2, {S(SRD_WS)}, s{S_T0} offen offset:1024 sc1")
        if self.early >= 0: a("s_barrier")
        a("s_branch L_Q_chk")
        a.label("L_Q_poll")
        a(f"buffer_load_dwordx4 v[32:35], v2, {S(SRD_WS)}, s{S_T0} offen sc1")
        a(f"buffer_load_dwordx4 v[36:39], v2, {S(SRD_WS)}, s{S_T0} offen offset:1024 sc1")
        a.label("L_Q_chk")
        a("s_waitcnt vmcnt(0)")
        a(f"v_xor_b32 v30, s{S_TAG}, v33")
        for r in (35, 37, 39):
            a(f"v_xor_b32 v31, s{S_TAG}, v{r}"); a("v_or_b32 v30, v30, v31")
        a("v_cmp_ne_u32 vcc, 0, v30")
        a("s_cbranch_vccz L_Q_got")
        self.spin_guard("L_Q_poll", "L_Q_got")
        a.label("L_Q_got")
        a(f"v_add_u32 v3, {L_Q}, v3")
        a("ds_write2_b32 v3, v32, v34 offset0:0 offset1:1")
        a("ds_write2_b32 v3, v36, v38 offset0:128 offset1:129")
        a("s_waitcnt lgkmcnt(0)")
        self.stamp(3)
        a("s_barrier")
        self.dump_stamps(4, 1)
        self.hdump([(2, 7, "max"), (3, 8, "max"), (1, 14, "max")], nsleep=18)
        a("s_branch L_end")

    def mwave(self):
        a = self.a
        a.label("L_M")
        a(f"s_cmp_ge_u32 s{S_SP}, 14")
        a("s_cbranch_scc1 L_end")
        a(f"s_mul_i32 s{S_T0+12}, s{S_G}, 14"); a(f"s_add_u32 s{S_T0+12}, s{S_T0+12}, s{S_SP}")
        a(f"s_lshl_b32 s{S_T0}, s{S_T0+12}, 5")
        for d, base in ((SRD_A, S_WG), (SRD_B, S_WU)):
            a(f"s_add_u32 s{d}, s{base}, s{S_T0}"); a(f"s_addc_u32 s{d+1}, s{base+1}, 0")
            a(f"s_sub_u32 s{d+2}, {512*3584}, s{S_T0}"); a(f"s_mov_b32 s{d+3}, 0x00020000")
        a(f"s_lshl_b32 s{S_T0+1}, s{S_T0+12}, 14")
        srd(a, SRD_C, S_WD, S_T0+1, size=16384)
        a("v_lshrrev_b32 v1, 1, v0"); a(f"s_mov_b32 s{S_T0+2}, 3584"); a(f"v_mul_lo_u32 v1, v1, s{S_T0+2}")
        a("v_and_b32 v2, 1, v0"); a("v_lshlrev_b32 v2, 4, v2"); a("v_add_u32 v1, v1, v2")
        self.get_tag()
        if self.mprio: a(f"s_setprio {self.mprio}")
        if self.a0: a("s_barrier")
        if self.early >= 0: a("s_barrier")
        a("s_barrier")
        self.stamp(1)
        self.gemv16_loads(SRD_A, 64, 3584)
        self.gemv16_loads(SRD_B, 128, 3584)
        a("v_lshlrev_b32 v3, 4, v0")
        a(f"s_mov_b32 s{S_OFF}, 0")
        for r in range(16):
            a(f"buffer_load_dwordx4 {V4(192+4*r)}, v3, {S(SRD_C)}, s{S_OFF} offen offset:{1024*(r&3)} {self.wflag}")
            if (r & 3) == 3 and r < 15: a(f"s_add_u32 s{S_OFF}, s{S_OFF}, 4096")
        self.read_T(32)
        a("s_waitcnt lgkmcnt(0)")
        self.gemv16_compute(64, 32, 16, 32, 24, 25)
        self.gemv16_compute(128, 32, 16, 16, 26, 27)
        for v in (24, 25, 26, 27): rnd(a, v)
        for v in (24, 25):
            a(f"v_mul_f32 v28, s{S_LOG2E}, v{v}")
            a("v_sub_f32 v28, 0, v28")
            a("v_exp_f32 v28, v28")
            a("v_add_f32 v28, 1.0, v28")
            a("v_rcp_f32 v28, v28")
            a(f"v_mul_f32 v{v}, v{v}, v28")
            rnd(a, v)
        a("v_mul_f32 v24, v24, v26"); a("v_mul_f32 v25, v25, v27")
        a("v_cvt_pk_bf16_f32 v24, v24, v25")
        SH = S_T0
        for k in range(8):
            a(f"v_readlane_b32 s{SH+k}, v24, {16*(k&3) + (k>>2)}")
        for k in range(8): a(f"v_mov_b32 v{16+k}, 0")
        TA, TB = 74, 75
        for r in range(16):
            k = r >> 1
            if r & 1 == 0:
                a(f"s_and_b32 s{TA}, s{SH+k}, 0xffff"); a(f"s_lshl_b32 s{TB}, s{SH+k}, 16")
            else:
                a(f"s_lshr_b32 s{TA}, s{SH+k}, 16"); a(f"s_and_b32 s{TB}, s{SH+k}, 0xffff0000")
            a(f"s_waitcnt vmcnt({15-r})")
            for j in range(4):
                a(f"v_dot2c_f32_bf16 v{16+2*j}, s{TA}, v{192+4*r+j}")
                a(f"v_dot2c_f32_bf16 v{17+2*j}, s{TB}, v{192+4*r+j}")
        a(f"s_lshl_b32 s{S_T0+12}, s{S_T0+12}, 12"); a(f"s_add_u32 s{S_T0+12}, s{S_T0+12}, {WS_YP}")
        for j in range(4):
            r = 32 + 4*j
            a(f"v_mov_b32 v{r}, v{16+2*j}"); a(f"v_mov_b32 v{r+1}, s{S_TAG}")
            a(f"v_mov_b32 v{r+2}, v{17+2*j}"); a(f"v_mov_b32 v{r+3}, s{S_TAG}")
        for j in range(4):
            a(f"buffer_store_dwordx4 {V4(32+4*j)}, v3, {S(SRD_WS)}, s{S_T0+12} offen offset:{1024*j} sc1")
        self.stamp(2)
        self.dump_stamps(3, 2)
        self.hdump([(2, 9, "max")], nsleep=8)
        a("s_waitcnt vmcnt(0)")
        a("s_branch L_end")

    def wwave(self):
        a = self.a
        a.label("L_W")
        RB, CB = S_T0+10, S_T0+11
        a(f"s_lshr_b32 s{RB}, s{S_SP}, 2"); a(f"s_and_b32 s{CB}, s{S_SP}, 3")
        a(f"s_lshl_b32 s{S_T0}, s{S_G}, 19"); a(f"s_lshl_b32 s{S_T0+1}, s{RB}, 16")
        a(f"s_add_u32 s{S_T0}, s{S_T0}, s{S_T0+1}")
        a(f"s_lshl_b32 s{S_T0+1}, s{CB}, 8"); a(f"s_add_u32 s{S_T0}, s{S_T0}, s{S_T0+1}")
        srd(a, SRD_A, S_WO, S_T0, size=65536)
        a(f"s_lshl_b32 s{S_T0+1}, s{CB}, 8"); a(f"s_sub_u32 s{SRD_A+2}, 65536, s{S_T0+1}")
        srd(a, SRD_B, S_X, size=1024)
        srd(a, SRD_C, S_OUT, size=1024)
        a("v_lshrrev_b32 v1, 4, v0"); a("v_lshlrev_b32 v1, 10, v1")
        a("v_and_b32 v2, 15, v0"); a("v_lshlrev_b32 v2, 4, v2"); a("v_add_u32 v1, v1, v2")
        self.get_tag()
        if self.mprio: a(f"s_setprio {self.mprio}")
        if self.a0: a("s_barrier")
        if self.early >= 0: a("s_barrier")
        a("s_barrier")
        WO = 64
        a(f"s_mov_b32 s{S_OFF}, 0")
        for i in range(16):
            a(f"buffer_load_dwordx4 {V4(WO+4*i)}, v1, {S(SRD_A)}, s{S_OFF} offen {self.wflag}")
            if i < 15: a(f"s_add_u32 s{S_OFF}, s{S_OFF}, 4096")
        a(f"s_lshl_b32 s{S_T0+2}, s2, 2")
        a(f"v_mov_b32 v2, s{S_T0+2}")
        a(f"buffer_load_dword v8, v2, {S(SRD_B)}, 0 offen")
        a(f"s_lshl_b32 s{S_T0+3}, s2, 4")
        a(f"v_mov_b32 v3, s{S_T0+3}")
        a(f"ds_read_b128 v[12:15], v3 offset:{L_T}")
        a(f"v_mov_b32 v3, {L_RS}")
        a("ds_read_b32 v9, v3")
        self.masksXY(5, 7, 28)
        for k in range(5):
            a(f"v_mov_b32 v{32+4*k}, 0"); a(f"v_mov_b32 v{33+4*k}, 0")
        for k in range(8): a(f"v_mov_b32 v{56+k}, 0")
        a(f"s_mov_b32 s{S_M1}, 0xffff0000"); a(f"s_mov_b32 s{S_M1+1}, 0xffff0000")
        a(f"s_mov_b32 s{S_M2}, 0"); a(f"s_mov_b32 s{S_M2+1}, -1")
        a(f"s_and_b32 s{S_T0+4}, s2, 3"); a(f"s_lshl_b32 s{S_T0+4}, s{S_T0+4}, 6")
        a(f"s_lshr_b32 s{S_T0+5}, s2, 2"); a(f"s_add_u32 s{S_T0+4}, s{S_T0+4}, s{S_T0+5}")
        a(f"s_lshl_b32 s{S_T0+4}, s{S_T0+4}, 4"); a(f"s_add_u32 s{S_T0+4}, s{S_T0+4}, {WS_YP}")
        a("v_lshlrev_b32 v10, 12, v0")
        a("v_add_u32 v11, 64, v0"); a("v_min_u32 v11, 111, v11"); a("v_lshlrev_b32 v11, 12, v11")
        a("s_sleep 64")
        a.label("L_W_ypoll")
        a(f"buffer_load_dwordx4 v[16:19], v10, {S(SRD_WS)}, s{S_T0+4} offen sc1")
        a(f"buffer_load_dwordx4 v[20:23], v11, {S(SRD_WS)}, s{S_T0+4} offen sc1")
        a("s_waitcnt vmcnt(0)")
        a(f"v_xor_b32 v30, s{S_TAG}, v17")
        for r in (19, 21, 23):
            a(f"v_xor_b32 v31, s{S_TAG}, v{r}"); a("v_or_b32 v30, v30, v31")
        a("v_cmp_ne_u32 vcc, 0, v30")
        a("s_cbranch_vccz L_W_ygot")
        self.spin_guard("L_W_ypoll", "L_W_ygot", sleep=16)
        a.label("L_W_ygot")
        a("v_cmp_gt_u32 vcc, 48, v0")
        a("v_cndmask_b32 v20, 0, v20, vcc"); a("v_cndmask_b32 v22, 0, v22, vcc")
        a("v_add_f32 v16, v16, v20"); a("v_add_f32 v18, v18, v22")
        allreduce64(a, 16, 30, "v_add_f32"); allreduce64(a, 18, 30, "v_add_f32")
        a("s_waitcnt lgkmcnt(0)")
        rnd(a, 16); rnd(a, 18)
        a("v_mul_f32 v16, v16, v9"); a("v_mul_f32 v18, v18, v9")
        rnd(a, 16); rnd(a, 18)
        a("v_add_f32 v16, v16, v13"); a("v_add_f32 v18, v18, v15")
        rnd(a, 16); rnd(a, 18)
        a("v_lshlrev_b32 v12, 16, v8"); a(f"v_and_b32 v14, s{S_HI}, v8")
        a(f"s_lshl_b32 s{S_T0+6}, s{S_G}, 3"); a(f"s_add_u32 s{S_T0+6}, s{S_T0+6}, s{RB}")
        a(f"s_lshl_b32 s{S_T0+6}, s{S_T0+6}, 12")
        a(f"s_lshl_b32 s{S_T0+7}, s{CB}, 10"); a(f"s_add_u32 s{S_T0+6}, s{S_T0+6}, s{S_T0+7}")
        a(f"s_add_u32 s{S_T0+6}, s{S_T0+6}, {WS_AP}")
        a("v_and_b32 v20, 15, v0"); a("v_lshlrev_b32 v20, 6, v20")
        a("v_lshrrev_b32 v21, 4, v0"); a("v_lshlrev_b32 v21, 4, v21"); a("v_add_u32 v20, v20, v21")
        a(f"s_lshl_b32 s{S_T0+7}, s2, 4"); a(f"s_add_u32 s{S_T0+7}, s{S_T0+7}, {WS_AP}")
        a("v_lshlrev_b32 v22, 2, v0")
        a("v_and_b32 v23, 3, v0"); a("v_lshlrev_b32 v23, 6, v23")
        a("v_lshrrev_b32 v24, 2, v0"); a("v_lshlrev_b32 v24, 2, v24"); a("v_add_u32 v23, v23, v24")
        a("v_lshrrev_b32 v24, 4, v0"); a("v_lshlrev_b32 v24, 6, v24")
        a(f"s_mov_b32 s{S_SPIN}, {SPIN_LIMIT}")
        self.stamp(1)
        a("s_barrier")
        a("s_barrier")
        self.stamp(2)
        for k in range(4):
            a(f"ds_read_b32 v{26+k}, v22 offset:{L_G+256*k}")
        a("s_waitcnt lgkmcnt(0)")
        a("v_add_f32 v26, v26, v27"); a("v_add_f32 v28, v28, v29"); a("v_add_f32 v26, v26, v28")
        a("v_cvt_pk_bf16_f32 v26, v26, v26")
        a(f"ds_write_b32 v23, v26 offset:{L_PP}")
        a("s_waitcnt lgkmcnt(0)")
        PPV = 128
        for k in range(4):
            a(f"ds_read_b128 {V4(PPV+4*k)}, v24 offset:{L_PP+16*k}")
        a("s_waitcnt lgkmcnt(0)")
        PB = 32; D0 = 56; D1 = 60
        for i0 in range(0, 16, 4):
            for r in range(4):
                a(f"v_and_b32 v{PB+4*r+2}, v{PPV+i0+r}, v5")
                a(f"v_and_b32 v{PB+4*r+3}, v{PPV+i0+r}, v7")
            for r in range(4):
                wb = WO + 4*(i0+r)
                a(f"v_mfma_f32_16x16x32_bf16 {V4(D0)}, {V4(PB+4*r+2)}, {V4(wb)}, {V4(D0)}")
                a(f"v_mfma_f32_16x16x32_bf16 {V4(D1)}, {V4(PB+4*r)}, {V4(wb)}, {V4(D1)}")
        m1 = f"s[{S_M1}:{S_M1+1}]"; m2 = f"s[{S_M2}:{S_M2+1}]"
        a(f"v_cndmask_b32 v26, v{D0}, v{D0+2}, {m1}")
        a(f"v_cndmask_b32 v27, v{D1}, v{D1+2}, {m1}")
        a(f"v_cndmask_b32 v28, v26, v27, {m2}")
        a(f"v_cndmask_b32 v26, v{D0+1}, v{D0+3}, {m1}")
        a(f"v_cndmask_b32 v27, v{D1+1}, v{D1+3}, {m1}")
        a(f"v_cndmask_b32 v30, v26, v27, {m2}")
        a(f"v_mov_b32 v29, s{S_TAG}"); a(f"v_mov_b32 v31, s{S_TAG}")
        a(f"buffer_store_dwordx4 v[28:31], v20, {S(SRD_WS)}, s{S_T0+6} offen sc1")
        self.stamp(3)
        a.label("L_W_apoll")
        a(f"buffer_load_dwordx4 v[24:27], v10, {S(SRD_WS)}, s{S_T0+7} offen sc1")
        a("s_waitcnt vmcnt(0)")
        a(f"v_xor_b32 v30, s{S_TAG}, v25")
        a(f"v_xor_b32 v31, s{S_TAG}, v27"); a("v_or_b32 v30, v30, v31")
        a("v_cmp_ne_u32 vcc, 0, v30")
        a("s_cbranch_vccz L_W_agot")
        self.spin_guard("L_W_apoll", "L_W_agot")
        a.label("L_W_agot")
        self.stamp(4)
        allreduce64(a, 24, 30, "v_add_f32"); allreduce64(a, 26, 30, "v_add_f32")
        rnd(a, 24); rnd(a, 26)
        a("v_add_f32 v24, v24, v12"); a("v_add_f32 v26, v26, v14")
        rnd(a, 24); rnd(a, 26)
        a("v_add_f32 v24, v24, v16"); a("v_add_f32 v26, v26, v18")
        a("v_cvt_pk_bf16_f32 v24, v24, v26")
        a("s_mov_b64 exec, 1")
        a(f"buffer_store_dword v24, v2, {S(SRD_C)}, 0 offen")
        a("s_cmp_lg_u32 s2, 0")
        a("s_cbranch_scc1 L_W_noep")
        a(f"v_mov_b32 v25, s{S_TAG}"); a("v_mov_b32 v26, 0")
        a(f"buffer_store_dword v25, v26, {S(SRD_WS)}, 0 offen sc1")
        a.label("L_W_noep")
        a("s_mov_b64 exec, -1")
        self.stamp(5)
        if self.spin:
            if self.spin.startswith("S"):
                a(f"v_mov_b32 v3, {L_RS+16}"); a("ds_read_b128 v[4:7], v3"); a("s_waitcnt lgkmcnt(0)")
                a("v_max_u32 v4, v4, v5"); a("v_max_u32 v6, v6, v7"); a("v_max_u32 v4, v4, v6")
                a(f"v_readfirstlane_b32 s{S_T0}, v4")
            else:
                k = int(self.spin[1:])
                a("s_waitcnt lgkmcnt(0)")
                a(f"s_mov_b32 s{S_T0}, s{S_TS+2*k}")
            a(f"s_add_u32 s{S_T0}, s{S_T0}, 10000")
            a.label("L_spin")
            a(f"s_memrealtime s[{S_T0+2}:{S_T0+3}]"); a("s_waitcnt lgkmcnt(0)")
            a(f"s_sub_u32 s{S_T0+4}, s{S_T0+2}, s{S_T0}")
            a(f"s_cmp_lt_i32 s{S_T0+4}, 0")
            a("s_cbranch_scc1 L_spin")
        self.dump_stamps(6, 3)
        self.hdump([(0, 0, "min"), (5, 1, "max"), (1, 10, "max"), (3, 11, "max"), (4, 12, "max"), (0, 13, "max")])
        a("s_waitcnt vmcnt(0)")

    def build(self):
        self.prologue()
        self.swave()
        self.qwave()
        self.mwave()
        self.wwave()
        self.a.label("L_end")
        self.a("s_endpgm")
        body = self.a.text()
        stub = open("parallel_sum__gqa_block_cached__moe_arch_mod__decode.s.ref").read()
        head = stub[:stub.index("; @launch")]
        txt = head + f"; @launch grid=(256,1,1) block=(448,1,1) lds={LDS_BYTES}\n"
        txt += f""".amdgcn_target "amdgcn-amd-amdhsa--gfx950"
.text
.globl {KNAME}
.p2align 8
.type {KNAME},@function
{KNAME}:
{body}
.section .rodata,"a"
.p2align 6
.amdhsa_kernel {KNAME}
  .amdhsa_next_free_vgpr 256
  .amdhsa_next_free_sgpr 102
  .amdhsa_accum_offset 256
  .amdhsa_group_segment_fixed_size 0
  .amdhsa_kernarg_size 104
  .amdhsa_user_sgpr_count 2
  .amdhsa_user_sgpr_kernarg_segment_ptr 1
  .amdhsa_system_sgpr_workgroup_id_x 1
.end_amdhsa_kernel
"""
        return txt

if __name__ == "__main__":
    import argparse
    p = argparse.ArgumentParser()
    p.add_argument("--dbg", action="store_true")
    p.add_argument("--early", type=int, default=3)
    p.add_argument("--qdelay", type=int, default=0)
    p.add_argument("--wflag", default="nt")
    p.add_argument("--noa0", action="store_true")
    p.add_argument("--pace", type=int, default=0)
    p.add_argument("--paceto", type=int, default=48)
    p.add_argument("--mprio", type=int, default=0)
    p.add_argument("--hdbg", action="store_true")
    p.add_argument("--spin", default=None)
    p.add_argument("-o", default="parallel_sum__gqa_block_cached__moe_arch_mod__decode.s")
    args = p.parse_args()
    g = Gen(dbg=args.dbg, early=args.early, qdelay=args.qdelay, wflag=args.wflag, a0=not args.noa0, pace=args.pace, mprio=args.mprio, paceto=args.paceto, hdbg=args.hdbg, spin=args.spin)
    t = g.build()
    open(args.o, "w").write(t)
    print("wrote", args.o, len(t), "bytes")
```

```python
import sys
from asmlib import Asm

KNAME = "parallel_sum__gqa_block_cached__moe_arch_mod__decode_kernel"
WS_QG = 0x1000
WS_ST = 0x8000
WS_AP = 0x10000
WS_YP = 0x80000
WS_OP = 0x100000
WS_DBG = 0x200000
WS_SIZE = 0x300000
L_T = 0; L_Q = 4096; L_O = 5120; L_ST = 13312; L_G = 13568; L_PP = 14592; L_RS = 14848
LDS_BYTES = 15360
SPIN_LIMIT = 40000

S_X, S_K, S_V, S_WQ, S_WO, S_WR, S_WG, S_WU, S_WD, S_OUT, S_WS = 8, 10, 12, 14, 16, 20, 22, 24, 26, 28, 32
S_G, S_SP, S_WAVE, S_TAG = 34, 35, 36, 37
SRD_WS = 40
SRD_A = 44
SRD_B = 48
SRD_C = 52
S_OFF = 56
S_SPIN = 57
S_HI = 58
S_LOG2E = 59
S_SCALE = 60
S_M1 = 62
S_M2 = 64
S_T0 = 66
S_TS = 80

def srd(a, d, base, off_sgpr=None, off_imm=0, size=0):
    if off_sgpr is not None:
        a(f"s_add_u32 s{d}, s{base}, s{off_sgpr}")
        a(f"s_addc_u32 s{d+1}, s{base+1}, 0")
    else:
        a(f"s_mov_b32 s{d}, s{base}")
        a(f"s_mov_b32 s{d+1}, s{base+1}")
    a(f"s_mov_b32 s{d+2}, {size:#x}")
    a(f"s_mov_b32 s{d+3}, 0x00020000")

def S(d): return f"s[{d}:{d+3}]"
def V4(r): return f"v[{r}:{r+3}]"
def V2(r): return f"v[{r}:{r+1}]"

def allreduce64(a, v, t, op):
    a(f"{op}_dpp v{v}, v{v}, v{v} quad_perm:[1,0,3,2] row_mask:0xf bank_mask:0xf")
    a(f"{op}_dpp v{v}, v{v}, v{v} quad_perm:[2,3,0,1] row_mask:0xf bank_mask:0xf")
    a(f"{op}_dpp v{v}, v{v}, v{v} row_half_mirror row_mask:0xf bank_mask:0xf")
    a(f"{op}_dpp v{v}, v{v}, v{v} row_mirror row_mask:0xf bank_mask:0xf")
    rows_reduce(a, v, t, op)

def rows_reduce(a, v, t, op):
    a(f"v_mov_b32 v{t}, v{v}")
    a(f"v_permlane16_swap_b32 v{v}, v{t}")
    a(f"{op} v{v}, v{v}, v{t}")
    a(f"v_mov_b32 v{t}, v{v}")
    a(f"v_permlane32_swap_b32 v{v}, v{t}")
    a(f"{op} v{v}, v{v}, v{t}")

def rnd(a, v):
    a(f"v_cvt_pk_bf16_f32 v{v}, v{v}, v{v}")
    a(f"v_and_b32 v{v}, s{S_HI}, v{v}")

class Gen:
    def __init__(self, dbg=False, early=3, qdelay=0, wflag="nt", a0=True, pace=0, mprio=0, paceto=48, hdbg=False, spin=None, perturb=None):
        self.hdbg = hdbg; self.spin = spin; self.perturb = perturb
        if hdbg: dbg = False
        self.dbg = dbg; self.early = early; self.qdelay = qdelay; self.wflag = wflag; self.a0 = a0
        self.pace = pace; self.mprio = mprio; self.paceto = paceto; self.nissued = None
        self.a = Asm()

    def hdump(self, items, nsleep=5):
        if not self.hdbg: return
        a = self.a
        a("s_waitcnt lgkmcnt(0) vmcnt(0)")
        a("s_setprio 0")
        for _ in range(nsleep): a("s_sleep 127")
        srd(a, SRD_C, 30, size=256)
        a("s_mov_b64 exec, 1")
        for (st, w, mode) in items:
            if mode == "min":
                a(f"s_not_b32 s{S_T0}, s{S_TS+2*st}")
                a(f"v_mov_b32 v2, s{S_T0}")
            else:
                a(f"v_mov_b32 v2, s{S_TS+2*st}")
            a(f"v_mov_b32 v3, {4*w}")
            a(f"buffer_atomic_umax v2, v3, {S(SRD_C)}, 0 offen sc1")
            a("s_waitcnt vmcnt(0)")
        a("s_mov_b64 exec, -1")

    def stamp(self, idx):
        if self.dbg or self.hdbg or self.spin:
            self.a(f"s_memrealtime s[{S_TS+2*idx}:{S_TS+2*idx+1}]")

    def dump_stamps(self, n, slot, vt=2):
        if not self.dbg: return
        a = self.a
        a("s_waitcnt lgkmcnt(0) vmcnt(0)")
        a(f"s_lshl_b32 s{S_T0}, s2, 10")
        a(f"s_lshl_b32 s{S_T0+1}, s{S_WAVE}, 7")
        a(f"s_add_u32 s{S_T0}, s{S_T0}, s{S_T0+1}")
        a(f"s_add_u32 s{S_T0}, s{S_T0}, {WS_DBG}")
        a("s_mov_b64 exec, 1")
        a(f"v_mov_b32 v{vt+2}, s{S_T0}")
        for i in range(n):
            a(f"v_mov_b32 v{vt}, s{S_TS+2*i}")
            a(f"v_mov_b32 v{vt+1}, s{S_TS+2*i+1}")
            a(f"buffer_store_dwordx2 {V2(vt)}, v{vt+2}, {S(SRD_WS)}, 0 offen offset:{8*i}")
            a("s_waitcnt vmcnt(0)")
        a("s_mov_b64 exec, -1")

    def spin_guard(self, lab_retry, lab_done, sleep=1):
        a = self.a
        a(f"s_sub_u32 s{S_SPIN}, s{S_SPIN}, 1")
        a(f"s_cmp_eq_u32 s{S_SPIN}, 0")
        a(f"s_cbranch_scc1 {lab_done}")
        if sleep: a(f"s_sleep {sleep}")
        a(f"s_branch {lab_retry}")

    def prologue(self):
        a = self.a
        a("s_cmp_ge_u32 s2, 256")
        a("s_cbranch_scc1 L_end")
        self.stamp(0)
        a("s_load_dwordx16 s[8:23], s[0:1], 0")
        a("s_load_dwordx8 s[24:31], s[0:1], 64")
        a(f"s_load_dwordx2 s[{S_WS}:{S_WS+1}], s[0:1], 96")
        a("v_lshrrev_b32 v1, 6, v0")
        a("v_and_b32 v0, 63, v0")
        a(f"s_and_b32 s{S_G}, s2, 7")
        a(f"s_lshr_b32 s{S_SP}, s2, 3")
        a(f"v_readfirstlane_b32 s{S_WAVE}, v1")
        a(f"s_mov_b32 s{S_HI}, 0xffff0000")
        a(f"s_mov_b32 s{S_LOG2E}, 0x3fb8aa3b")
        a(f"s_mov_b32 s{S_SPIN}, {SPIN_LIMIT}")
        a("s_waitcnt lgkmcnt(0)")
        a(f"s_load_dword s{S_TAG}, s[{S_WS}:{S_WS+1}], 0")
        srd(a, SRD_WS, S_WS, size=WS_SIZE)
        a(f"s_cmp_lt_u32 s{S_WAVE}, 4")
        a("s_cbranch_scc1 L_S")
        a(f"s_cmp_eq_u32 s{S_WAVE}, 4")
        a("s_cbranch_scc1 L_Q")
        a(f"s_cmp_eq_u32 s{S_WAVE}, 5")
        a("s_cbranch_scc1 L_M")
        a("s_branch L_W")

    def get_tag(self):
        a = self.a
        a("s_waitcnt lgkmcnt(0)")
        a(f"s_add_u32 s{S_TAG}, s{S_TAG}, 1")

    RING = 64
    def pace_wait(self):
        if self.nissued is None: return
        if self.pace and self.pace <= self.nissued < self.paceto:
            self.a(f"s_waitcnt vmcnt({self.pace-1})")
        self.nissued += 1
    def issueK(self, slot):
        a = self.a; b = self.RING + 64*slot
        for t in range(2):
            for c in range(4):
                r = b + 16*t + 4*c
                self.pace_wait()
                a(f"buffer_load_dwordx4 {V4(r)}, v{1+t}, {S(SRD_A)}, s{S_OFF} offen offset:{64*c} nt")
    def issueV(self, slot):
        a = self.a; b = self.RING + 64*slot + 32
        for r8 in range(8):
            r = b + 4*r8
            self.pace_wait()
            a(f"buffer_load_dwordx4 {V4(r)}, v{3+(r8>>2)}, {S(SRD_B)}, s{S_OFF} offen offset:{1024*(r8&3)} nt")
        a(f"s_add_u32 s{S_OFF}, s{S_OFF}, 32768")

    def group(self, slot, kwait, vwait, reissue):
        a = self.a
        b = self.RING + 64*slot
        SC = 32; PB = 10; D0 = 40; D1 = 44; Q = 48
        vM, vMC, vL, vMX, vMY = 6, 8, 9, 5, 7
        a(f"s_waitcnt vmcnt({kwait})")
        for c in range(4):
            for t in range(2):
                cc = "0" if c == 0 else V4(SC+4*t)
                a(f"v_mfma_f32_16x16x32_bf16 {V4(SC+4*t)}, {V4(b+16*t+4*c)}, {V4(Q+4*c)}, {cc}")
        if reissue: self.issueK(slot)
        for k in range(4):
            s0 = SC+2*k; t = 28+k
            a(f"v_cvt_pk_bf16_f32 v{t}, v{s0}, v{s0+1}")
        for k in range(4):
            s0 = SC+2*k; t = 28+k
            a(f"v_lshlrev_b32 v{s0}, 16, v{t}")
            a(f"v_and_b32 v{s0+1}, s{S_HI}, v{t}")
        for k in range(4):
            s0 = SC+2*k
            a(f"v_pk_mul_f32 {V2(s0)}, {V2(s0)}, s[{S_SCALE}:{S_SCALE+1}]")
        for k in range(4):
            s0 = SC+2*k; t = 28+k
            a(f"v_cvt_pk_bf16_f32 v{t}, v{s0}, v{s0+1}")
        for k in range(4):
            s0 = SC+2*k; t = 28+k
            a(f"v_lshlrev_b32 v{s0}, 16, v{t}")
            a(f"v_and_b32 v{s0+1}, s{S_HI}, v{t}")
        a(f"v_max3_f32 v28, v{SC}, v{SC+1}, v{SC+2}")
        a(f"v_max3_f32 v29, v{SC+3}, v{SC+4}, v{SC+5}")
        a(f"v_max3_f32 v28, v28, v{SC+6}, v{SC+7}")
        a(f"v_max_f32 v28, v28, v29")
        a(f"v_cmp_gt_f32 vcc, v28, v{vM}")
        skip = a.uniq("L_skip")
        a(f"s_cbranch_vccz {skip}")
        rows_reduce(a, 28, 29, "v_max_f32")
        a(f"v_max_f32 v28, v28, v{vM}")
        a(f"v_mul_f32 v29, s{S_LOG2E}, v28")
        a(f"v_sub_f32 v30, v{vMC}, v29")
        a(f"v_exp_f32 v30, v30")
        a(f"v_mov_b32 v{vM}, v28")
        a(f"v_mov_b32 v{vMC}, v29")
        a(f"v_mul_f32 v{vL}, v{vL}, v30")
        for h in range(4):
            a(f"v_mov_b32_dpp v31, v30 row_newbcast:{4*h} row_mask:{1<<h:#x} bank_mask:0xf")
        for k in range(8):
            a(f"v_mul_f32 v{D0+k}, v{D0+k}, v31")
        a.label(skip)
        for k in range(8):
            a(f"v_fma_f32 v{SC+k}, v{SC+k}, s{S_LOG2E}, -v{vMC}")
        for k in range(8):
            a(f"v_exp_f32 v{SC+k}, v{SC+k}")
        for t in range(2):
            for r in range(4):
                a(f"v_cvt_pk_bf16_f32 v{28+r}, v{SC+4*t+r}, v{SC+4*t+r}")
            for r in range(4):
                a(f"v_and_b32 v{PB+4*r+2}, v{28+r}, v{vMX}")
                a(f"v_and_b32 v{PB+4*r+3}, v{28+r}, v{vMY}")
            if t == 0:
                a(f"s_waitcnt vmcnt({vwait})")
            for r in range(4):
                vb = b + 32 + 4*(4*t+r)
                a(f"v_mfma_f32_16x16x32_bf16 {V4(D0)}, {V4(PB+4*r+2)}, {V4(vb)}, {V4(D0)}")
                a(f"v_mfma_f32_16x16x32_bf16 {V4(D1)}, {V4(PB+4*r)}, {V4(vb)}, {V4(D1)}")
        if reissue: self.issueV(slot)
        a(f"v_pk_add_f32 v[28:29], {V2(SC)}, {V2(SC+2)}")
        a(f"v_pk_add_f32 v[30:31], {V2(SC+4)}, {V2(SC+6)}")
        a(f"v_pk_add_f32 v[28:29], v[28:29], v[30:31]")
        a(f"v_add_f32 v28, v28, v29")
        a(f"v_add_f32 v{vL}, v{vL}, v28")

    def masksXY(self, vX, vY, t):
        a = self.a
        a(f"v_and_b32 v{t}, 3, v0")
        a(f"v_mov_b32 v{vX}, 0"); a(f"v_mov_b32 v{vY}, 0")
        a(f"v_mov_b32 v{t+1}, 0xffff")
        a(f"v_mov_b32 v{t+2}, s{S_HI}")
        a(f"v_cmp_eq_u32 vcc, 0, v{t}"); a(f"v_cndmask_b32 v{vX}, v{vX}, v{t+1}, vcc")
        a(f"v_cmp_eq_u32 vcc, 1, v{t}"); a(f"v_cndmask_b32 v{vX}, v{vX}, v{t+2}, vcc")
        a(f"v_cmp_eq_u32 vcc, 2, v{t}"); a(f"v_cndmask_b32 v{vY}, v{vY}, v{t+1}, vcc")
        a(f"v_cmp_eq_u32 vcc, 3, v{t}"); a(f"v_cndmask_b32 v{vY}, v{vY}, v{t+2}, vcc")

    def swave(self):
        a = self.a
        a.label("L_S")
        a(f"s_lshl_b32 s{S_T0}, s{S_G}, 24")
        a(f"s_lshl_b32 s{S_T0+1}, s{S_SP}, 19")
        a(f"s_add_u32 s{S_T0}, s{S_T0}, s{S_T0+1}")
        srd(a, SRD_A, S_K, S_T0, size=0x80000)
        srd(a, SRD_B, S_V, S_T0, size=0x80000)
        a("v_and_b32 v1, 3, v0"); a("v_lshlrev_b32 v1, 10, v1")
        a("v_bfe_u32 v2, v0, 2, 2"); a("v_lshlrev_b32 v2, 8, v2"); a("v_add_u32 v1, v1, v2")
        a("v_lshrrev_b32 v2, 4, v0"); a("v_lshlrev_b32 v2, 4, v2"); a("v_add_u32 v1, v1, v2")
        a("v_add_u32 v2, 0x1000, v1")
        a("v_lshlrev_b32 v3, 4, v0"); a("v_add_u32 v4, 0x1000, v3")
        a(f"s_lshl_b32 s{S_OFF}, s{S_WAVE}, 13")
        if self.a0: a("s_barrier")
        self.stamp(1)
        self.nissued = 0
        for slot in range(3):
            if slot == self.early: a("s_barrier")
            self.issueK(slot); self.issueV(slot)
        self.nissued = None
        if self.early >= 3: a("s_barrier")
        self.masksXY(5, 7, 28)
        for k in range(5):
            a(f"v_mov_b32 v{10+4*k}, 0"); a(f"v_mov_b32 v{11+4*k}, 0")
        for k in range(8): a(f"v_mov_b32 v{40+k}, 0")
        a("v_mov_b32 v6, 0xff800000"); a("v_mov_b32 v8, 0xff800000"); a("v_mov_b32 v9, 0")
        a(f"s_mov_b32 s{S_SCALE}, 0x3db504f3"); a(f"s_mov_b32 s{S_SCALE+1}, 0x3db504f3")
        a("v_bfe_u32 v28, v0, 2, 2"); a("v_lshlrev_b32 v28, 8, v28")
        a("v_lshrrev_b32 v29, 4, v0"); a("v_lshlrev_b32 v29, 4, v29"); a("v_add_u32 v28, v28, v29")
        self.stamp(2)
        a("s_barrier")
        self.stamp(3)
        for c in range(4):
            a(f"ds_read_b128 {V4(48+4*c)}, v28 offset:{L_Q+64*c}")
        a("s_waitcnt lgkmcnt(0)")
        a(f"s_mov_b32 s{S_T0}, 4")
        a.label("L_S_loop")
        for slot in range(3):
            self.group(slot, 40, 40, True)
        a(f"s_sub_u32 s{S_T0}, s{S_T0}, 1")
        a(f"s_cmp_lg_u32 s{S_T0}, 0")
        a("s_cbranch_scc1 L_S_loop")
        self.group(0, 40, 40, True)
        self.group(1, 40, 32, False)
        self.group(2, 24, 16, False)
        self.group(0, 8, 0, False)
        self.stamp(4)
        rows_reduce(a, 9, 28, "v_add_f32")
        a("v_lshlrev_b32 v28, 5, v0")
        a(f"s_lshl_b32 s{S_T0}, s{S_WAVE}, 11")
        a(f"v_add_u32 v28, s{S_T0}, v28")
        a(f"ds_write_b128 v28, {V4(40)} offset:{L_O}")
        a(f"ds_write_b128 v28, {V4(44)} offset:{L_O+16}")
        a("v_lshlrev_b32 v29, 3, v0")
        a(f"s_lshl_b32 s{S_T0}, s{S_WAVE}, 3")
        a(f"v_add_u32 v29, s{S_T0}, v29")
        a("s_mov_b64 exec, 0x1111")
        a(f"ds_write_b64 v29, v[8:9] offset:{L_ST}")
        a("s_mov_b64 exec, -1")
        self.get_tag()
        a("s_barrier")
        self.stamp(5)
        a(f"s_lshl_b32 s{S_T0}, s{S_WAVE}, 5")
        a(f"v_mov_b32 v28, s{S_T0}")
        a(f"ds_read_b128 v[64:67], v28 offset:{L_ST}")
        a(f"ds_read_b128 v[68:71], v28 offset:{L_ST+16}")
        a(f"s_lshl_b32 s{S_T0}, s{S_WAVE}, 9")
        a("v_lshlrev_b32 v29, 3, v0")
        a(f"v_add_u32 v29, s{S_T0}, v29")
        for k in range(4):
            a(f"ds_read_b64 {V2(72+2*k)}, v29 offset:{L_O+2048*k}")
        a("s_waitcnt lgkmcnt(4)")
        a("v_max3_f32 v30, v64, v66, v68")
        a("v_max_f32 v30, v30, v70")
        for k in range(4):
            a(f"v_sub_f32 v{64+2*k}, v{64+2*k}, v30")
        for k in range(4):
            a(f"v_exp_f32 v{64+2*k}, v{64+2*k}")
        a("v_mul_f32 v82, v64, v65")
        a("v_fma_f32 v82, v66, v67, v82")
        a("v_fma_f32 v82, v68, v69, v82")
        a("v_fma_f32 v82, v70, v71, v82")
        a("s_waitcnt lgkmcnt(0)")
        a("v_mul_f32 v84, v64, v72"); a("v_mul_f32 v86, v64, v73")
        for k in range(1, 4):
            a(f"v_fma_f32 v84, v{64+2*k}, v{72+2*k}, v84")
            a(f"v_fma_f32 v86, v{64+2*k}, v{73+2*k}, v86")
        a(f"v_mov_b32 v85, s{S_TAG}"); a(f"v_mov_b32 v87, s{S_TAG}")
        a("v_mov_b32 v80, v30"); a(f"v_mov_b32 v81, s{S_TAG}"); a(f"v_mov_b32 v83, s{S_TAG}")
        a(f"s_lshl_b32 s{S_T0}, s{S_G}, 5"); a(f"s_add_u32 s{S_T0}, s{S_T0}, s{S_SP}")
        a(f"s_lshl_b32 s{S_T0}, s{S_T0}, 12")
        a(f"s_lshl_b32 s{S_T0+1}, s{S_WAVE}, 10")
        a(f"s_add_u32 s{S_T0}, s{S_T0}, s{S_T0+1}")
        a(f"s_add_u32 s{S_T0}, s{S_T0}, {WS_OP}")
        a("v_lshlrev_b32 v28, 4, v0")
        a(f"buffer_store_dwordx4 v[84:87], v28, {S(SRD_WS)}, s{S_T0} offen sc1")
        a(f"s_lshl_b32 s{S_T0+1}, s{S_G}, 2"); a(f"s_add_u32 s{S_T0+1}, s{S_T0+1}, s{S_WAVE}")
        a(f"s_lshl_b32 s{S_T0+1}, s{S_T0+1}, 5"); a(f"s_add_u32 s{S_T0+1}, s{S_T0+1}, s{S_SP}")
        a(f"s_lshl_b32 s{S_T0+1}, s{S_T0+1}, 4"); a(f"s_add_u32 s{S_T0+1}, s{S_T0+1}, {WS_ST}")
        a("v_mov_b32 v29, 0")
        a("s_mov_b64 exec, 1")
        a(f"buffer_store_dwordx4 v[80:83], v29, {S(SRD_WS)}, s{S_T0+1} offen sc1")
        a("s_mov_b64 exec, -1")
        self.stamp(6)
        a(f"s_lshr_b32 s{S_T0+2}, s{S_SP}, 3")
        a(f"s_bfe_u32 s{S_T0+3}, s{S_SP}, 0x10002")
        a(f"s_lshl_b32 s{S_T0}, s{S_G}, 5"); a(f"s_lshl_b32 s{S_T0+1}, s{S_WAVE}, 3")
        a(f"s_add_u32 s{S_T0}, s{S_T0}, s{S_T0+1}"); a(f"s_lshl_b32 s{S_T0}, s{S_T0}, 12")
        a(f"s_lshl_b32 s{S_T0+1}, s{S_T0+2}, 10"); a(f"s_add_u32 s{S_T0}, s{S_T0}, s{S_T0+1}")
        a(f"s_lshl_b32 s{S_T0+1}, s{S_T0+3}, 9"); a(f"s_add_u32 s{S_T0}, s{S_T0}, s{S_T0+1}")
        a(f"s_add_u32 s{S_T0+4}, s{S_T0}, {WS_OP}")
        for u in range(1, 4):
            a(f"s_add_u32 s{S_T0+4+u}, s{S_T0+4}, {8192*u}")
        a("v_lshrrev_b32 v28, 5, v0"); a("v_lshlrev_b32 v28, 12, v28")
        a("v_and_b32 v29, 31, v0"); a("v_lshlrev_b32 v29, 4, v29"); a("v_add_u32 v28, v28, v29")
        a(f"s_lshl_b32 s{S_T0+8}, s{S_G}, 2"); a(f"s_add_u32 s{S_T0+8}, s{S_T0+8}, s{S_T0+2}")
        a(f"s_lshl_b32 s{S_T0+8}, s{S_T0+8}, 9"); a(f"s_add_u32 s{S_T0+8}, s{S_T0+8}, {WS_ST}")
        a.label("L_S_poll")
        for u in range(4):
            a(f"buffer_load_dwordx4 {V4(64+4*u)}, v28, {S(SRD_WS)}, s{S_T0+4+u} offen sc1")
        a(f"buffer_load_dwordx4 v[80:83], v29, {S(SRD_WS)}, s{S_T0+8} offen sc1")
        a("s_waitcnt vmcnt(0)")
        a(f"v_xor_b32 v30, s{S_TAG}, v65")
        for r in [67, 69, 71, 73, 75, 77, 79, 81, 83]:
            a(f"v_xor_b32 v31, s{S_TAG}, v{r}")
            a("v_or_b32 v30, v30, v31")
        a("v_cmp_ne_u32 vcc, 0, v30")
        a("s_cbranch_vccz L_S_got")
        self.spin_guard("L_S_poll", "L_S_got")
        a.label("L_S_got")
        self.stamp(7)
        a("v_mov_b32 v30, v80")
        allreduce64(a, 30, 31, "v_max_f32")
        a("v_sub_f32 v80, v80, v30")
        a("v_exp_f32 v80, v80")
        a("v_mul_f32 v82, v80, v82")
        allreduce64(a, 82, 31, "v_add_f32")
        a("v_rcp_f32 v82, v82")
        a("v_add_f32 v80, v80, v80")
        a("v_mul_f32 v80, v80, v82")
        a("v_lshrrev_b32 v30, 5, v0")
        a(f"s_lshl_b32 s{S_T0}, s{S_WAVE}, 3")
        a(f"v_add_u32 v30, s{S_T0}, v30")
        a("v_lshlrev_b32 v30, 2, v30")
        for u in range(4):
            if u: a("v_add_u32 v30, 8, v30")
            a(f"ds_bpermute_b32 v{84+u}, v30, v80")
        a("s_waitcnt lgkmcnt(0)")
        a("v_mul_f32 v88, v84, v64"); a("v_mul_f32 v89, v84, v66")
        for u in range(1, 4):
            a(f"v_fma_f32 v88, v{84+u}, v{64+4*u}, v88")
            a(f"v_fma_f32 v89, v{84+u}, v{66+4*u}, v89")
        a("v_mov_b32 v90, v88"); a("v_mov_b32 v91, v89")
        a("v_permlane32_swap_b32 v88, v90"); a("v_permlane32_swap_b32 v89, v91")
        a("v_add_f32 v88, v88, v90"); a("v_add_f32 v89, v89, v91")
        a("v_and_b32 v30, 31, v0"); a("v_lshlrev_b32 v30, 3, v30")
        a(f"s_lshl_b32 s{S_T0}, s{S_WAVE}, 8")
        a(f"v_add_u32 v30, s{S_T0}, v30")
        a(f"ds_write_b64 v30, v[88:89] offset:{L_G}")
        a("s_waitcnt lgkmcnt(0)")
        if self.spin and self.spin.startswith("S"):
            k = int(self.spin[1:])
            a(f"s_lshl_b32 s{S_T0}, s{S_WAVE}, 2"); a(f"s_add_u32 s{S_T0}, s{S_T0}, {L_RS+16}")
            a(f"v_mov_b32 v30, s{S_T0}"); a(f"v_mov_b32 v31, s{S_TS+2*k}")
            a("ds_write_b32 v30, v31"); a("s_waitcnt lgkmcnt(0)")
        a("s_barrier")
        self.stamp(8)
        if self.dbg:
            a(f"s_getreg_b32 s{S_TS+18}, hwreg(HW_REG_XCC_ID)"); a(f"s_mov_b32 s{S_TS+19}, 0")
            self.dump_stamps(10, 0)
        self.hdump([(3, 2, "max"), (4, 3, "max"), (4, 4, "min"), (5, 5, "max"), (7, 6, "max"), (2, 15, "max")])
        a("s_branch L_end")

    def gemv16_loads(self, srd_, reg, rowstride):
        a = self.a
        a(f"s_mov_b32 s{S_OFF}, 0")
        for i in range(16):
            a(f"buffer_load_dwordx4 {V4(reg+4*i)}, v1, {S(srd_)}, s{S_OFF} offen {self.wflag}")
            if i < 15: a(f"s_add_u32 s{S_OFF}, s{S_OFF}, {32*rowstride}")

    def gemv16_compute(self, reg, tb, acc, wait_first, outA, outB):
        a = self.a
        for k in range(8): a(f"v_mov_b32 v{acc+k}, 0")
        for i in range(16):
            if wait_first is not None:
                a(f"s_waitcnt vmcnt({wait_first + 15 - i})")
            for k in range(4):
                a(f"v_dot2c_f32_bf16 v{acc+2*k}, v{reg+4*i+k}, v{tb+2*i}")
                a(f"v_dot2c_f32_bf16 v{acc+2*k+1}, v{reg+4*i+k}, v{tb+2*i+1}")
        for k in range(4):
            a(f"v_permlane32_swap_b32 v{acc+k}, v{acc+4+k}")
        for k in range(4):
            a(f"v_add_f32 v{acc+k}, v{acc+k}, v{acc+4+k}")
        a(f"v_permlane16_swap_b32 v{acc}, v{acc+2}")
        a(f"v_permlane16_swap_b32 v{acc+1}, v{acc+3}")
        a(f"v_add_f32 v{outA}, v{acc}, v{acc+2}")
        a(f"v_add_f32 v{outB}, v{acc+1}, v{acc+3}")
        for rr in (2, 4, 8):
            a(f"v_add_f32_dpp v{outA}, v{outA}, v{outA} row_ror:{rr} row_mask:0xf bank_mask:0xf")
            a(f"v_add_f32_dpp v{outB}, v{outB}, v{outB} row_ror:{rr} row_mask:0xf bank_mask:0xf")

    def read_T(self, tb):
        a = self.a
        a("v_lshrrev_b32 v2, 1, v0"); a("v_lshlrev_b32 v2, 3, v2")
        for i in range(16):
            a(f"ds_read_b64 {V2(tb+2*i)}, v2 offset:{L_T+256*i}")

    def qwave(self):
        a = self.a
        a.label("L_Q")
        a("s_setprio 3")
        srd(a, SRD_A, S_X, size=1024)
        srd(a, SRD_B, S_WR, size=1024)
        a(f"s_lshl_b32 s{S_T0}, s{S_G}, 10"); a(f"s_lshl_b32 s{S_T0+1}, s{S_SP}, 5")
        a(f"s_add_u32 s{S_T0}, s{S_T0}, s{S_T0+1}")
        a(f"s_add_u32 s{SRD_C}, s{S_WQ}, s{S_T0}"); a(f"s_addc_u32 s{SRD_C+1}, s{S_WQ+1}, 0")
        a(f"s_sub_u32 s{SRD_C+2}, {512*8192}, s{S_T0}"); a(f"s_mov_b32 s{SRD_C+3}, 0x00020000")
        a("v_lshlrev_b32 v3, 4, v0")
        a(f"buffer_load_dwordx4 v[4:7], v3, {S(SRD_A)}, 0 offen")
        a(f"buffer_load_dwordx4 v[8:11], v3, {S(SRD_B)}, 0 offen")
        a("v_lshrrev_b32 v1, 1, v0"); a("v_lshlrev_b32 v1, 13, v1")
        a("v_and_b32 v2, 1, v0"); a("v_lshlrev_b32 v2, 4, v2"); a("v_add_u32 v1, v1, v2")
        self.gemv16_loads(SRD_C, 64, 8192)
        if self.a0: a("s_barrier")
        a("s_waitcnt vmcnt(17)")
        for k in range(4):
            a(f"v_lshlrev_b32 v{16+2*k}, 16, v{4+k}")
            a(f"v_and_b32 v{17+2*k}, s{S_HI}, v{4+k}")
        a("v_pk_add_f32 v[24:25], v[16:17], v[18:19]")
        a("v_pk_add_f32 v[26:27], v[20:21], v[22:23]")
        a("v_pk_add_f32 v[24:25], v[24:25], v[26:27]")
        a("v_add_f32 v24, v24, v25")
        allreduce64(a, 24, 25, "v_add_f32")
        a("v_mul_f32 v24, 0x3b000000, v24")
        for k in range(8): a(f"v_sub_f32 v{28+k}, v{16+k}, v24")
        a("v_mul_f32 v26, v28, v28")
        for k in range(1, 8): a(f"v_fma_f32 v26, v{28+k}, v{28+k}, v26")
        allreduce64(a, 26, 25, "v_add_f32")
        a("v_mul_f32 v26, 0x3b000000, v26")
        rnd(a, 24); rnd(a, 26)
        a("v_add_f32 v26, 0x3727c5ac, v26"); rnd(a, 26)
        a("v_sqrt_f32 v26, v26"); rnd(a, 26)
        a("v_rcp_f32 v26, v26")
        for k in range(8): a(f"v_sub_f32 v{16+k}, v{16+k}, v24")
        for k in range(4): a(f"v_cvt_pk_bf16_f32 v{28+k}, v{16+2*k}, v{17+2*k}")
        for k in range(4):
            a(f"v_lshlrev_b32 v{16+2*k}, 16, v{28+k}")
            a(f"v_and_b32 v{17+2*k}, s{S_HI}, v{28+k}")
        for k in range(8): a(f"v_mul_f32 v{16+k}, v{16+k}, v26")
        for k in range(4): a(f"v_cvt_pk_bf16_f32 v{12+k}, v{16+2*k}, v{17+2*k}")
        a("v_lshlrev_b32 v2, 6, v0")
        for k in range(4):
            a(f"v_and_b32 v28, 0xffff, v{12+k}")
            a(f"v_lshlrev_b32 v29, 16, v{12+k}")
            a(f"v_lshrrev_b32 v30, 16, v{12+k}")
            a(f"v_and_b32 v31, s{S_HI}, v{12+k}")
            a(f"ds_write_b128 v2, v[28:31] offset:{L_T+16*k}")
            if k < 3:
                a("s_nop 1")
        a("s_waitcnt lgkmcnt(0)")
        self.read_T(128)
        a("s_waitcnt lgkmcnt(0)")
        self.stamp(1)
        self.gemv16_compute(64, 128, 16, 0, 24, 25)
        self.get_tag()
        a("v_cvt_pk_bf16_f32 v26, v24, v25")
        a(f"v_mov_b32 v27, s{S_TAG}")
        a("v_and_b32 v2, 1, v0"); a("v_lshlrev_b32 v2, 5, v2")
        a("v_lshrrev_b32 v3, 4, v0"); a("v_lshlrev_b32 v3, 3, v3"); a("v_add_u32 v2, v2, v3")
        a(f"s_lshl_b32 s{S_T0}, s{S_G}, 11"); a(f"s_add_u32 s{S_T0}, s{S_T0}, {WS_QG}")
        a(f"s_lshl_b32 s{S_T0+1}, s{S_SP}, 6"); a(f"s_add_u32 s{S_T0+1}, s{S_T0+1}, s{S_T0}")
        a("s_mov_b32 exec_lo, 0x00030003"); a("s_mov_b32 exec_hi, 0x00030003")
        a(f"buffer_store_dwordx2 v[26:27], v2, {S(SRD_WS)}, s{S_T0+1} offen sc1")
        a("s_mov_b64 exec, -1")
        self.stamp(2)
        a("v_mov_b32 v28, 0")
        for k in range(4): a(f"v_dot2c_f32_bf16 v28, v{12+k}, v{8+k}")
        allreduce64(a, 28, 29, "v_add_f32")
        rnd(a, 28)
        a(f"v_mul_f32 v28, s{S_LOG2E}, v28")
        a("v_sub_f32 v28, 0, v28")
        a("v_exp_f32 v28, v28")
        a("v_add_f32 v28, 1.0, v28")
        a("v_rcp_f32 v28, v28")
        rnd(a, 28)
        a(f"v_mov_b32 v29, {L_RS}")
        a("ds_write_b32 v29, v28")
        if self.qdelay: a(f"s_sleep {self.qdelay}")
        a("v_lshlrev_b32 v2, 4, v0")
        a("v_lshlrev_b32 v3, 3, v0")
        first = True
        a(f"buffer_load_dwordx4 v[32:35], v2, {S(SRD_WS)}, s{S_T0} offen sc1")
        a(f"buffer_load_dwordx4 v[36:39], v2, {S(SRD_WS)}, s{S_T0} offen offset:1024 sc1")
        if self.early >= 0: a("s_barrier")
        a("s_branch L_Q_chk")
        a.label("L_Q_poll")
        a(f"buffer_load_dwordx4 v[32:35], v2, {S(SRD_WS)}, s{S_T0} offen sc1")
        a(f"buffer_load_dwordx4 v[36:39], v2, {S(SRD_WS)}, s{S_T0} offen offset:1024 sc1")
        a.label("L_Q_chk")
        a("s_waitcnt vmcnt(0)")
        a(f"v_xor_b32 v30, s{S_TAG}, v33")
        for r in (35, 37, 39):
            a(f"v_xor_b32 v31, s{S_TAG}, v{r}"); a("v_or_b32 v30, v30, v31")
        a("v_cmp_ne_u32 vcc, 0, v30")
        a("s_cbranch_vccz L_Q_got")
        self.spin_guard("L_Q_poll", "L_Q_got")
        a.label("L_Q_got")
        a(f"v_add_u32 v3, {L_Q}, v3")
        a("ds_write2_b32 v3, v32, v34 offset0:0 offset1:1")
        a("ds_write2_b32 v3, v36, v38 offset0:128 offset1:129")
        a("s_waitcnt lgkmcnt(0)")
        self.stamp(3)
        a("s_barrier")
        self.dump_stamps(4, 1)
        self.hdump([(2, 7, "max"), (3, 8, "max"), (1, 14, "max")], nsleep=18)
        a("s_branch L_end")

    def mwave(self):
        a = self.a
        a.label("L_M")
        a(f"s_cmp_ge_u32 s{S_SP}, 14")
        a("s_cbranch_scc1 L_end")
        a(f"s_mul_i32 s{S_T0+12}, s{S_G}, 14"); a(f"s_add_u32 s{S_T0+12}, s{S_T0+12}, s{S_SP}")
        a(f"s_lshl_b32 s{S_T0}, s{S_T0+12}, 5")
        for d, base in ((SRD_A, S_WG), (SRD_B, S_WU)):
            a(f"s_add_u32 s{d}, s{base}, s{S_T0}"); a(f"s_addc_u32 s{d+1}, s{base+1}, 0")
            a(f"s_sub_u32 s{d+2}, {512*3584}, s{S_T0}"); a(f"s_mov_b32 s{d+3}, 0x00020000")
        a(f"s_lshl_b32 s{S_T0+1}, s{S_T0+12}, 14")
        srd(a, SRD_C, S_WD, S_T0+1, size=16384)
        a("v_lshrrev_b32 v1, 1, v0"); a(f"s_mov_b32 s{S_T0+2}, 3584"); a(f"v_mul_lo_u32 v1, v1, s{S_T0+2}")
        a("v_and_b32 v2, 1, v0"); a("v_lshlrev_b32 v2, 4, v2"); a("v_add_u32 v1, v1, v2")
        self.get_tag()
        if self.mprio: a(f"s_setprio {self.mprio}")
        if self.a0: a("s_barrier")
        if self.early >= 0: a("s_barrier")
        a("s_barrier")
        self.stamp(1)
        self.gemv16_loads(SRD_A, 64, 3584)
        self.gemv16_loads(SRD_B, 128, 3584)
        a("v_lshlrev_b32 v3, 4, v0")
        a(f"s_mov_b32 s{S_OFF}, 0")
        for r in range(16):
            a(f"buffer_load_dwordx4 {V4(192+4*r)}, v3, {S(SRD_C)}, s{S_OFF} offen offset:{1024*(r&3)} {self.wflag}")
            if (r & 3) == 3 and r < 15: a(f"s_add_u32 s{S_OFF}, s{S_OFF}, 4096")
        self.read_T(32)
        a("s_waitcnt lgkmcnt(0)")
        self.gemv16_compute(64, 32, 16, 32, 24, 25)
        self.gemv16_compute(128, 32, 16, 16, 26, 27)
        for v in (24, 25, 26, 27): rnd(a, v)
        for v in (24, 25):
            a(f"v_mul_f32 v28, s{S_LOG2E}, v{v}")
            a("v_sub_f32 v28, 0, v28")
            a("v_exp_f32 v28, v28")
            a("v_add_f32 v28, 1.0, v28")
            a("v_rcp_f32 v28, v28")
            a(f"v_mul_f32 v{v}, v{v}, v28")
            rnd(a, v)
        a("v_mul_f32 v24, v24, v26"); a("v_mul_f32 v25, v25, v27")
        a("v_cvt_pk_bf16_f32 v24, v24, v25")
        SH = S_T0
        for k in range(8):
            a(f"v_readlane_b32 s{SH+k}, v24, {16*(k&3) + (k>>2)}")
        for k in range(8): a(f"v_mov_b32 v{16+k}, 0")
        TA, TB = 74, 75
        for r in range(16):
            k = r >> 1
            if r & 1 == 0:
                a(f"s_and_b32 s{TA}, s{SH+k}, 0xffff"); a(f"s_lshl_b32 s{TB}, s{SH+k}, 16")
            else:
                a(f"s_lshr_b32 s{TA}, s{SH+k}, 16"); a(f"s_and_b32 s{TB}, s{SH+k}, 0xffff0000")
            a(f"s_waitcnt vmcnt({15-r})")
            for j in range(4):
                a(f"v_dot2c_f32_bf16 v{16+2*j}, s{TA}, v{192+4*r+j}")
                a(f"v_dot2c_f32_bf16 v{17+2*j}, s{TB}, v{192+4*r+j}")
        a(f"s_lshl_b32 s{S_T0+12}, s{S_T0+12}, 12"); a(f"s_add_u32 s{S_T0+12}, s{S_T0+12}, {WS_YP}")
        for j in range(4):
            r = 32 + 4*j
            a(f"v_mov_b32 v{r}, v{16+2*j}"); a(f"v_mov_b32 v{r+1}, s{S_TAG}")
            a(f"v_mov_b32 v{r+2}, v{17+2*j}"); a(f"v_mov_b32 v{r+3}, s{S_TAG}")
        for j in range(4):
            a(f"buffer_store_dwordx4 {V4(32+4*j)}, v3, {S(SRD_WS)}, s{S_T0+12} offen offset:{1024*j} sc1")
        self.stamp(2)
        self.dump_stamps(3, 2)
        self.hdump([(2, 9, "max")], nsleep=8)
        a("s_waitcnt vmcnt(0)")
        a("s_branch L_end")

    def wwave(self):
        a = self.a
        a.label("L_W")
        RB, CB = S_T0+10, S_T0+11
        a(f"s_lshr_b32 s{RB}, s{S_SP}, 2"); a(f"s_and_b32 s{CB}, s{S_SP}, 3")
        a(f"s_lshl_b32 s{S_T0}, s{S_G}, 19"); a(f"s_lshl_b32 s{S_T0+1}, s{RB}, 16")
        a(f"s_add_u32 s{S_T0}, s{S_T0}, s{S_T0+1}")
        a(f"s_lshl_b32 s{S_T0+1}, s{CB}, 8"); a(f"s_add_u32 s{S_T0}, s{S_T0}, s{S_T0+1}")
        srd(a, SRD_A, S_WO, S_T0, size=65536)
        a(f"s_lshl_b32 s{S_T0+1}, s{CB}, 8"); a(f"s_sub_u32 s{SRD_A+2}, 65536, s{S_T0+1}")
        srd(a, SRD_B, S_X, size=1024)
        srd(a, SRD_C, S_OUT, size=1024)
        a("v_lshrrev_b32 v1, 4, v0"); a("v_lshlrev_b32 v1, 10, v1")
        a("v_and_b32 v2, 15, v0"); a("v_lshlrev_b32 v2, 4, v2"); a("v_add_u32 v1, v1, v2")
        self.get_tag()
        if self.mprio: a(f"s_setprio {self.mprio}")
        if self.a0: a("s_barrier")
        if self.early >= 0: a("s_barrier")
        a("s_barrier")
        WO = 64
        a(f"s_mov_b32 s{S_OFF}, 0")
        for i in range(16):
            a(f"buffer_load_dwordx4 {V4(WO+4*i)}, v1, {S(SRD_A)}, s{S_OFF} offen {self.wflag}")
            if i < 15: a(f"s_add_u32 s{S_OFF}, s{S_OFF}, 4096")
        a(f"s_lshl_b32 s{S_T0+2}, s2, 2")
        a(f"v_mov_b32 v2, s{S_T0+2}")
        a(f"buffer_load_dword v8, v2, {S(SRD_B)}, 0 offen")
        a(f"s_lshl_b32 s{S_T0+3}, s2, 4")
        a(f"v_mov_b32 v3, s{S_T0+3}")
        a(f"ds_read_b128 v[12:15], v3 offset:{L_T}")
        a(f"v_mov_b32 v3, {L_RS}")
        a("ds_read_b32 v9, v3")
        self.masksXY(5, 7, 28)
        for k in range(5):
            a(f"v_mov_b32 v{32+4*k}, 0"); a(f"v_mov_b32 v{33+4*k}, 0")
        for k in range(8): a(f"v_mov_b32 v{56+k}, 0")
        a(f"s_mov_b32 s{S_M1}, 0xffff0000"); a(f"s_mov_b32 s{S_M1+1}, 0xffff0000")
        a(f"s_mov_b32 s{S_M2}, 0"); a(f"s_mov_b32 s{S_M2+1}, -1")
        a(f"s_and_b32 s{S_T0+4}, s2, 3"); a(f"s_lshl_b32 s{S_T0+4}, s{S_T0+4}, 6")
        a(f"s_lshr_b32 s{S_T0+5}, s2, 2"); a(f"s_add_u32 s{S_T0+4}, s{S_T0+4}, s{S_T0+5}")
        a(f"s_lshl_b32 s{S_T0+4}, s{S_T0+4}, 4"); a(f"s_add_u32 s{S_T0+4}, s{S_T0+4}, {WS_YP}")
        a("v_lshlrev_b32 v10, 12, v0")
        a("v_add_u32 v11, 64, v0"); a("v_min_u32 v11, 111, v11"); a("v_lshlrev_b32 v11, 12, v11")
        a("s_sleep 64")
        a.label("L_W_ypoll")
        a(f"buffer_load_dwordx4 v[16:19], v10, {S(SRD_WS)}, s{S_T0+4} offen sc1")
        a(f"buffer_load_dwordx4 v[20:23], v11, {S(SRD_WS)}, s{S_T0+4} offen sc1")
        a("s_waitcnt vmcnt(0)")
        a(f"v_xor_b32 v30, s{S_TAG}, v17")
        for r in (19, 21, 23):
            a(f"v_xor_b32 v31, s{S_TAG}, v{r}"); a("v_or_b32 v30, v30, v31")
        a("v_cmp_ne_u32 vcc, 0, v30")
        a("s_cbranch_vccz L_W_ygot")
        self.spin_guard("L_W_ypoll", "L_W_ygot", sleep=16)
        a.label("L_W_ygot")
        a("v_cmp_gt_u32 vcc, 48, v0")
        a("v_cndmask_b32 v20, 0, v20, vcc"); a("v_cndmask_b32 v22, 0, v22, vcc")
        a("v_add_f32 v16, v16, v20"); a("v_add_f32 v18, v18, v22")
        allreduce64(a, 16, 30, "v_add_f32"); allreduce64(a, 18, 30, "v_add_f32")
        a("s_waitcnt lgkmcnt(0)")
        rnd(a, 16); rnd(a, 18)
        a("v_mul_f32 v16, v16, v9"); a("v_mul_f32 v18, v18, v9")
        rnd(a, 16); rnd(a, 18)
        a("v_add_f32 v16, v16, v13"); a("v_add_f32 v18, v18, v15")
        rnd(a, 16); rnd(a, 18)
        a("v_lshlrev_b32 v12, 16, v8"); a(f"v_and_b32 v14, s{S_HI}, v8")
        a(f"s_lshl_b32 s{S_T0+6}, s{S_G}, 3"); a(f"s_add_u32 s{S_T0+6}, s{S_T0+6}, s{RB}")
        a(f"s_lshl_b32 s{S_T0+6}, s{S_T0+6}, 12")
        a(f"s_lshl_b32 s{S_T0+7}, s{CB}, 10"); a(f"s_add_u32 s{S_T0+6}, s{S_T0+6}, s{S_T0+7}")
        a(f"s_add_u32 s{S_T0+6}, s{S_T0+6}, {WS_AP}")
        a("v_and_b32 v20, 15, v0"); a("v_lshlrev_b32 v20, 6, v20")
        a("v_lshrrev_b32 v21, 4, v0"); a("v_lshlrev_b32 v21, 4, v21"); a("v_add_u32 v20, v20, v21")
        a(f"s_lshl_b32 s{S_T0+7}, s2, 4"); a(f"s_add_u32 s{S_T0+7}, s{S_T0+7}, {WS_AP}")
        a("v_lshlrev_b32 v22, 2, v0")
        a("v_and_b32 v23, 3, v0"); a("v_lshlrev_b32 v23, 6, v23")
        a("v_lshrrev_b32 v24, 2, v0"); a("v_lshlrev_b32 v24, 2, v24"); a("v_add_u32 v23, v23, v24")
        a("v_lshrrev_b32 v24, 4, v0"); a("v_lshlrev_b32 v24, 6, v24")
        a(f"s_mov_b32 s{S_SPIN}, {SPIN_LIMIT}")
        self.stamp(1)
        a("s_barrier")
        a("s_barrier")
        self.stamp(2)
        for k in range(4):
            a(f"ds_read_b32 v{26+k}, v22 offset:{L_G+256*k}")
        a("s_waitcnt lgkmcnt(0)")
        a("v_add_f32 v26, v26, v27"); a("v_add_f32 v28, v28, v29"); a("v_add_f32 v26, v26, v28")
        a("v_cvt_pk_bf16_f32 v26, v26, v26")
        a(f"ds_write_b32 v23, v26 offset:{L_PP}")
        a("s_waitcnt lgkmcnt(0)")
        PPV = 128
        for k in range(4):
            a(f"ds_read_b128 {V4(PPV+4*k)}, v24 offset:{L_PP+16*k}")
        a("s_waitcnt lgkmcnt(0)")
        PB = 32; D0 = 56; D1 = 60
        for i0 in range(0, 16, 4):
            for r in range(4):
                a(f"v_and_b32 v{PB+4*r+2}, v{PPV+i0+r}, v5")
                a(f"v_and_b32 v{PB+4*r+3}, v{PPV+i0+r}, v7")
            for r in range(4):
                wb = WO + 4*(i0+r)
                a(f"v_mfma_f32_16x16x32_bf16 {V4(D0)}, {V4(PB+4*r+2)}, {V4(wb)}, {V4(D0)}")
                a(f"v_mfma_f32_16x16x32_bf16 {V4(D1)}, {V4(PB+4*r)}, {V4(wb)}, {V4(D1)}")
        m1 = f"s[{S_M1}:{S_M1+1}]"; m2 = f"s[{S_M2}:{S_M2+1}]"
        a(f"v_cndmask_b32 v26, v{D0}, v{D0+2}, {m1}")
        a(f"v_cndmask_b32 v27, v{D1}, v{D1+2}, {m1}")
        a(f"v_cndmask_b32 v28, v26, v27, {m2}")
        a(f"v_cndmask_b32 v26, v{D0+1}, v{D0+3}, {m1}")
        a(f"v_cndmask_b32 v27, v{D1+1}, v{D1+3}, {m1}")
        a(f"v_cndmask_b32 v30, v26, v27, {m2}")
        a(f"v_mov_b32 v29, s{S_TAG}"); a(f"v_mov_b32 v31, s{S_TAG}")
        a(f"buffer_store_dwordx4 v[28:31], v20, {S(SRD_WS)}, s{S_T0+6} offen sc1")
        self.stamp(3)
        a.label("L_W_apoll")
        a(f"buffer_load_dwordx4 v[24:27], v10, {S(SRD_WS)}, s{S_T0+7} offen sc1")
        a("s_waitcnt vmcnt(0)")
        a(f"v_xor_b32 v30, s{S_TAG}, v25")
        a(f"v_xor_b32 v31, s{S_TAG}, v27"); a("v_or_b32 v30, v30, v31")
        a("v_cmp_ne_u32 vcc, 0, v30")
        a("s_cbranch_vccz L_W_agot")
        self.spin_guard("L_W_apoll", "L_W_agot")
        a.label("L_W_agot")
        self.stamp(4)
        allreduce64(a, 24, 30, "v_add_f32"); allreduce64(a, 26, 30, "v_add_f32")
        rnd(a, 24); rnd(a, 26)
        a("v_add_f32 v24, v24, v12"); a("v_add_f32 v26, v26, v14")
        rnd(a, 24); rnd(a, 26)
        a("v_add_f32 v24, v24, v16"); a("v_add_f32 v26, v26, v18")
        if self.perturb:
            import struct
            bits = struct.unpack("<I", struct.pack("<f", float(self.perturb)))[0]
            a(f"v_add_f32 v24, {bits:#x}, v24"); a(f"v_add_f32 v26, {bits:#x}, v26")
        a("v_cvt_pk_bf16_f32 v24, v24, v26")
        a("s_mov_b64 exec, 1")
        a(f"buffer_store_dword v24, v2, {S(SRD_C)}, 0 offen")
        a("s_cmp_lg_u32 s2, 0")
        a("s_cbranch_scc1 L_W_noep")
        a(f"v_mov_b32 v25, s{S_TAG}"); a("v_mov_b32 v26, 0")
        a(f"buffer_store_dword v25, v26, {S(SRD_WS)}, 0 offen sc1")
        a.label("L_W_noep")
        a("s_mov_b64 exec, -1")
        self.stamp(5)
        if self.spin:
            if self.spin.startswith("S"):
                a(f"v_mov_b32 v3, {L_RS+16}"); a("ds_read_b128 v[4:7], v3"); a("s_waitcnt lgkmcnt(0)")
                a("v_max_u32 v4, v4, v5"); a("v_max_u32 v6, v6, v7"); a("v_max_u32 v4, v4, v6")
                a(f"v_readfirstlane_b32 s{S_T0}, v4")
            else:
                k = int(self.spin[1:])
                a("s_waitcnt lgkmcnt(0)")
                a(f"s_mov_b32 s{S_T0}, s{S_TS+2*k}")
            a(f"s_add_u32 s{S_T0}, s{S_T0}, 10000")
            a.label("L_spin")
            a(f"s_memrealtime s[{S_T0+2}:{S_T0+3}]"); a("s_waitcnt lgkmcnt(0)")
            a(f"s_sub_u32 s{S_T0+4}, s{S_T0+2}, s{S_T0}")
            a(f"s_cmp_lt_i32 s{S_T0+4}, 0")
            a("s_cbranch_scc1 L_spin")
        self.dump_stamps(6, 3)
        self.hdump([(0, 0, "min"), (5, 1, "max"), (1, 10, "max"), (3, 11, "max"), (4, 12, "max"), (0, 13, "max")])
        a("s_waitcnt vmcnt(0)")

    def build(self):
        self.prologue()
        self.swave()
        self.qwave()
        self.mwave()
        self.wwave()
        self.a.label("L_end")
        self.a("s_endpgm")
        body = self.a.text()
        stub = open("parallel_sum__gqa_block_cached__moe_arch_mod__decode.s.ref").read()
        head = stub[:stub.index("; @launch")]
        txt = head + f"; @launch grid=(256,1,1) block=(448,1,1) lds={LDS_BYTES}\n"
        txt += f""".amdgcn_target "amdgcn-amd-amdhsa--gfx950"
.text
.globl {KNAME}
.p2align 8
.type {KNAME},@function
{KNAME}:
{body}
.section .rodata,"a"
.p2align 6
.amdhsa_kernel {KNAME}
  .amdhsa_next_free_vgpr 256
  .amdhsa_next_free_sgpr 102
  .amdhsa_accum_offset 256
  .amdhsa_group_segment_fixed_size 0
  .amdhsa_kernarg_size 104
  .amdhsa_user_sgpr_count 2
  .amdhsa_user_sgpr_kernarg_segment_ptr 1
  .amdhsa_system_sgpr_workgroup_id_x 1
.end_amdhsa_kernel
"""
        return txt

if __name__ == "__main__":
    import argparse
    p = argparse.ArgumentParser()
    p.add_argument("--dbg", action="store_true")
    p.add_argument("--early", type=int, default=3)
    p.add_argument("--qdelay", type=int, default=0)
    p.add_argument("--wflag", default="nt")
    p.add_argument("--noa0", action="store_true")
    p.add_argument("--pace", type=int, default=0)
    p.add_argument("--paceto", type=int, default=48)
    p.add_argument("--mprio", type=int, default=0)
    p.add_argument("--hdbg", action="store_true")
    p.add_argument("--spin", default=None)
    p.add_argument("--perturb", default=None)
    p.add_argument("-o", default="parallel_sum__gqa_block_cached__moe_arch_mod__decode.s")
    args = p.parse_args()
    g = Gen(dbg=args.dbg, early=args.early, qdelay=args.qdelay, wflag=args.wflag, a0=not args.noa0, pace=args.pace, mprio=args.mprio, paceto=args.paceto, hdbg=args.hdbg, spin=args.spin, perturb=args.perturb)
    t = g.build()
    open(args.o, "w").write(t)
    print("wrote", args.o, len(t), "bytes")
```

```python
import sys
from asmlib import Asm

KNAME = "parallel_sum__gqa_block_cached__moe_arch_mod__decode_kernel"
WS_QG = 0x1000
WS_XT = 0x6000
WS_ST = 0x8000
WS_AP = 0x10000
WS_GU = 0x60000
WS_OP = 0x100000
WS_DBG = 0x200000
WS_SIZE = 0x300000
L_T = 0; L_Q = 4096; L_O = 5120; L_ST = 13312; L_G = 13568; L_PP = 14592; L_RS = 14848
L_CNT = 14852; L_SAME = 14856; L_HP = 14912
LDS_BYTES = 15360
SPIN_LIMIT = 40000

S_X, S_K, S_V, S_WQ, S_WO, S_WR, S_WG, S_WU, S_WD, S_OUT, S_WS = 8, 10, 12, 14, 16, 20, 22, 24, 26, 28, 32
S_G, S_SP, S_WAVE, S_TAG = 34, 35, 36, 37
SRD_WS = 40
SRD_A = 44
SRD_B = 48
SRD_C = 52
SRD_D = 4
S_OFF = 56
S_SO = 3
S_OFFS = (76, 77, 78)
S_SPIN = 57
S_HI = 58
S_LOG2E = 59
S_SCALE = 60
S_M1 = 62
S_M2 = 64
S_T0 = 66
S_TS = 80

def srd(a, d, base, off_sgpr=None, off_imm=0, size=0):
    if off_sgpr is not None:
        a(f"s_add_u32 s{d}, s{base}, s{off_sgpr}")
        a(f"s_addc_u32 s{d+1}, s{base+1}, 0")
    else:
        a(f"s_mov_b32 s{d}, s{base}")
        a(f"s_mov_b32 s{d+1}, s{base+1}")
    a(f"s_mov_b32 s{d+2}, {size:#x}")
    a(f"s_mov_b32 s{d+3}, 0x00020000")

def S(d): return f"s[{d}:{d+3}]"
def V4(r): return f"v[{r}:{r+3}]"
def V2(r): return f"v[{r}:{r+1}]"

def allreduce64(a, v, t, op):
    a(f"{op}_dpp v{v}, v{v}, v{v} quad_perm:[1,0,3,2] row_mask:0xf bank_mask:0xf")
    a(f"{op}_dpp v{v}, v{v}, v{v} quad_perm:[2,3,0,1] row_mask:0xf bank_mask:0xf")
    a(f"{op}_dpp v{v}, v{v}, v{v} row_half_mirror row_mask:0xf bank_mask:0xf")
    a(f"{op}_dpp v{v}, v{v}, v{v} row_mirror row_mask:0xf bank_mask:0xf")
    rows_reduce(a, v, t, op)

def rows_reduce(a, v, t, op):
    a(f"v_mov_b32 v{t}, v{v}")
    a(f"v_permlane16_swap_b32 v{v}, v{t}")
    a(f"{op} v{v}, v{v}, v{t}")
    a(f"v_mov_b32 v{t}, v{v}")
    a(f"v_permlane32_swap_b32 v{v}, v{t}")
    a(f"{op} v{v}, v{v}, v{t}")

def rnd(a, v):
    a(f"v_cvt_pk_bf16_f32 v{v}, v{v}, v{v}")
    a(f"v_and_b32 v{v}, s{S_HI}, v{v}")

class Gen:
    def __init__(self, dbg=False, wflag="nt", hdbg=False, spin=None, perturb=None, forceslow=False, auxprio=3, qprio=3, nofast=False):
        self.hdbg = hdbg; self.spin = spin; self.perturb = perturb
        if hdbg: dbg = False
        self.dbg = dbg; self.wflag = wflag; self.forceslow = forceslow; self.auxprio = auxprio; self.qprio = qprio
        self.nofast = nofast
        self.a = Asm()

    def hdump(self, items, nsleep=5):
        if not self.hdbg: return
        a = self.a
        a("s_waitcnt lgkmcnt(0) vmcnt(0)")
        a("s_setprio 0")
        for _ in range(nsleep): a("s_sleep 127")
        srd(a, SRD_C, 30, size=256)
        a("s_mov_b64 exec, 1")
        for (st, w, mode) in items:
            if mode == "min":
                a(f"s_not_b32 s{S_T0}, s{S_TS+2*st}")
                a(f"v_mov_b32 v2, s{S_T0}")
            else:
                a(f"v_mov_b32 v2, s{S_TS+2*st}")
            a(f"v_mov_b32 v3, {4*w}")
            a(f"buffer_atomic_umax v2, v3, {S(SRD_C)}, 0 offen sc1")
            a("s_waitcnt vmcnt(0)")
        a("s_mov_b64 exec, -1")

    def stamp(self, idx):
        if self.dbg or self.hdbg or self.spin:
            self.a(f"s_memrealtime s[{S_TS+2*idx}:{S_TS+2*idx+1}]")

    def dump_stamps(self, n, slot, vt=2):
        if not self.dbg: return
        a = self.a
        a("s_waitcnt lgkmcnt(0) vmcnt(0)")
        a(f"s_lshl_b32 s{S_T0}, s2, 10")
        a(f"s_lshl_b32 s{S_T0+1}, s{S_WAVE}, 7")
        a(f"s_add_u32 s{S_T0}, s{S_T0}, s{S_T0+1}")
        a(f"s_add_u32 s{S_T0}, s{S_T0}, {WS_DBG}")
        a("s_mov_b64 exec, 1")
        a(f"v_mov_b32 v{vt+2}, s{S_T0}")
        for i in range(n):
            a(f"v_mov_b32 v{vt}, s{S_TS+2*i}")
            a(f"v_mov_b32 v{vt+1}, s{S_TS+2*i+1}")
            a(f"buffer_store_dwordx2 {V2(vt)}, v{vt+2}, {S(SRD_WS)}, 0 offen offset:{8*i}")
            a("s_waitcnt vmcnt(0)")
        a("s_mov_b64 exec, -1")

    def spin_guard(self, lab_retry, lab_done, sleep=1):
        a = self.a
        a(f"s_sub_u32 s{S_SPIN}, s{S_SPIN}, 1")
        a(f"s_cmp_eq_u32 s{S_SPIN}, 0")
        a(f"s_cbranch_scc1 {lab_done}")
        if sleep: a(f"s_sleep {sleep}")
        a(f"s_branch {lab_retry}")

    def prologue(self):
        a = self.a
        a("s_cmp_ge_u32 s2, 256")
        a("s_cbranch_scc1 L_end")
        self.stamp(0)
        a("s_load_dwordx16 s[8:23], s[0:1], 0")
        a("s_load_dwordx8 s[24:31], s[0:1], 64")
        a(f"s_load_dwordx2 s[{S_WS}:{S_WS+1}], s[0:1], 96")
        a("v_lshrrev_b32 v1, 6, v0")
        a("v_and_b32 v0, 63, v0")
        a(f"s_and_b32 s{S_G}, s2, 7")
        a(f"s_lshr_b32 s{S_SP}, s2, 3")
        a(f"v_readfirstlane_b32 s{S_WAVE}, v1")
        a(f"s_mov_b32 s{S_HI}, 0xffff0000")
        a(f"s_mov_b32 s{S_LOG2E}, 0x3fb8aa3b")
        a(f"s_mov_b32 s{S_SPIN}, {SPIN_LIMIT}")
        a("s_waitcnt lgkmcnt(0)")
        a(f"s_load_dword s{S_TAG}, s[{S_WS}:{S_WS+1}], 0")
        srd(a, SRD_WS, S_WS, size=WS_SIZE)
        a(f"s_cmp_lt_u32 s{S_WAVE}, 4")
        a("s_cbranch_scc1 L_S")
        a(f"s_cmp_eq_u32 s{S_WAVE}, 4")
        a("s_cbranch_scc1 L_Q")
        a("s_branch L_W")

    def get_tag(self):
        a = self.a
        a("s_waitcnt lgkmcnt(0)")
        a(f"s_add_u32 s{S_TAG}, s{S_TAG}, 1")

    RING = 64
    def issueK(self, slot):
        a = self.a; b = self.RING + 64*slot
        for t in range(2):
            for c in range(4):
                r = b + 16*t + 4*c
                a(f"buffer_load_dwordx4 {V4(r)}, v{1+t}, {S(SRD_A)}, s{S_OFFS[slot]} offen offset:{64*c} nt")
    def issueV(self, slot):
        a = self.a; b = self.RING + 64*slot + 32
        for r8 in range(8):
            r = b + 4*r8
            a(f"buffer_load_dwordx4 {V4(r)}, v{3+(r8>>2)}, {S(SRD_B)}, s{S_OFFS[slot]} offen offset:{1024*(r8&3)} nt")

    def group(self, slot, kwait=40, vwait=40, reissue=True):
        a = self.a
        b = self.RING + 64*slot
        SC = 32; PB = 10; D0 = 40; D1 = 44; Q = 48
        vM, vMC, vL, vMX, vMY = 6, 8, 9, 5, 7
        a(f"s_cmp_ge_u32 s{S_OFFS[slot]}, 0x80000")
        a("s_cbranch_scc1 L_S_done")
        a("s_mov_b64 exec, 1")
        a(f"ds_inc_rtn_u32 v28, v10, v5 offset:{L_CNT}")
        a("s_mov_b64 exec, -1")
        a(f"s_waitcnt vmcnt({kwait})")
        for c in range(4):
            for t in range(2):
                cc = "0" if c == 0 else V4(SC+4*t)
                a(f"v_mfma_f32_16x16x32_bf16 {V4(SC+4*t)}, {V4(b+16*t+4*c)}, {V4(Q+4*c)}, {cc}")
        a("s_waitcnt lgkmcnt(0)")
        a(f"v_readfirstlane_b32 s{S_T0}, v28")
        a(f"s_lshl_b32 s{S_OFFS[slot]}, s{S_T0}, 13")
        self.issueK(slot)
        for k in range(4):
            s0 = SC+2*k; t = 28+k
            a(f"v_cvt_pk_bf16_f32 v{t}, v{s0}, v{s0+1}")
        for k in range(4):
            s0 = SC+2*k; t = 28+k
            a(f"v_lshlrev_b32 v{s0}, 16, v{t}")
            a(f"v_and_b32 v{s0+1}, s{S_HI}, v{t}")
        for k in range(4):
            s0 = SC+2*k
            a(f"v_pk_mul_f32 {V2(s0)}, {V2(s0)}, s[{S_SCALE}:{S_SCALE+1}]")
        for k in range(4):
            s0 = SC+2*k; t = 28+k
            a(f"v_cvt_pk_bf16_f32 v{t}, v{s0}, v{s0+1}")
        for k in range(4):
            s0 = SC+2*k; t = 28+k
            a(f"v_lshlrev_b32 v{s0}, 16, v{t}")
            a(f"v_and_b32 v{s0+1}, s{S_HI}, v{t}")
        a(f"v_max3_f32 v28, v{SC}, v{SC+1}, v{SC+2}")
        a(f"v_max3_f32 v29, v{SC+3}, v{SC+4}, v{SC+5}")
        a(f"v_max3_f32 v28, v28, v{SC+6}, v{SC+7}")
        a(f"v_max_f32 v28, v28, v29")
        a(f"v_cmp_gt_f32 vcc, v28, v{vM}")
        skip = a.uniq("L_skip")
        a(f"s_cbranch_vccz {skip}")
        rows_reduce(a, 28, 29, "v_max_f32")
        a(f"v_max_f32 v28, v28, v{vM}")
        a(f"v_mul_f32 v29, s{S_LOG2E}, v28")
        a(f"v_sub_f32 v30, v{vMC}, v29")
        a(f"v_exp_f32 v30, v30")
        a(f"v_mov_b32 v{vM}, v28")
        a(f"v_mov_b32 v{vMC}, v29")
        a(f"v_mul_f32 v{vL}, v{vL}, v30")
        for h in range(4):
            a(f"v_mov_b32_dpp v31, v30 row_newbcast:{4*h} row_mask:{1<<h:#x} bank_mask:0xf")
        for k in range(8):
            a(f"v_mul_f32 v{D0+k}, v{D0+k}, v31")
        a.label(skip)
        for k in range(8):
            a(f"v_fma_f32 v{SC+k}, v{SC+k}, s{S_LOG2E}, -v{vMC}")
        for k in range(8):
            a(f"v_exp_f32 v{SC+k}, v{SC+k}")
        for t in range(2):
            for r in range(4):
                a(f"v_cvt_pk_bf16_f32 v{28+r}, v{SC+4*t+r}, v{SC+4*t+r}")
            for r in range(4):
                a(f"v_and_b32 v{PB+4*r+2}, v{28+r}, v{vMX}")
                a(f"v_and_b32 v{PB+4*r+3}, v{28+r}, v{vMY}")
            if t == 0:
                a(f"s_waitcnt vmcnt({vwait})")
            for r in range(4):
                vb = b + 32 + 4*(4*t+r)
                a(f"v_mfma_f32_16x16x32_bf16 {V4(D0)}, {V4(PB+4*r+2)}, {V4(vb)}, {V4(D0)}")
                a(f"v_mfma_f32_16x16x32_bf16 {V4(D1)}, {V4(PB+4*r)}, {V4(vb)}, {V4(D1)}")
        self.issueV(slot)
        a(f"v_pk_add_f32 v[28:29], {V2(SC)}, {V2(SC+2)}")
        a(f"v_pk_add_f32 v[30:31], {V2(SC+4)}, {V2(SC+6)}")
        a(f"v_pk_add_f32 v[28:29], v[28:29], v[30:31]")
        a(f"v_add_f32 v28, v28, v29")
        a(f"v_add_f32 v{vL}, v{vL}, v28")

    def masksXY(self, vX, vY, t):
        a = self.a
        a(f"v_and_b32 v{t}, 3, v0")
        a(f"v_mov_b32 v{vX}, 0"); a(f"v_mov_b32 v{vY}, 0")
        a(f"v_mov_b32 v{t+1}, 0xffff")
        a(f"v_mov_b32 v{t+2}, s{S_HI}")
        a(f"v_cmp_eq_u32 vcc, 0, v{t}"); a(f"v_cndmask_b32 v{vX}, v{vX}, v{t+1}, vcc")
        a(f"v_cmp_eq_u32 vcc, 1, v{t}"); a(f"v_cndmask_b32 v{vX}, v{vX}, v{t+2}, vcc")
        a(f"v_cmp_eq_u32 vcc, 2, v{t}"); a(f"v_cndmask_b32 v{vY}, v{vY}, v{t+1}, vcc")
        a(f"v_cmp_eq_u32 vcc, 3, v{t}"); a(f"v_cndmask_b32 v{vY}, v{vY}, v{t+2}, vcc")

    def swave(self):
        a = self.a
        a.label("L_S")
        a(f"s_lshl_b32 s{S_T0}, s{S_G}, 24")
        a(f"s_lshl_b32 s{S_T0+1}, s{S_SP}, 19")
        a(f"s_add_u32 s{S_T0}, s{S_T0}, s{S_T0+1}")
        srd(a, SRD_A, S_K, S_T0, size=0x80000)
        srd(a, SRD_B, S_V, S_T0, size=0x80000)
        a("v_and_b32 v1, 3, v0"); a("v_lshlrev_b32 v1, 10, v1")
        a("v_bfe_u32 v2, v0, 2, 2"); a("v_lshlrev_b32 v2, 8, v2"); a("v_add_u32 v1, v1, v2")
        a("v_lshrrev_b32 v2, 4, v0"); a("v_lshlrev_b32 v2, 4, v2"); a("v_add_u32 v1, v1, v2")
        a("v_add_u32 v2, 0x1000, v1")
        a("v_lshlrev_b32 v3, 4, v0"); a("v_add_u32 v4, 0x1000, v3")
        for k in range(3):
            a(f"s_lshl_b32 s{S_OFFS[k]}, s{S_WAVE}, 13")
            if k: a(f"s_add_u32 s{S_OFFS[k]}, s{S_OFFS[k]}, {32768*k}")
        a("s_barrier")
        self.stamp(1)
        for slot in range(3):
            self.issueK(slot); self.issueV(slot)
        self.masksXY(5, 7, 28)
        for k in range(5):
            a(f"v_mov_b32 v{10+4*k}, 0"); a(f"v_mov_b32 v{11+4*k}, 0")
        for k in range(8): a(f"v_mov_b32 v{40+k}, 0")
        a("v_mov_b32 v6, 0xff800000"); a("v_mov_b32 v8, 0xff800000"); a("v_mov_b32 v9, 0")
        a(f"s_mov_b32 s{S_SCALE}, 0x3db504f3"); a(f"s_mov_b32 s{S_SCALE+1}, 0x3db504f3")
        a("v_bfe_u32 v28, v0, 2, 2"); a("v_lshlrev_b32 v28, 8, v28")
        a("v_lshrrev_b32 v29, 4, v0"); a("v_lshlrev_b32 v29, 4, v29"); a("v_add_u32 v28, v28, v29")
        a(f"s_lshl_b32 s{S_T0}, s{S_G}, 5"); a(f"s_add_u32 s{S_T0}, s{S_T0}, s{S_SP}")
        a(f"s_lshl_b32 s{S_T0}, s{S_T0}, 12")
        a(f"s_lshl_b32 s67, s{S_WAVE}, 10")
        a(f"s_add_u32 s67, s{S_T0}, s67"); a(f"s_add_u32 s67, s67, {WS_OP}")
        a(f"s_lshl_b32 s68, s{S_G}, 2"); a(f"s_add_u32 s68, s68, s{S_WAVE}")
        a(f"s_lshl_b32 s68, s68, 5"); a(f"s_add_u32 s68, s68, s{S_SP}")
        a(f"s_lshl_b32 s68, s68, 4"); a(f"s_add_u32 s68, s68, {WS_ST}")
        a(f"s_lshr_b32 s74, s{S_SP}, 3"); a(f"s_bfe_u32 s75, s{S_SP}, 0x10002")
        a(f"s_lshl_b32 s{S_T0}, s{S_G}, 5"); a(f"s_lshl_b32 s69, s{S_WAVE}, 3")
        a(f"s_add_u32 s{S_T0}, s{S_T0}, s69"); a(f"s_lshl_b32 s{S_T0}, s{S_T0}, 12")
        a(f"s_lshl_b32 s69, s74, 10"); a(f"s_add_u32 s{S_T0}, s{S_T0}, s69")
        a(f"s_lshl_b32 s69, s75, 9"); a(f"s_add_u32 s{S_T0}, s{S_T0}, s69")
        a(f"s_add_u32 s69, s{S_T0}, {WS_OP}")
        for u in range(1, 4):
            a(f"s_add_u32 s{69+u}, s69, {8192*u}")
        a(f"s_lshl_b32 s73, s{S_G}, 2"); a(f"s_add_u32 s73, s73, s74")
        a(f"s_lshl_b32 s73, s73, 9"); a(f"s_add_u32 s73, s73, {WS_ST}")
        self.get_tag()
        self.stamp(2)
        a("s_barrier")
        self.stamp(3)
        for c in range(4):
            a(f"ds_read_b128 {V4(48+4*c)}, v28 offset:{L_Q+64*c}")
        a("s_waitcnt lgkmcnt(0)")
        a.label("L_S_loop")
        for slot in range(3):
            self.group(slot)
        a("s_branch L_S_loop")
        a.label("L_S_done")
        a("s_waitcnt vmcnt(0)")
        self.stamp(4)
        rows_reduce(a, 9, 28, "v_add_f32")
        a("v_lshlrev_b32 v28, 5, v0")
        a(f"s_lshl_b32 s{S_T0}, s{S_WAVE}, 11")
        a(f"v_add_u32 v28, s{S_T0}, v28")
        a(f"ds_write_b128 v28, {V4(40)} offset:{L_O}")
        a(f"ds_write_b128 v28, {V4(44)} offset:{L_O+16}")
        a("v_lshlrev_b32 v29, 3, v0")
        a(f"s_lshl_b32 s{S_T0}, s{S_WAVE}, 3")
        a(f"v_add_u32 v29, s{S_T0}, v29")
        a("s_mov_b64 exec, 0x1111")
        a(f"ds_write_b64 v29, v[8:9] offset:{L_ST}")
        a("s_mov_b64 exec, -1")
        a("s_waitcnt lgkmcnt(0)")
        a("s_barrier")
        self.stamp(5)
        a(f"s_lshl_b32 s{S_T0}, s{S_WAVE}, 5")
        a(f"v_mov_b32 v28, s{S_T0}")
        a(f"ds_read_b128 v[64:67], v28 offset:{L_ST}")
        a(f"ds_read_b128 v[68:71], v28 offset:{L_ST+16}")
        a(f"ds_read_b32 v90, v10 offset:{L_SAME}")
        a(f"s_lshl_b32 s{S_T0}, s{S_WAVE}, 9")
        a("v_lshlrev_b32 v29, 3, v0")
        a(f"v_add_u32 v29, s{S_T0}, v29")
        for k in range(4):
            a(f"ds_read_b64 {V2(72+2*k)}, v29 offset:{L_O+2048*k}")
        a(f"v_mov_b32 v85, s{S_TAG}"); a(f"v_mov_b32 v87, s{S_TAG}")
        a(f"v_mov_b32 v81, s{S_TAG}"); a(f"v_mov_b32 v83, s{S_TAG}")
        a("v_lshlrev_b32 v28, 4, v0")
        a("s_waitcnt lgkmcnt(4)")
        a(f"v_readfirstlane_b32 s{S_T0}, v90")
        a("v_max3_f32 v80, v64, v66, v68")
        a("v_max_f32 v80, v80, v70")
        for k in range(4):
            a(f"v_sub_f32 v{64+2*k}, v{64+2*k}, v80")
        for k in range(4):
            a(f"v_exp_f32 v{64+2*k}, v{64+2*k}")
        a("v_mul_f32 v82, v64, v65")
        a("v_fma_f32 v82, v66, v67, v82")
        a("v_fma_f32 v82, v68, v69, v82")
        a("v_fma_f32 v82, v70, v71, v82")
        a("s_waitcnt lgkmcnt(0)")
        a("v_mul_f32 v84, v64, v72"); a("v_mul_f32 v86, v64, v73")
        for k in range(1, 4):
            a(f"v_fma_f32 v84, v{64+2*k}, v{72+2*k}, v84")
            a(f"v_fma_f32 v86, v{64+2*k}, v{73+2*k}, v86")
        paths = [("sc1",)] if self.nofast else [("",), ("sc1",)]
        if not self.nofast:
            a(f"s_cmp_eq_u32 s{S_T0}, 0")
            a("s_cbranch_scc1 L_S_pubslow")
        for pi_, (fl,) in enumerate(paths):
            if pi_ == 1: a.label("L_S_pubslow")
            a(f"buffer_store_dwordx4 v[84:87], v28, {S(SRD_WS)}, s67 offen {fl}")
            a("s_mov_b64 exec, 1")
            a(f"buffer_store_dwordx4 v[80:83], v10, {S(SRD_WS)}, s68 offen {fl}")
            a("s_mov_b64 exec, -1")
            if pi_ == 0 and not self.nofast: a("s_branch L_S_pubdone")
        a.label("L_S_pubdone")
        self.stamp(6)
        a("v_lshrrev_b32 v28, 5, v0"); a("v_lshlrev_b32 v28, 12, v28")
        a("v_and_b32 v29, 31, v0"); a("v_lshlrev_b32 v29, 4, v29"); a("v_add_u32 v28, v28, v29")
        a.label("L_S_poll")
        for u in range(4):
            a(f"buffer_load_dwordx4 {V4(64+4*u)}, v28, {S(SRD_WS)}, s{69+u} offen sc1")
        a(f"buffer_load_dwordx4 v[80:83], v29, {S(SRD_WS)}, s73 offen sc1")
        a("s_waitcnt vmcnt(0)")
        a(f"v_xor_b32 v30, s{S_TAG}, v65")
        for r in [67, 69, 71, 73, 75, 77, 79, 81, 83]:
            a(f"v_xor_b32 v31, s{S_TAG}, v{r}")
            a("v_or_b32 v30, v30, v31")
        a("v_cmp_ne_u32 vcc, 0, v30")
        a("s_cbranch_vccz L_S_got")
        self.spin_guard("L_S_poll", "L_S_got")
        a.label("L_S_got")
        self.stamp(7)
        a("v_mov_b32 v30, v80")
        allreduce64(a, 30, 31, "v_max_f32")
        a("v_sub_f32 v80, v80, v30")
        a("v_exp_f32 v80, v80")
        a("v_mul_f32 v82, v80, v82")
        allreduce64(a, 82, 31, "v_add_f32")
        a("v_rcp_f32 v82, v82")
        a("v_add_f32 v80, v80, v80")
        a("v_mul_f32 v80, v80, v82")
        a("v_lshrrev_b32 v30, 5, v0")
        a(f"s_lshl_b32 s{S_T0}, s{S_WAVE}, 3")
        a(f"v_add_u32 v30, s{S_T0}, v30")
        a("v_lshlrev_b32 v30, 2, v30")
        for u in range(4):
            if u: a("v_add_u32 v30, 8, v30")
            a(f"ds_bpermute_b32 v{84+u}, v30, v80")
        a("s_waitcnt lgkmcnt(0)")
        a("v_mul_f32 v88, v84, v64"); a("v_mul_f32 v89, v84, v66")
        for u in range(1, 4):
            a(f"v_fma_f32 v88, v{84+u}, v{64+4*u}, v88")
            a(f"v_fma_f32 v89, v{84+u}, v{66+4*u}, v89")
        a("v_mov_b32 v90, v88"); a("v_mov_b32 v91, v89")
        a("v_permlane32_swap_b32 v88, v90"); a("v_permlane32_swap_b32 v89, v91")
        a("v_add_f32 v88, v88, v90"); a("v_add_f32 v89, v89, v91")
        a("v_and_b32 v30, 31, v0"); a("v_lshlrev_b32 v30, 3, v30")
        a(f"s_lshl_b32 s{S_T0}, s{S_WAVE}, 8")
        a(f"v_add_u32 v30, s{S_T0}, v30")
        a(f"ds_write_b64 v30, v[88:89] offset:{L_G}")
        a("s_waitcnt lgkmcnt(0)")
        if self.spin and self.spin.startswith("S"):
            k = int(self.spin[1:])
            a(f"s_lshl_b32 s{S_T0}, s{S_WAVE}, 2"); a(f"s_add_u32 s{S_T0}, s{S_T0}, {L_RS+16}")
            a(f"v_mov_b32 v30, s{S_T0}"); a(f"v_mov_b32 v31, s{S_TS+2*k}")
            a("ds_write_b32 v30, v31"); a("s_waitcnt lgkmcnt(0)")
        a("s_barrier")
        self.stamp(8)
        if self.dbg:
            a(f"s_getreg_b32 s{S_TS+18}, hwreg(HW_REG_XCC_ID)"); a(f"s_mov_b32 s{S_TS+19}, 0")
            self.dump_stamps(10, 0)
        self.hdump([(3, 2, "max"), (4, 3, "max"), (4, 4, "min"), (5, 5, "max"), (7, 6, "max"), (2, 15, "max")])
        a("s_branch L_end")

    def gemv_loads(self, srd_, reg, step):
        a = self.a
        a(f"s_mov_b32 s{S_OFF}, 0")
        for i in range(16):
            a(f"buffer_load_dwordx4 {V4(reg+4*i)}, v1, {S(srd_)}, s{S_OFF} offen {self.wflag}")
            if i < 15: a(f"s_add_u32 s{S_OFF}, s{S_OFF}, {step}")

    def gemv_compute(self, reg, tb, acc, wait_first, outA, outB, rors):
        a = self.a
        for k in range(8): a(f"v_mov_b32 v{acc+k}, 0")
        for i in range(16):
            if wait_first is not None:
                a(f"s_waitcnt vmcnt({wait_first + 15 - i})")
            for k in range(4):
                a(f"v_dot2c_f32_bf16 v{acc+2*k}, v{reg+4*i+k}, v{tb+2*i}")
                a(f"v_dot2c_f32_bf16 v{acc+2*k+1}, v{reg+4*i+k}, v{tb+2*i+1}")
        for k in range(4):
            a(f"v_permlane32_swap_b32 v{acc+k}, v{acc+4+k}")
        for k in range(4):
            a(f"v_add_f32 v{acc+k}, v{acc+k}, v{acc+4+k}")
        a(f"v_permlane16_swap_b32 v{acc}, v{acc+2}")
        a(f"v_permlane16_swap_b32 v{acc+1}, v{acc+3}")
        a(f"v_add_f32 v{outA}, v{acc}, v{acc+2}")
        a(f"v_add_f32 v{outB}, v{acc+1}, v{acc+3}")
        for rr in rors:
            a(f"v_add_f32_dpp v{outA}, v{outA}, v{outA} row_ror:{rr} row_mask:0xf bank_mask:0xf")
            a(f"v_add_f32_dpp v{outB}, v{outB}, v{outB} row_ror:{rr} row_mask:0xf bank_mask:0xf")

    def read_T(self, tb, shift, stride):
        a = self.a
        for i in range(16):
            a(f"ds_read_b64 {V2(tb+2*i)}, v2 offset:{L_T+stride*i}")

    def qwave(self):
        a = self.a
        a.label("L_Q")
        a(f"s_setprio {self.qprio}")
        srd(a, SRD_A, S_X, size=1024)
        srd(a, SRD_B, S_WR, size=1024)
        a(f"s_lshl_b32 s{S_T0}, s{S_G}, 10"); a(f"s_lshl_b32 s{S_T0+1}, s{S_SP}, 5")
        a(f"s_add_u32 s{S_T0}, s{S_T0}, s{S_T0+1}")
        a(f"s_add_u32 s{SRD_C}, s{S_WQ}, s{S_T0}"); a(f"s_addc_u32 s{SRD_C+1}, s{S_WQ+1}, 0")
        a(f"s_sub_u32 s{SRD_C+2}, {512*8192}, s{S_T0}"); a(f"s_mov_b32 s{SRD_C+3}, 0x00020000")
        a("v_lshlrev_b32 v3, 4, v0")
        a(f"buffer_load_dwordx4 v[4:7], v3, {S(SRD_A)}, 0 offen")
        a(f"buffer_load_dwordx4 v[8:11], v3, {S(SRD_B)}, 0 offen")
        a("v_lshrrev_b32 v1, 1, v0"); a("v_lshlrev_b32 v1, 13, v1")
        a("v_and_b32 v2, 1, v0"); a("v_lshlrev_b32 v2, 4, v2"); a("v_add_u32 v1, v1, v2")
        self.gemv_loads(SRD_C, 64, 32*8192)
        a(f"v_mov_b32 v12, {L_CNT}"); a("v_mov_b32 v13, 12")
        a("ds_write_b32 v12, v13")
        a("s_waitcnt lgkmcnt(0)")
        a("s_barrier")
        a("s_waitcnt vmcnt(17)")
        for k in range(4):
            a(f"v_lshlrev_b32 v{16+2*k}, 16, v{4+k}")
            a(f"v_and_b32 v{17+2*k}, s{S_HI}, v{4+k}")
        a("v_pk_add_f32 v[24:25], v[16:17], v[18:19]")
        a("v_pk_add_f32 v[26:27], v[20:21], v[22:23]")
        a("v_pk_add_f32 v[24:25], v[24:25], v[26:27]")
        a("v_add_f32 v24, v24, v25")
        allreduce64(a, 24, 25, "v_add_f32")
        a("v_mul_f32 v24, 0x3b000000, v24")
        for k in range(8): a(f"v_sub_f32 v{28+k}, v{16+k}, v24")
        a("v_mul_f32 v26, v28, v28")
        for k in range(1, 8): a(f"v_fma_f32 v26, v{28+k}, v{28+k}, v26")
        allreduce64(a, 26, 25, "v_add_f32")
        a("v_mul_f32 v26, 0x3b000000, v26")
        rnd(a, 24); rnd(a, 26)
        a("v_add_f32 v26, 0x3727c5ac, v26"); rnd(a, 26)
        a("v_sqrt_f32 v26, v26"); rnd(a, 26)
        a("v_rcp_f32 v26, v26")
        for k in range(8): a(f"v_sub_f32 v{16+k}, v{16+k}, v24")
        for k in range(4): a(f"v_cvt_pk_bf16_f32 v{28+k}, v{16+2*k}, v{17+2*k}")
        for k in range(4):
            a(f"v_lshlrev_b32 v{16+2*k}, 16, v{28+k}")
            a(f"v_and_b32 v{17+2*k}, s{S_HI}, v{28+k}")
        for k in range(8): a(f"v_mul_f32 v{16+k}, v{16+k}, v26")
        for k in range(4): a(f"v_cvt_pk_bf16_f32 v{12+k}, v{16+2*k}, v{17+2*k}")
        a("v_lshlrev_b32 v2, 6, v0")
        for k in range(4):
            a(f"v_and_b32 v28, 0xffff, v{12+k}")
            a(f"v_lshlrev_b32 v29, 16, v{12+k}")
            a(f"v_lshrrev_b32 v30, 16, v{12+k}")
            a(f"v_and_b32 v31, s{S_HI}, v{12+k}")
            a(f"ds_write_b128 v2, v[28:31] offset:{L_T+16*k}")
            if k < 3:
                a("s_nop 1")
        a("s_waitcnt lgkmcnt(0)")
        a("v_lshrrev_b32 v2, 1, v0"); a("v_lshlrev_b32 v2, 3, v2")
        self.read_T(128, 1, 256)
        a("s_waitcnt lgkmcnt(0)")
        self.stamp(1)
        self.gemv_compute(64, 128, 16, 0, 24, 25, (2, 4, 8))
        self.get_tag()
        a("v_cvt_pk_bf16_f32 v26, v24, v25")
        a(f"v_mov_b32 v27, s{S_TAG}")
        a("v_and_b32 v2, 1, v0"); a("v_lshlrev_b32 v2, 5, v2")
        a("v_lshrrev_b32 v3, 4, v0"); a("v_lshlrev_b32 v3, 3, v3"); a("v_add_u32 v2, v2, v3")
        a(f"s_lshl_b32 s{S_T0}, s{S_G}, 11"); a(f"s_add_u32 s{S_T0}, s{S_T0}, {WS_QG}")
        a(f"s_lshl_b32 s{S_T0+1}, s{S_SP}, 6"); a(f"s_add_u32 s{S_T0+1}, s{S_T0+1}, s{S_T0}")
        a("s_mov_b32 exec_lo, 0x00030003"); a("s_mov_b32 exec_hi, 0x00030003")
        a(f"buffer_store_dwordx2 v[26:27], v2, {S(SRD_WS)}, s{S_T0+1} offen sc1")
        a("s_mov_b64 exec, -1")
        self.stamp(2)
        a("v_mov_b32 v28, 0")
        for k in range(4): a(f"v_dot2c_f32_bf16 v28, v{12+k}, v{8+k}")
        allreduce64(a, 28, 29, "v_add_f32")
        rnd(a, 28)
        a(f"v_mul_f32 v28, s{S_LOG2E}, v28")
        a("v_sub_f32 v28, 0, v28")
        a("v_exp_f32 v28, v28")
        a("v_add_f32 v28, 1.0, v28")
        a("v_rcp_f32 v28, v28")
        rnd(a, 28)
        a(f"v_mov_b32 v29, {L_RS}")
        a("ds_write_b32 v29, v28")
        a("v_lshlrev_b32 v2, 4, v0")
        a("v_lshlrev_b32 v3, 3, v0")
        first = True
        a(f"buffer_load_dwordx4 v[32:35], v2, {S(SRD_WS)}, s{S_T0} offen sc1")
        a(f"buffer_load_dwordx4 v[36:39], v2, {S(SRD_WS)}, s{S_T0} offen offset:1024 sc1")
        a("s_branch L_Q_chk")
        a.label("L_Q_poll")
        a(f"buffer_load_dwordx4 v[32:35], v2, {S(SRD_WS)}, s{S_T0} offen sc1")
        a(f"buffer_load_dwordx4 v[36:39], v2, {S(SRD_WS)}, s{S_T0} offen offset:1024 sc1")
        a.label("L_Q_chk")
        a("s_waitcnt vmcnt(0)")
        a(f"v_xor_b32 v30, s{S_TAG}, v33")
        for r in (35, 37, 39):
            a(f"v_xor_b32 v31, s{S_TAG}, v{r}"); a("v_or_b32 v30, v30, v31")
        a("v_cmp_ne_u32 vcc, 0, v30")
        a("s_cbranch_vccz L_Q_got")
        self.spin_guard("L_Q_poll", "L_Q_got")
        a.label("L_Q_got")
        a(f"v_add_u32 v3, {L_Q}, v3")
        a("ds_write2_b32 v3, v32, v34 offset0:0 offset1:1")
        a("ds_write2_b32 v3, v36, v38 offset0:128 offset1:129")
        a("s_waitcnt lgkmcnt(0)")
        self.stamp(3)
        a("s_barrier")
        a(f"s_cmp_ge_u32 s{S_SP}, 28")
        a("s_cbranch_scc1 L_Q_end")
        U, MM, CBK, KC = S_T0+4, S_T0+5, S_T0+6, S_T0+7
        a(f"s_mul_i32 s{U}, s{S_G}, 28"); a(f"s_add_u32 s{U}, s{U}, s{S_SP}")
        a(f"s_cmp_ge_u32 s{U}, 112"); a(f"s_cselect_b32 s{MM}, 1, 0")
        a(f"s_mul_i32 s{S_T0}, s{MM}, 112"); a(f"s_sub_u32 s{U}, s{U}, s{S_T0}")
        a(f"s_lshr_b32 s{CBK}, s{U}, 2"); a(f"s_and_b32 s{KC}, s{U}, 3")
        a(f"s_mul_i32 s{S_T0}, s{KC}, {128*3584}"); a(f"s_lshl_b32 s{S_T0+1}, s{CBK}, 7")
        a(f"s_add_u32 s{S_T0}, s{S_T0}, s{S_T0+1}")
        a(f"s_cmp_eq_u32 s{MM}, 0"); a("s_cbranch_scc0 L_Q_up")
        a(f"s_add_u32 s{SRD_C}, s{S_WG}, s{S_T0}"); a(f"s_addc_u32 s{SRD_C+1}, s{S_WG+1}, 0")
        a("s_branch L_Q_srd")
        a.label("L_Q_up")
        a(f"s_add_u32 s{SRD_C}, s{S_WU}, s{S_T0}"); a(f"s_addc_u32 s{SRD_C+1}, s{S_WU+1}, 0")
        a.label("L_Q_srd")
        a(f"s_sub_u32 s{SRD_C+2}, {512*3584}, s{S_T0}"); a(f"s_mov_b32 s{SRD_C+3}, 0x00020000")
        a("v_lshrrev_b32 v1, 3, v0"); a(f"s_mov_b32 s{S_T0+2}, 3584"); a(f"v_mul_lo_u32 v1, v1, s{S_T0+2}")
        a("v_and_b32 v2, 7, v0"); a("v_lshlrev_b32 v2, 4, v2"); a("v_add_u32 v1, v1, v2")
        self.gemv_loads(SRD_C, 64, 8*3584)
        a("v_lshrrev_b32 v2, 3, v0"); a("v_lshlrev_b32 v2, 3, v2")
        a(f"s_lshl_b32 s{S_T0}, s{KC}, 10"); a(f"v_add_u32 v2, s{S_T0}, v2")
        self.read_T(128, 3, 64)
        a("s_waitcnt lgkmcnt(0)")
        self.gemv_compute(64, 128, 16, 0, 24, 26, (8,))
        a(f"v_mov_b32 v25, s{S_TAG}"); a(f"v_mov_b32 v27, s{S_TAG}")
        a(f"s_lshl_b32 s{S_T0}, s{MM}, 2"); a(f"s_add_u32 s{S_T0}, s{S_T0}, s{KC}")
        a(f"s_mul_i32 s{S_T0}, s{S_T0}, {1792*8}"); a(f"s_lshl_b32 s{S_T0+1}, s{CBK}, 9")
        a(f"s_add_u32 s{S_T0}, s{S_T0}, s{S_T0+1}"); a(f"s_add_u32 s{S_T0}, s{S_T0}, {WS_GU}")
        a("v_and_b32 v2, 7, v0"); a("v_lshlrev_b32 v2, 6, v2")
        a("v_lshrrev_b32 v3, 4, v0"); a("v_lshlrev_b32 v3, 4, v3"); a("v_add_u32 v2, v2, v3")
        a("s_mov_b32 exec_lo, 0x00ff00ff"); a("s_mov_b32 exec_hi, 0x00ff00ff")
        a(f"buffer_store_dwordx4 v[24:27], v2, {S(SRD_WS)}, s{S_T0} offen sc1")
        a("s_mov_b64 exec, -1")
        a.label("L_Q_end")
        self.stamp(4)
        self.dump_stamps(5, 1)
        self.hdump([(2, 7, "max"), (3, 8, "max"), (1, 14, "max"), (4, 9, "max")], nsleep=0)
        a("s_waitcnt vmcnt(0)")
        a("s_branch L_end")

    def masked_gemv(self, pv, wb0, n, PB=32, D0=56, D1=60):
        a = self.a
        for i0 in range(0, n, 4):
            m = min(4, n - i0)
            for r in range(m):
                a(f"v_and_b32 v{PB+4*r+2}, v{pv+i0+r}, v5")
                a(f"v_and_b32 v{PB+4*r+3}, v{pv+i0+r}, v7")
            for r in range(m):
                wb = wb0 + 4*(i0+r)
                a(f"v_mfma_f32_16x16x32_bf16 {V4(D0)}, {V4(PB+4*r+2)}, {V4(wb)}, {V4(D0)}")
                a(f"v_mfma_f32_16x16x32_bf16 {V4(D1)}, {V4(PB+4*r)}, {V4(wb)}, {V4(D1)}")

    def wwave(self):
        a = self.a
        a.label("L_W")
        RB, CB, PART = S_T0+10, S_T0+11, S_T0+12
        a(f"s_lshr_b32 s{RB}, s{S_SP}, 2"); a(f"s_and_b32 s{CB}, s{S_SP}, 3")
        a(f"s_lshl_b32 s{PART}, s{S_G}, 3"); a(f"s_add_u32 s{PART}, s{PART}, s{RB}")
        a(f"s_lshl_b32 s{S_T0}, s{PART}, 16")
        a(f"s_lshl_b32 s{S_T0+1}, s{CB}, 8"); a(f"s_add_u32 s{S_T0}, s{S_T0}, s{S_T0+1}")
        srd(a, SRD_A, S_WO, S_T0, size=65536)
        a(f"s_sub_u32 s{SRD_A+2}, 65536, s{S_T0+1}")
        a(f"s_mul_i32 s{S_T0}, s{PART}, {28*1024}"); a(f"s_add_u32 s{S_T0}, s{S_T0}, s{S_T0+1}")
        srd(a, SRD_D, S_WD, S_T0, size=28*1024)
        a(f"s_sub_u32 s{SRD_D+2}, {28*1024}, s{S_T0+1}")
        srd(a, SRD_B, S_X, size=1024)
        srd(a, SRD_C, S_OUT, size=1024)
        a("v_lshrrev_b32 v1, 4, v0"); a("v_lshlrev_b32 v1, 10, v1")
        a("v_and_b32 v2, 15, v0"); a("v_lshlrev_b32 v2, 4, v2"); a("v_add_u32 v1, v1, v2")
        self.get_tag()
        a(f"s_getreg_b32 s{S_T0+9}, hwreg(HW_REG_XCC_ID)")
        a(f"s_lshl_b32 s{S_T0+8}, s{S_G}, 8"); a(f"s_add_u32 s{S_T0+8}, s{S_T0+8}, {WS_XT}")
        a(f"s_lshl_b32 s{S_T0}, s{S_SP}, 3")
        a(f"v_mov_b32 v16, s{S_T0+9}"); a(f"v_mov_b32 v17, s{S_TAG}"); a(f"v_mov_b32 v18, s{S_T0}")
        a("s_mov_b64 exec, 1")
        a(f"buffer_store_dwordx2 v[16:17], v18, {S(SRD_WS)}, s{S_T0+8} offen sc1")
        a("s_mov_b64 exec, -1")
        a("s_barrier")
        a("s_barrier")
        a(f"s_setprio {self.auxprio}")
        WO = 64; WD = 128
        a(f"s_mov_b32 s{S_OFF}, 0")
        for i in range(16):
            a(f"buffer_load_dwordx4 {V4(WO+4*i)}, v1, {S(SRD_A)}, s{S_OFF} offen {self.wflag}")
            if i < 15: a(f"s_add_u32 s{S_OFF}, s{S_OFF}, 4096")
        a(f"s_mov_b32 s{S_OFF}, 0")
        for i in range(7):
            a(f"buffer_load_dwordx4 {V4(WD+4*i)}, v1, {S(SRD_D)}, s{S_OFF} offen {self.wflag}")
            if i < 6: a(f"s_add_u32 s{S_OFF}, s{S_OFF}, 4096")
        a(f"s_lshl_b32 s{S_T0+2}, s{S_G}, 7"); a(f"s_lshl_b32 s{S_T0+3}, s{S_SP}, 2")
        a(f"s_add_u32 s{S_T0+2}, s{S_T0+2}, s{S_T0+3}")
        a(f"v_mov_b32 v2, s{S_T0+2}")
        a(f"buffer_load_dword v8, v2, {S(SRD_B)}, 0 offen")
        a(f"s_lshl_b32 s{S_T0+3}, s{S_T0+2}, 2")
        a(f"v_mov_b32 v3, s{S_T0+3}")
        a(f"ds_read_b128 v[12:15], v3 offset:{L_T}")
        a(f"v_mov_b32 v3, {L_RS}")
        a("ds_read_b32 v9, v3")
        self.masksXY(5, 7, 28)
        for k in range(5):
            a(f"v_mov_b32 v{32+4*k}, 0"); a(f"v_mov_b32 v{33+4*k}, 0")
        for k in range(8): a(f"v_mov_b32 v{56+k}, 0")
        a(f"s_mov_b32 s{S_M1}, 0xffff0000"); a(f"s_mov_b32 s{S_M1+1}, 0xffff0000")
        a(f"s_mov_b32 s{S_M2}, 0"); a(f"s_mov_b32 s{S_M2+1}, -1")
        a(f"s_mul_i32 s{S_T0+4}, s{PART}, {28*8}"); a(f"s_add_u32 s{S_T0+4}, s{S_T0+4}, {WS_GU}")
        a(f"s_add_u32 s{S_T0+5}, s{S_T0+4}, {4*1792*8}")
        a("v_lshrrev_b32 v10, 4, v0"); a(f"s_mov_b32 s{S_T0}, {1792*8}"); a(f"v_mul_lo_u32 v10, v10, s{S_T0}")
        a("v_and_b32 v11, 15, v0"); a("v_min_u32 v11, 13, v11"); a("v_lshlrev_b32 v11, 4, v11")
        a("v_add_u32 v10, v10, v11")
        a("v_and_b32 v11, 31, v0"); a("v_lshlrev_b32 v11, 3, v11")
        a.label("L_W_ypoll")
        a(f"buffer_load_dwordx4 v[16:19], v10, {S(SRD_WS)}, s{S_T0+4} offen sc1")
        a(f"buffer_load_dwordx4 v[20:23], v10, {S(SRD_WS)}, s{S_T0+5} offen sc1")
        a(f"buffer_load_dwordx2 v[24:25], v11, {S(SRD_WS)}, s{S_T0+8} offen sc1")
        a("s_waitcnt vmcnt(0)")
        a(f"v_xor_b32 v30, s{S_TAG}, v17")
        for r in (19, 21, 23, 25):
            a(f"v_xor_b32 v31, s{S_TAG}, v{r}"); a("v_or_b32 v30, v30, v31")
        a("v_cmp_ne_u32 vcc, 0, v30")
        a("s_cbranch_vccz L_W_ygot")
        self.spin_guard("L_W_ypoll", "L_W_ygot", sleep=32)
        a.label("L_W_ygot")
        a(f"v_cmp_ne_u32 vcc, s{S_T0+9}, v24")
        a("s_cmp_eq_u64 vcc, 0")
        a(f"s_cselect_b32 s{S_T0}, {0 if self.forceslow else 1}, 0")
        a(f"v_mov_b32 v26, s{S_T0}"); a(f"v_mov_b32 v27, {L_SAME}")
        a("ds_write_b32 v27, v26")
        for v in (16, 18, 20, 22): rows_reduce(a, v, 30, "v_add_f32")
        for v in (16, 18, 20, 22): rnd(a, v)
        for v in (16, 18):
            a(f"v_mul_f32 v28, s{S_LOG2E}, v{v}")
            a("v_sub_f32 v28, 0, v28")
            a("v_exp_f32 v28, v28")
            a("v_add_f32 v28, 1.0, v28")
            a("v_rcp_f32 v28, v28")
            a(f"v_mul_f32 v{v}, v{v}, v28")
            rnd(a, v)
        a("v_mul_f32 v16, v16, v20"); a("v_mul_f32 v18, v18, v22")
        a("v_cvt_pk_bf16_f32 v16, v16, v16"); a("v_cvt_pk_bf16_f32 v18, v18, v18")
        a("v_and_b32 v20, 1, v0"); a("v_lshlrev_b32 v20, 7, v20")
        a("v_bfe_u32 v21, v0, 1, 3"); a("v_lshlrev_b32 v21, 2, v21"); a("v_add_u32 v20, v20, v21")
        a("s_mov_b64 exec, 0x3fff")
        a(f"ds_write_b32 v20, v16 offset:{L_HP}")
        a(f"ds_write_b32 v20, v18 offset:{L_HP+64}")
        a("s_mov_b64 exec, -1")
        a("v_lshrrev_b32 v24, 4, v0"); a("v_lshlrev_b32 v24, 6, v24")
        a("s_waitcnt lgkmcnt(0)")
        HV = 160
        for k in range(2):
            a(f"ds_read_b128 {V4(HV+4*k)}, v24 offset:{L_HP+16*k}")
        a("s_waitcnt lgkmcnt(0)")
        self.masked_gemv(HV, WD, 7)
        for k in range(8): a(f"v_mul_f32 v{56+k}, v{56+k}, v9")
        a("v_lshlrev_b32 v12, 16, v8"); a(f"v_and_b32 v14, s{S_HI}, v8")
        a("v_add_f32 v12, v12, v13"); a("v_add_f32 v14, v14, v15")
        a(f"s_lshl_b32 s{S_T0+6}, s{PART}, 12")
        a(f"s_lshl_b32 s{S_T0+7}, s{CB}, 10"); a(f"s_add_u32 s{S_T0+6}, s{S_T0+6}, s{S_T0+7}")
        a(f"s_add_u32 s{S_T0+6}, s{S_T0+6}, {WS_AP}")
        a("v_and_b32 v20, 15, v0"); a("v_lshlrev_b32 v20, 6, v20")
        a("v_lshrrev_b32 v21, 4, v0"); a("v_lshlrev_b32 v21, 4, v21"); a("v_add_u32 v20, v20, v21")
        a(f"s_lshl_b32 s{S_T0+7}, s{S_T0+2}, 2"); a(f"s_add_u32 s{S_T0+7}, s{S_T0+7}, {WS_AP}")
        a("v_lshlrev_b32 v10, 12, v0")
        a("v_lshlrev_b32 v22, 2, v0")
        a("v_and_b32 v23, 3, v0"); a("v_lshlrev_b32 v23, 6, v23")
        a("v_lshrrev_b32 v25, 2, v0"); a("v_lshlrev_b32 v25, 2, v25"); a("v_add_u32 v23, v23, v25")
        a(f"v_mov_b32 v29, s{S_TAG}"); a(f"v_mov_b32 v31, s{S_TAG}")
        a(f"s_mov_b32 s{S_SPIN}, {SPIN_LIMIT}")
        a("s_waitcnt lgkmcnt(0)")
        self.stamp(1)
        a("s_barrier")
        a("s_barrier")
        self.stamp(2)
        for k in range(4):
            a(f"ds_read_b32 v{16+k}, v22 offset:{L_G+256*k}")
        a("s_waitcnt lgkmcnt(0)")
        a("v_add_f32 v16, v16, v17"); a("v_add_f32 v18, v18, v19"); a("v_add_f32 v26, v16, v18")
        a("v_cvt_pk_bf16_f32 v26, v26, v26")
        a(f"ds_write_b32 v23, v26 offset:{L_PP}")
        a("s_waitcnt lgkmcnt(0)")
        PPV = 168
        for k in range(4):
            a(f"ds_read_b128 {V4(PPV+4*k)}, v24 offset:{L_PP+16*k}")
        a("s_waitcnt lgkmcnt(0)")
        D0 = 56; D1 = 60
        self.masked_gemv(PPV, 64, 16)
        m1 = f"s[{S_M1}:{S_M1+1}]"; m2 = f"s[{S_M2}:{S_M2+1}]"
        a(f"v_cndmask_b32 v26, v{D0}, v{D0+2}, {m1}")
        a(f"v_cndmask_b32 v27, v{D1}, v{D1+2}, {m1}")
        a(f"v_cndmask_b32 v28, v26, v27, {m2}")
        a(f"v_cndmask_b32 v26, v{D0+1}, v{D0+3}, {m1}")
        a(f"v_cndmask_b32 v27, v{D1+1}, v{D1+3}, {m1}")
        a(f"v_cndmask_b32 v30, v26, v27, {m2}")
        a(f"buffer_store_dwordx4 v[28:31], v20, {S(SRD_WS)}, s{S_T0+6} offen sc1")
        self.stamp(3)
        a.label("L_W_apoll")
        a(f"buffer_load_dwordx4 v[24:27], v10, {S(SRD_WS)}, s{S_T0+7} offen sc1")
        a("s_waitcnt vmcnt(0)")
        a(f"v_xor_b32 v16, s{S_TAG}, v25")
        a(f"v_xor_b32 v17, s{S_TAG}, v27"); a("v_or_b32 v16, v16, v17")
        a("v_cmp_ne_u32 vcc, 0, v16")
        a("s_cbranch_vccz L_W_agot")
        self.spin_guard("L_W_apoll", "L_W_agot")
        a.label("L_W_agot")
        self.stamp(4)
        allreduce64(a, 24, 16, "v_add_f32"); allreduce64(a, 26, 17, "v_add_f32")
        a("v_add_f32 v24, v24, v12"); a("v_add_f32 v26, v26, v14")
        if self.perturb:
            import struct
            bits = struct.unpack("<I", struct.pack("<f", float(self.perturb)))[0]
            a(f"v_add_f32 v24, {bits:#x}, v24"); a(f"v_add_f32 v26, {bits:#x}, v26")
        a("v_cvt_pk_bf16_f32 v24, v24, v26")
        a("s_mov_b64 exec, 1")
        a(f"buffer_store_dword v24, v2, {S(SRD_C)}, 0 offen")
        a("s_cmp_lg_u32 s2, 0")
        a("s_cbranch_scc1 L_W_noep")
        a(f"v_mov_b32 v25, s{S_TAG}"); a("v_mov_b32 v26, 0")
        a(f"buffer_store_dword v25, v26, {S(SRD_WS)}, 0 offen sc1")
        a.label("L_W_noep")
        a("s_mov_b64 exec, -1")
        self.stamp(5)
        if self.spin:
            if self.spin.startswith("S"):
                a(f"v_mov_b32 v3, {L_RS+16}"); a("ds_read_b128 v[4:7], v3"); a("s_waitcnt lgkmcnt(0)")
                a("v_max_u32 v4, v4, v5"); a("v_max_u32 v6, v6, v7"); a("v_max_u32 v4, v4, v6")
                a(f"v_readfirstlane_b32 s{S_T0}, v4")
            else:
                k = int(self.spin[1:])
                a("s_waitcnt lgkmcnt(0)")
                a(f"s_mov_b32 s{S_T0}, s{S_TS+2*k}")
            a(f"s_add_u32 s{S_T0}, s{S_T0}, 10000")
            a.label("L_spin")
            a(f"s_memrealtime s[{S_T0+2}:{S_T0+3}]"); a("s_waitcnt lgkmcnt(0)")
            a(f"s_sub_u32 s{S_T0+4}, s{S_T0+2}, s{S_T0}")
            a(f"s_cmp_lt_i32 s{S_T0+4}, 0")
            a("s_cbranch_scc1 L_spin")
        self.dump_stamps(6, 3)
        self.hdump([(0, 0, "min"), (5, 1, "max"), (1, 10, "max"), (3, 11, "max"), (4, 12, "max"), (0, 13, "max")])
        a("s_waitcnt vmcnt(0)")

    def build(self):
        self.prologue()
        self.swave()
        self.qwave()
        self.wwave()
        self.a.label("L_end")
        self.a("s_endpgm")
        body = self.a.text()
        stub = open("parallel_sum__gqa_block_cached__moe_arch_mod__decode.s.ref").read()
        head = stub[:stub.index("; @launch")]
        txt = head + f"; @launch grid=(256,1,1) block=(384,1,1) lds={LDS_BYTES}\n"
        txt += f""".amdgcn_target "amdgcn-amd-amdhsa--gfx950"
.text
.globl {KNAME}
.p2align 8
.type {KNAME},@function
{KNAME}:
{body}
.section .rodata,"a"
.p2align 6
.amdhsa_kernel {KNAME}
  .amdhsa_next_free_vgpr 256
  .amdhsa_next_free_sgpr 102
  .amdhsa_accum_offset 256
  .amdhsa_group_segment_fixed_size 0
  .amdhsa_kernarg_size 104
  .amdhsa_user_sgpr_count 2
  .amdhsa_user_sgpr_kernarg_segment_ptr 1
  .amdhsa_system_sgpr_workgroup_id_x 1
.end_amdhsa_kernel
"""
        return txt

if __name__ == "__main__":
    import argparse
    p = argparse.ArgumentParser()
    p.add_argument("--dbg", action="store_true")
    p.add_argument("--wflag", default="nt")
    p.add_argument("--hdbg", action="store_true")
    p.add_argument("--spin", default=None)
    p.add_argument("--perturb", default=None)
    p.add_argument("--forceslow", action="store_true")
    p.add_argument("--nofast", action="store_true")
    p.add_argument("--auxprio", type=int, default=3)
    p.add_argument("--qprio", type=int, default=3)
    p.add_argument("-o", default="parallel_sum__gqa_block_cached__moe_arch_mod__decode.s")
    args = p.parse_args()
    g = Gen(dbg=args.dbg, wflag=args.wflag, hdbg=args.hdbg, spin=args.spin, perturb=args.perturb,
            forceslow=args.forceslow, auxprio=args.auxprio, qprio=args.qprio, nofast=args.nofast)
    t = g.build()
    open(args.o, "w").write(t)
    print("wrote", args.o, len(t), "bytes")
```

```python
import sys
from asmlib import Asm

KNAME = "parallel_sum__gqa_block_cached__moe_arch_mod__decode_kernel"
WS_QG = 0x1000
WS_XT = 0x6000
WS_ST = 0x8000
WS_AP = 0x10000
WS_GU = 0x60000
WS_OP = 0x100000
WS_DBG = 0x200000
WS_SIZE = 0x300000
L_T = 0; L_Q = 4096; L_O = 5120; L_ST = 13312; L_G = 13568; L_PP = 14592; L_RS = 14848
L_CNT = 14852; L_SAME = 14856; L_HP = 14912
LDS_BYTES = 15360
SPIN_LIMIT = 40000

S_X, S_K, S_V, S_WQ, S_WO, S_WR, S_WG, S_WU, S_WD, S_OUT, S_WS = 8, 10, 12, 14, 16, 20, 22, 24, 26, 28, 32
S_G, S_SP, S_WAVE, S_TAG = 34, 35, 36, 37
SRD_WS = 40
SRD_A = 44
SRD_B = 48
SRD_C = 52
SRD_D = 4
S_OFF = 56
S_SO = 3
S_OFFS = (76, 77, 78)
S_SPIN = 57
S_HI = 58
S_LOG2E = 59
S_SCALE = 60
S_M1 = 62
S_M2 = 64
S_T0 = 66
S_TS = 80

def srd(a, d, base, off_sgpr=None, off_imm=0, size=0):
    if off_sgpr is not None:
        a(f"s_add_u32 s{d}, s{base}, s{off_sgpr}")
        a(f"s_addc_u32 s{d+1}, s{base+1}, 0")
    else:
        a(f"s_mov_b32 s{d}, s{base}")
        a(f"s_mov_b32 s{d+1}, s{base+1}")
    a(f"s_mov_b32 s{d+2}, {size:#x}")
    a(f"s_mov_b32 s{d+3}, 0x00020000")

def S(d): return f"s[{d}:{d+3}]"
def V4(r): return f"v[{r}:{r+3}]"
def V2(r): return f"v[{r}:{r+1}]"

def allreduce64(a, v, t, op):
    a(f"{op}_dpp v{v}, v{v}, v{v} quad_perm:[1,0,3,2] row_mask:0xf bank_mask:0xf")
    a(f"{op}_dpp v{v}, v{v}, v{v} quad_perm:[2,3,0,1] row_mask:0xf bank_mask:0xf")
    a(f"{op}_dpp v{v}, v{v}, v{v} row_half_mirror row_mask:0xf bank_mask:0xf")
    a(f"{op}_dpp v{v}, v{v}, v{v} row_mirror row_mask:0xf bank_mask:0xf")
    rows_reduce(a, v, t, op)

def rows_reduce(a, v, t, op):
    a(f"v_mov_b32 v{t}, v{v}")
    a(f"v_permlane16_swap_b32 v{v}, v{t}")
    a(f"{op} v{v}, v{v}, v{t}")
    a(f"v_mov_b32 v{t}, v{v}")
    a(f"v_permlane32_swap_b32 v{v}, v{t}")
    a(f"{op} v{v}, v{v}, v{t}")

def rnd(a, v):
    a(f"v_cvt_pk_bf16_f32 v{v}, v{v}, v{v}")
    a(f"v_and_b32 v{v}, s{S_HI}, v{v}")

class Gen:
    def __init__(self, dbg=False, wflag="nt", hdbg=False, spin=None, perturb=None, forceslow=False, auxprio=3, qprio=3, nofast=False, early=3):
        self.hdbg = hdbg; self.spin = spin; self.perturb = perturb
        if hdbg: dbg = False
        self.dbg = dbg; self.wflag = wflag; self.forceslow = forceslow; self.auxprio = auxprio; self.qprio = qprio
        self.nofast = nofast; self.early = early
        self.a = Asm()

    def hdump(self, items, nsleep=5):
        if not self.hdbg: return
        a = self.a
        a("s_waitcnt lgkmcnt(0) vmcnt(0)")
        a("s_setprio 0")
        for _ in range(nsleep): a("s_sleep 127")
        srd(a, SRD_C, 30, size=256)
        a("s_mov_b64 exec, 1")
        for (st, w, mode) in items:
            if mode == "min":
                a(f"s_not_b32 s{S_T0}, s{S_TS+2*st}")
                a(f"v_mov_b32 v2, s{S_T0}")
            else:
                a(f"v_mov_b32 v2, s{S_TS+2*st}")
            a(f"v_mov_b32 v3, {4*w}")
            a(f"buffer_atomic_umax v2, v3, {S(SRD_C)}, 0 offen sc1")
            a("s_waitcnt vmcnt(0)")
        a("s_mov_b64 exec, -1")

    def stamp(self, idx):
        if self.dbg or self.hdbg or self.spin:
            self.a(f"s_memrealtime s[{S_TS+2*idx}:{S_TS+2*idx+1}]")

    def dump_stamps(self, n, slot, vt=2):
        if not self.dbg: return
        a = self.a
        a("s_waitcnt lgkmcnt(0) vmcnt(0)")
        a(f"s_lshl_b32 s{S_T0}, s2, 10")
        a(f"s_lshl_b32 s{S_T0+1}, s{S_WAVE}, 7")
        a(f"s_add_u32 s{S_T0}, s{S_T0}, s{S_T0+1}")
        a(f"s_add_u32 s{S_T0}, s{S_T0}, {WS_DBG}")
        a("s_mov_b64 exec, 1")
        a(f"v_mov_b32 v{vt+2}, s{S_T0}")
        for i in range(n):
            a(f"v_mov_b32 v{vt}, s{S_TS+2*i}")
            a(f"v_mov_b32 v{vt+1}, s{S_TS+2*i+1}")
            a(f"buffer_store_dwordx2 {V2(vt)}, v{vt+2}, {S(SRD_WS)}, 0 offen offset:{8*i}")
            a("s_waitcnt vmcnt(0)")
        a("s_mov_b64 exec, -1")

    def spin_guard(self, lab_retry, lab_done, sleep=1):
        a = self.a
        a(f"s_sub_u32 s{S_SPIN}, s{S_SPIN}, 1")
        a(f"s_cmp_eq_u32 s{S_SPIN}, 0")
        a(f"s_cbranch_scc1 {lab_done}")
        if sleep: a(f"s_sleep {sleep}")
        a(f"s_branch {lab_retry}")

    def prologue(self):
        a = self.a
        a("s_cmp_ge_u32 s2, 256")
        a("s_cbranch_scc1 L_end")
        self.stamp(0)
        a("s_load_dwordx16 s[8:23], s[0:1], 0")
        a("s_load_dwordx8 s[24:31], s[0:1], 64")
        a(f"s_load_dwordx2 s[{S_WS}:{S_WS+1}], s[0:1], 96")
        a("v_lshrrev_b32 v1, 6, v0")
        a("v_and_b32 v0, 63, v0")
        a(f"s_and_b32 s{S_G}, s2, 7")
        a(f"s_lshr_b32 s{S_SP}, s2, 3")
        a(f"v_readfirstlane_b32 s{S_WAVE}, v1")
        a(f"s_mov_b32 s{S_HI}, 0xffff0000")
        a(f"s_mov_b32 s{S_LOG2E}, 0x3fb8aa3b")
        a(f"s_mov_b32 s{S_SPIN}, {SPIN_LIMIT}")
        a("s_waitcnt lgkmcnt(0)")
        a(f"s_load_dword s{S_TAG}, s[{S_WS}:{S_WS+1}], 0")
        srd(a, SRD_WS, S_WS, size=WS_SIZE)
        a(f"s_cmp_lt_u32 s{S_WAVE}, 4")
        a("s_cbranch_scc1 L_S")
        a(f"s_cmp_eq_u32 s{S_WAVE}, 4")
        a("s_cbranch_scc1 L_Q")
        a("s_branch L_W")

    def get_tag(self):
        a = self.a
        a("s_waitcnt lgkmcnt(0)")
        a(f"s_add_u32 s{S_TAG}, s{S_TAG}, 1")

    RING = 64
    def issueK(self, slot):
        a = self.a; b = self.RING + 64*slot
        for t in range(2):
            for c in range(4):
                r = b + 16*t + 4*c
                a(f"buffer_load_dwordx4 {V4(r)}, v{1+t}, {S(SRD_A)}, s{S_OFFS[slot]} offen offset:{64*c} nt")
    def issueV(self, slot):
        a = self.a; b = self.RING + 64*slot + 32
        for r8 in range(8):
            r = b + 4*r8
            a(f"buffer_load_dwordx4 {V4(r)}, v{3+(r8>>2)}, {S(SRD_B)}, s{S_OFFS[slot]} offen offset:{1024*(r8&3)} nt")

    def group(self, slot, kwait=40, vwait=40, reissue=True):
        a = self.a
        b = self.RING + 64*slot
        SC = 32; PB = 10; D0 = 40; D1 = 44; Q = 48
        vM, vMC, vL, vMX, vMY = 6, 8, 9, 5, 7
        a(f"s_cmp_ge_u32 s{S_OFFS[slot]}, 0x80000")
        a("s_cbranch_scc1 L_S_done")
        a("s_mov_b64 exec, 1")
        a(f"ds_inc_rtn_u32 v28, v10, v5 offset:{L_CNT}")
        a("s_mov_b64 exec, -1")
        a(f"s_waitcnt vmcnt({kwait})")
        for c in range(4):
            for t in range(2):
                cc = "0" if c == 0 else V4(SC+4*t)
                a(f"v_mfma_f32_16x16x32_bf16 {V4(SC+4*t)}, {V4(b+16*t+4*c)}, {V4(Q+4*c)}, {cc}")
        a("s_waitcnt lgkmcnt(0)")
        a(f"v_readfirstlane_b32 s{S_T0}, v28")
        a(f"s_lshl_b32 s{S_OFFS[slot]}, s{S_T0}, 13")
        self.issueK(slot)
        for k in range(4):
            s0 = SC+2*k; t = 28+k
            a(f"v_cvt_pk_bf16_f32 v{t}, v{s0}, v{s0+1}")
        for k in range(4):
            s0 = SC+2*k; t = 28+k
            a(f"v_lshlrev_b32 v{s0}, 16, v{t}")
            a(f"v_and_b32 v{s0+1}, s{S_HI}, v{t}")
        for k in range(4):
            s0 = SC+2*k
            a(f"v_pk_mul_f32 {V2(s0)}, {V2(s0)}, s[{S_SCALE}:{S_SCALE+1}]")
        for k in range(4):
            s0 = SC+2*k; t = 28+k
            a(f"v_cvt_pk_bf16_f32 v{t}, v{s0}, v{s0+1}")
        for k in range(4):
            s0 = SC+2*k; t = 28+k
            a(f"v_lshlrev_b32 v{s0}, 16, v{t}")
            a(f"v_and_b32 v{s0+1}, s{S_HI}, v{t}")
        a(f"v_max3_f32 v28, v{SC}, v{SC+1}, v{SC+2}")
        a(f"v_max3_f32 v29, v{SC+3}, v{SC+4}, v{SC+5}")
        a(f"v_max3_f32 v28, v28, v{SC+6}, v{SC+7}")
        a(f"v_max_f32 v28, v28, v29")
        a(f"v_cmp_gt_f32 vcc, v28, v{vM}")
        skip = a.uniq("L_skip")
        a(f"s_cbranch_vccz {skip}")
        rows_reduce(a, 28, 29, "v_max_f32")
        a(f"v_max_f32 v28, v28, v{vM}")
        a(f"v_mul_f32 v29, s{S_LOG2E}, v28")
        a(f"v_sub_f32 v30, v{vMC}, v29")
        a(f"v_exp_f32 v30, v30")
        a(f"v_mov_b32 v{vM}, v28")
        a(f"v_mov_b32 v{vMC}, v29")
        a(f"v_mul_f32 v{vL}, v{vL}, v30")
        for h in range(4):
            a(f"v_mov_b32_dpp v31, v30 row_newbcast:{4*h} row_mask:{1<<h:#x} bank_mask:0xf")
        for k in range(8):
            a(f"v_mul_f32 v{D0+k}, v{D0+k}, v31")
        a.label(skip)
        for k in range(8):
            a(f"v_fma_f32 v{SC+k}, v{SC+k}, s{S_LOG2E}, -v{vMC}")
        for k in range(8):
            a(f"v_exp_f32 v{SC+k}, v{SC+k}")
        for t in range(2):
            for r in range(4):
                a(f"v_cvt_pk_bf16_f32 v{28+r}, v{SC+4*t+r}, v{SC+4*t+r}")
            for r in range(4):
                a(f"v_and_b32 v{PB+4*r+2}, v{28+r}, v{vMX}")
                a(f"v_and_b32 v{PB+4*r+3}, v{28+r}, v{vMY}")
            if t == 0:
                a(f"s_waitcnt vmcnt({vwait})")
            for r in range(4):
                vb = b + 32 + 4*(4*t+r)
                a(f"v_mfma_f32_16x16x32_bf16 {V4(D0)}, {V4(PB+4*r+2)}, {V4(vb)}, {V4(D0)}")
                a(f"v_mfma_f32_16x16x32_bf16 {V4(D1)}, {V4(PB+4*r)}, {V4(vb)}, {V4(D1)}")
        self.issueV(slot)
        a(f"v_pk_add_f32 v[28:29], {V2(SC)}, {V2(SC+2)}")
        a(f"v_pk_add_f32 v[30:31], {V2(SC+4)}, {V2(SC+6)}")
        a(f"v_pk_add_f32 v[28:29], v[28:29], v[30:31]")
        a(f"v_add_f32 v28, v28, v29")
        a(f"v_add_f32 v{vL}, v{vL}, v28")

    def masksXY(self, vX, vY, t):
        a = self.a
        a(f"v_and_b32 v{t}, 3, v0")
        a(f"v_mov_b32 v{vX}, 0"); a(f"v_mov_b32 v{vY}, 0")
        a(f"v_mov_b32 v{t+1}, 0xffff")
        a(f"v_mov_b32 v{t+2}, s{S_HI}")
        a(f"v_cmp_eq_u32 vcc, 0, v{t}"); a(f"v_cndmask_b32 v{vX}, v{vX}, v{t+1}, vcc")
        a(f"v_cmp_eq_u32 vcc, 1, v{t}"); a(f"v_cndmask_b32 v{vX}, v{vX}, v{t+2}, vcc")
        a(f"v_cmp_eq_u32 vcc, 2, v{t}"); a(f"v_cndmask_b32 v{vY}, v{vY}, v{t+1}, vcc")
        a(f"v_cmp_eq_u32 vcc, 3, v{t}"); a(f"v_cndmask_b32 v{vY}, v{vY}, v{t+2}, vcc")

    def swave(self):
        a = self.a
        a.label("L_S")
        a(f"s_lshl_b32 s{S_T0}, s{S_G}, 24")
        a(f"s_lshl_b32 s{S_T0+1}, s{S_SP}, 19")
        a(f"s_add_u32 s{S_T0}, s{S_T0}, s{S_T0+1}")
        srd(a, SRD_A, S_K, S_T0, size=0x80000)
        srd(a, SRD_B, S_V, S_T0, size=0x80000)
        a("v_and_b32 v1, 3, v0"); a("v_lshlrev_b32 v1, 10, v1")
        a("v_bfe_u32 v2, v0, 2, 2"); a("v_lshlrev_b32 v2, 8, v2"); a("v_add_u32 v1, v1, v2")
        a("v_lshrrev_b32 v2, 4, v0"); a("v_lshlrev_b32 v2, 4, v2"); a("v_add_u32 v1, v1, v2")
        a("v_add_u32 v2, 0x1000, v1")
        a("v_lshlrev_b32 v3, 4, v0"); a("v_add_u32 v4, 0x1000, v3")
        for k in range(3):
            a(f"s_lshl_b32 s{S_OFFS[k]}, s{S_WAVE}, 13")
            if k: a(f"s_add_u32 s{S_OFFS[k]}, s{S_OFFS[k]}, {32768*k}")
        a("s_barrier")
        self.stamp(1)
        for slot in range(3):
            if slot == self.early: a("s_barrier")
            self.issueK(slot); self.issueV(slot)
        self.masksXY(5, 7, 28)
        for k in range(5):
            a(f"v_mov_b32 v{10+4*k}, 0"); a(f"v_mov_b32 v{11+4*k}, 0")
        for k in range(8): a(f"v_mov_b32 v{40+k}, 0")
        a("v_mov_b32 v6, 0xff800000"); a("v_mov_b32 v8, 0xff800000"); a("v_mov_b32 v9, 0")
        a(f"s_mov_b32 s{S_SCALE}, 0x3db504f3"); a(f"s_mov_b32 s{S_SCALE+1}, 0x3db504f3")
        a("v_bfe_u32 v28, v0, 2, 2"); a("v_lshlrev_b32 v28, 8, v28")
        a("v_lshrrev_b32 v29, 4, v0"); a("v_lshlrev_b32 v29, 4, v29"); a("v_add_u32 v28, v28, v29")
        a(f"s_lshl_b32 s{S_T0}, s{S_G}, 5"); a(f"s_add_u32 s{S_T0}, s{S_T0}, s{S_SP}")
        a(f"s_lshl_b32 s{S_T0}, s{S_T0}, 12")
        a(f"s_lshl_b32 s67, s{S_WAVE}, 10")
        a(f"s_add_u32 s67, s{S_T0}, s67"); a(f"s_add_u32 s67, s67, {WS_OP}")
        a(f"s_lshl_b32 s68, s{S_G}, 2"); a(f"s_add_u32 s68, s68, s{S_WAVE}")
        a(f"s_lshl_b32 s68, s68, 5"); a(f"s_add_u32 s68, s68, s{S_SP}")
        a(f"s_lshl_b32 s68, s68, 4"); a(f"s_add_u32 s68, s68, {WS_ST}")
        a(f"s_lshr_b32 s74, s{S_SP}, 3"); a(f"s_bfe_u32 s75, s{S_SP}, 0x10002")
        a(f"s_lshl_b32 s{S_T0}, s{S_G}, 5"); a(f"s_lshl_b32 s69, s{S_WAVE}, 3")
        a(f"s_add_u32 s{S_T0}, s{S_T0}, s69"); a(f"s_lshl_b32 s{S_T0}, s{S_T0}, 12")
        a(f"s_lshl_b32 s69, s74, 10"); a(f"s_add_u32 s{S_T0}, s{S_T0}, s69")
        a(f"s_lshl_b32 s69, s75, 9"); a(f"s_add_u32 s{S_T0}, s{S_T0}, s69")
        a(f"s_add_u32 s69, s{S_T0}, {WS_OP}")
        for u in range(1, 4):
            a(f"s_add_u32 s{69+u}, s69, {8192*u}")
        a(f"s_lshl_b32 s73, s{S_G}, 2"); a(f"s_add_u32 s73, s73, s74")
        a(f"s_lshl_b32 s73, s73, 9"); a(f"s_add_u32 s73, s73, {WS_ST}")
        self.get_tag()
        self.stamp(2)
        a("s_barrier")
        self.stamp(3)
        for c in range(4):
            a(f"ds_read_b128 {V4(48+4*c)}, v28 offset:{L_Q+64*c}")
        a("s_waitcnt lgkmcnt(0)")
        a.label("L_S_loop")
        for slot in range(3):
            self.group(slot)
        a("s_branch L_S_loop")
        a.label("L_S_done")
        a("s_waitcnt vmcnt(0)")
        self.stamp(4)
        rows_reduce(a, 9, 28, "v_add_f32")
        a("v_lshlrev_b32 v28, 5, v0")
        a(f"s_lshl_b32 s{S_T0}, s{S_WAVE}, 11")
        a(f"v_add_u32 v28, s{S_T0}, v28")
        a(f"ds_write_b128 v28, {V4(40)} offset:{L_O}")
        a(f"ds_write_b128 v28, {V4(44)} offset:{L_O+16}")
        a("v_lshlrev_b32 v29, 3, v0")
        a(f"s_lshl_b32 s{S_T0}, s{S_WAVE}, 3")
        a(f"v_add_u32 v29, s{S_T0}, v29")
        a("s_mov_b64 exec, 0x1111")
        a(f"ds_write_b64 v29, v[8:9] offset:{L_ST}")
        a("s_mov_b64 exec, -1")
        a("s_waitcnt lgkmcnt(0)")
        a("s_barrier")
        self.stamp(5)
        a(f"s_lshl_b32 s{S_T0}, s{S_WAVE}, 5")
        a(f"v_mov_b32 v28, s{S_T0}")
        a(f"ds_read_b128 v[64:67], v28 offset:{L_ST}")
        a(f"ds_read_b128 v[68:71], v28 offset:{L_ST+16}")
        a(f"ds_read_b32 v90, v10 offset:{L_SAME}")
        a(f"s_lshl_b32 s{S_T0}, s{S_WAVE}, 9")
        a("v_lshlrev_b32 v29, 3, v0")
        a(f"v_add_u32 v29, s{S_T0}, v29")
        for k in range(4):
            a(f"ds_read_b64 {V2(72+2*k)}, v29 offset:{L_O+2048*k}")
        a(f"v_mov_b32 v85, s{S_TAG}"); a(f"v_mov_b32 v87, s{S_TAG}")
        a(f"v_mov_b32 v81, s{S_TAG}"); a(f"v_mov_b32 v83, s{S_TAG}")
        a("v_lshlrev_b32 v28, 4, v0")
        a("s_waitcnt lgkmcnt(4)")
        a(f"v_readfirstlane_b32 s{S_T0}, v90")
        a("v_max3_f32 v80, v64, v66, v68")
        a("v_max_f32 v80, v80, v70")
        for k in range(4):
            a(f"v_sub_f32 v{64+2*k}, v{64+2*k}, v80")
        for k in range(4):
            a(f"v_exp_f32 v{64+2*k}, v{64+2*k}")
        a("v_mul_f32 v82, v64, v65")
        a("v_fma_f32 v82, v66, v67, v82")
        a("v_fma_f32 v82, v68, v69, v82")
        a("v_fma_f32 v82, v70, v71, v82")
        a("s_waitcnt lgkmcnt(0)")
        a("v_mul_f32 v84, v64, v72"); a("v_mul_f32 v86, v64, v73")
        for k in range(1, 4):
            a(f"v_fma_f32 v84, v{64+2*k}, v{72+2*k}, v84")
            a(f"v_fma_f32 v86, v{64+2*k}, v{73+2*k}, v86")
        paths = [("sc1",)] if self.nofast else [("",), ("sc1",)]
        if not self.nofast:
            a(f"s_cmp_eq_u32 s{S_T0}, 0")
            a("s_cbranch_scc1 L_S_pubslow")
        for pi_, (fl,) in enumerate(paths):
            if pi_ == 1: a.label("L_S_pubslow")
            a(f"buffer_store_dwordx4 v[84:87], v28, {S(SRD_WS)}, s67 offen {fl}")
            a("s_mov_b64 exec, 1")
            a(f"buffer_store_dwordx4 v[80:83], v10, {S(SRD_WS)}, s68 offen {fl}")
            a("s_mov_b64 exec, -1")
            if pi_ == 0 and not self.nofast: a("s_branch L_S_pubdone")
        a.label("L_S_pubdone")
        self.stamp(6)
        a("v_lshrrev_b32 v28, 5, v0"); a("v_lshlrev_b32 v28, 12, v28")
        a("v_and_b32 v29, 31, v0"); a("v_lshlrev_b32 v29, 4, v29"); a("v_add_u32 v28, v28, v29")
        a.label("L_S_poll")
        for u in range(4):
            a(f"buffer_load_dwordx4 {V4(64+4*u)}, v28, {S(SRD_WS)}, s{69+u} offen sc1")
        a(f"buffer_load_dwordx4 v[80:83], v29, {S(SRD_WS)}, s73 offen sc1")
        a("s_waitcnt vmcnt(0)")
        a(f"v_xor_b32 v30, s{S_TAG}, v65")
        for r in [67, 69, 71, 73, 75, 77, 79, 81, 83]:
            a(f"v_xor_b32 v31, s{S_TAG}, v{r}")
            a("v_or_b32 v30, v30, v31")
        a("v_cmp_ne_u32 vcc, 0, v30")
        a("s_cbranch_vccz L_S_got")
        self.spin_guard("L_S_poll", "L_S_got")
        a.label("L_S_got")
        self.stamp(7)
        a("v_mov_b32 v30, v80")
        allreduce64(a, 30, 31, "v_max_f32")
        a("v_sub_f32 v80, v80, v30")
        a("v_exp_f32 v80, v80")
        a("v_mul_f32 v82, v80, v82")
        allreduce64(a, 82, 31, "v_add_f32")
        a("v_rcp_f32 v82, v82")
        a("v_add_f32 v80, v80, v80")
        a("v_mul_f32 v80, v80, v82")
        a("v_lshrrev_b32 v30, 5, v0")
        a(f"s_lshl_b32 s{S_T0}, s{S_WAVE}, 3")
        a(f"v_add_u32 v30, s{S_T0}, v30")
        a("v_lshlrev_b32 v30, 2, v30")
        for u in range(4):
            if u: a("v_add_u32 v30, 8, v30")
            a(f"ds_bpermute_b32 v{84+u}, v30, v80")
        a("s_waitcnt lgkmcnt(0)")
        a("v_mul_f32 v88, v84, v64"); a("v_mul_f32 v89, v84, v66")
        for u in range(1, 4):
            a(f"v_fma_f32 v88, v{84+u}, v{64+4*u}, v88")
            a(f"v_fma_f32 v89, v{84+u}, v{66+4*u}, v89")
        a("v_mov_b32 v90, v88"); a("v_mov_b32 v91, v89")
        a("v_permlane32_swap_b32 v88, v90"); a("v_permlane32_swap_b32 v89, v91")
        a("v_add_f32 v88, v88, v90"); a("v_add_f32 v89, v89, v91")
        a("v_and_b32 v30, 31, v0"); a("v_lshlrev_b32 v30, 3, v30")
        a(f"s_lshl_b32 s{S_T0}, s{S_WAVE}, 8")
        a(f"v_add_u32 v30, s{S_T0}, v30")
        a(f"ds_write_b64 v30, v[88:89] offset:{L_G}")
        a("s_waitcnt lgkmcnt(0)")
        if self.spin and self.spin.startswith("S"):
            k = int(self.spin[1:])
            a(f"s_lshl_b32 s{S_T0}, s{S_WAVE}, 2"); a(f"s_add_u32 s{S_T0}, s{S_T0}, {L_RS+16}")
            a(f"v_mov_b32 v30, s{S_T0}"); a(f"v_mov_b32 v31, s{S_TS+2*k}")
            a("ds_write_b32 v30, v31"); a("s_waitcnt lgkmcnt(0)")
        a("s_barrier")
        self.stamp(8)
        if self.dbg:
            a(f"s_getreg_b32 s{S_TS+18}, hwreg(HW_REG_XCC_ID)"); a(f"s_mov_b32 s{S_TS+19}, 0")
            self.dump_stamps(10, 0)
        self.hdump([(3, 2, "max"), (4, 3, "max"), (4, 4, "min"), (5, 5, "max"), (7, 6, "max"), (2, 15, "max")])
        a("s_branch L_end")

    def gemv_loads(self, srd_, reg, step):
        a = self.a
        a(f"s_mov_b32 s{S_OFF}, 0")
        for i in range(16):
            a(f"buffer_load_dwordx4 {V4(reg+4*i)}, v1, {S(srd_)}, s{S_OFF} offen {self.wflag}")
            if i < 15: a(f"s_add_u32 s{S_OFF}, s{S_OFF}, {step}")

    def gemv_compute(self, reg, tb, acc, wait_first, outA, outB, rors):
        a = self.a
        for k in range(8): a(f"v_mov_b32 v{acc+k}, 0")
        for i in range(16):
            if wait_first is not None:
                a(f"s_waitcnt vmcnt({wait_first + 15 - i})")
            for k in range(4):
                a(f"v_dot2c_f32_bf16 v{acc+2*k}, v{reg+4*i+k}, v{tb+2*i}")
                a(f"v_dot2c_f32_bf16 v{acc+2*k+1}, v{reg+4*i+k}, v{tb+2*i+1}")
        for k in range(4):
            a(f"v_permlane32_swap_b32 v{acc+k}, v{acc+4+k}")
        for k in range(4):
            a(f"v_add_f32 v{acc+k}, v{acc+k}, v{acc+4+k}")
        a(f"v_permlane16_swap_b32 v{acc}, v{acc+2}")
        a(f"v_permlane16_swap_b32 v{acc+1}, v{acc+3}")
        a(f"v_add_f32 v{outA}, v{acc}, v{acc+2}")
        a(f"v_add_f32 v{outB}, v{acc+1}, v{acc+3}")
        for rr in rors:
            a(f"v_add_f32_dpp v{outA}, v{outA}, v{outA} row_ror:{rr} row_mask:0xf bank_mask:0xf")
            a(f"v_add_f32_dpp v{outB}, v{outB}, v{outB} row_ror:{rr} row_mask:0xf bank_mask:0xf")

    def read_T(self, tb, shift, stride):
        a = self.a
        for i in range(16):
            a(f"ds_read_b64 {V2(tb+2*i)}, v2 offset:{L_T+stride*i}")

    def qwave(self):
        a = self.a
        a.label("L_Q")
        a(f"s_setprio {self.qprio}")
        srd(a, SRD_A, S_X, size=1024)
        srd(a, SRD_B, S_WR, size=1024)
        a(f"s_lshl_b32 s{S_T0}, s{S_G}, 10"); a(f"s_lshl_b32 s{S_T0+1}, s{S_SP}, 5")
        a(f"s_add_u32 s{S_T0}, s{S_T0}, s{S_T0+1}")
        a(f"s_add_u32 s{SRD_C}, s{S_WQ}, s{S_T0}"); a(f"s_addc_u32 s{SRD_C+1}, s{S_WQ+1}, 0")
        a(f"s_sub_u32 s{SRD_C+2}, {512*8192}, s{S_T0}"); a(f"s_mov_b32 s{SRD_C+3}, 0x00020000")
        a("v_lshlrev_b32 v3, 4, v0")
        a(f"buffer_load_dwordx4 v[4:7], v3, {S(SRD_A)}, 0 offen")
        a(f"buffer_load_dwordx4 v[8:11], v3, {S(SRD_B)}, 0 offen")
        a("v_lshrrev_b32 v1, 1, v0"); a("v_lshlrev_b32 v1, 13, v1")
        a("v_and_b32 v2, 1, v0"); a("v_lshlrev_b32 v2, 4, v2"); a("v_add_u32 v1, v1, v2")
        self.gemv_loads(SRD_C, 64, 32*8192)
        a(f"v_mov_b32 v12, {L_CNT}"); a("v_mov_b32 v13, 12")
        a("ds_write_b32 v12, v13")
        a("s_waitcnt lgkmcnt(0)")
        a("s_barrier")
        a("s_waitcnt vmcnt(17)")
        for k in range(4):
            a(f"v_lshlrev_b32 v{16+2*k}, 16, v{4+k}")
            a(f"v_and_b32 v{17+2*k}, s{S_HI}, v{4+k}")
        a("v_pk_add_f32 v[24:25], v[16:17], v[18:19]")
        a("v_pk_add_f32 v[26:27], v[20:21], v[22:23]")
        a("v_pk_add_f32 v[24:25], v[24:25], v[26:27]")
        a("v_add_f32 v24, v24, v25")
        allreduce64(a, 24, 25, "v_add_f32")
        a("v_mul_f32 v24, 0x3b000000, v24")
        for k in range(8): a(f"v_sub_f32 v{28+k}, v{16+k}, v24")
        a("v_mul_f32 v26, v28, v28")
        for k in range(1, 8): a(f"v_fma_f32 v26, v{28+k}, v{28+k}, v26")
        allreduce64(a, 26, 25, "v_add_f32")
        a("v_mul_f32 v26, 0x3b000000, v26")
        rnd(a, 24); rnd(a, 26)
        a("v_add_f32 v26, 0x3727c5ac, v26"); rnd(a, 26)
        a("v_sqrt_f32 v26, v26"); rnd(a, 26)
        a("v_rcp_f32 v26, v26")
        for k in range(8): a(f"v_sub_f32 v{16+k}, v{16+k}, v24")
        for k in range(4): a(f"v_cvt_pk_bf16_f32 v{28+k}, v{16+2*k}, v{17+2*k}")
        for k in range(4):
            a(f"v_lshlrev_b32 v{16+2*k}, 16, v{28+k}")
            a(f"v_and_b32 v{17+2*k}, s{S_HI}, v{28+k}")
        for k in range(8): a(f"v_mul_f32 v{16+k}, v{16+k}, v26")
        for k in range(4): a(f"v_cvt_pk_bf16_f32 v{12+k}, v{16+2*k}, v{17+2*k}")
        a("v_lshlrev_b32 v2, 6, v0")
        for k in range(4):
            a(f"v_and_b32 v28, 0xffff, v{12+k}")
            a(f"v_lshlrev_b32 v29, 16, v{12+k}")
            a(f"v_lshrrev_b32 v30, 16, v{12+k}")
            a(f"v_and_b32 v31, s{S_HI}, v{12+k}")
            a(f"ds_write_b128 v2, v[28:31] offset:{L_T+16*k}")
            if k < 3:
                a("s_nop 1")
        a("s_waitcnt lgkmcnt(0)")
        a("v_lshrrev_b32 v2, 1, v0"); a("v_lshlrev_b32 v2, 3, v2")
        self.read_T(128, 1, 256)
        a("s_waitcnt lgkmcnt(0)")
        self.stamp(1)
        self.gemv_compute(64, 128, 16, 0, 24, 25, (2, 4, 8))
        self.get_tag()
        a("v_cvt_pk_bf16_f32 v26, v24, v25")
        a(f"v_mov_b32 v27, s{S_TAG}")
        a("v_and_b32 v2, 1, v0"); a("v_lshlrev_b32 v2, 5, v2")
        a("v_lshrrev_b32 v3, 4, v0"); a("v_lshlrev_b32 v3, 3, v3"); a("v_add_u32 v2, v2, v3")
        a(f"s_lshl_b32 s{S_T0}, s{S_G}, 11"); a(f"s_add_u32 s{S_T0}, s{S_T0}, {WS_QG}")
        a(f"s_lshl_b32 s{S_T0+1}, s{S_SP}, 6"); a(f"s_add_u32 s{S_T0+1}, s{S_T0+1}, s{S_T0}")
        a("s_mov_b32 exec_lo, 0x00030003"); a("s_mov_b32 exec_hi, 0x00030003")
        a(f"buffer_store_dwordx2 v[26:27], v2, {S(SRD_WS)}, s{S_T0+1} offen sc1")
        a("s_mov_b64 exec, -1")
        self.stamp(2)
        a("v_mov_b32 v28, 0")
        for k in range(4): a(f"v_dot2c_f32_bf16 v28, v{12+k}, v{8+k}")
        allreduce64(a, 28, 29, "v_add_f32")
        rnd(a, 28)
        a(f"v_mul_f32 v28, s{S_LOG2E}, v28")
        a("v_sub_f32 v28, 0, v28")
        a("v_exp_f32 v28, v28")
        a("v_add_f32 v28, 1.0, v28")
        a("v_rcp_f32 v28, v28")
        rnd(a, 28)
        a(f"v_mov_b32 v29, {L_RS}")
        a("ds_write_b32 v29, v28")
        a("v_lshlrev_b32 v2, 4, v0")
        a("v_lshlrev_b32 v3, 3, v0")
        first = True
        a(f"buffer_load_dwordx4 v[32:35], v2, {S(SRD_WS)}, s{S_T0} offen sc1")
        a(f"buffer_load_dwordx4 v[36:39], v2, {S(SRD_WS)}, s{S_T0} offen offset:1024 sc1")
        if self.early < 3: a("s_barrier")
        a("s_branch L_Q_chk")
        a.label("L_Q_poll")
        a(f"buffer_load_dwordx4 v[32:35], v2, {S(SRD_WS)}, s{S_T0} offen sc1")
        a(f"buffer_load_dwordx4 v[36:39], v2, {S(SRD_WS)}, s{S_T0} offen offset:1024 sc1")
        a.label("L_Q_chk")
        a("s_waitcnt vmcnt(0)")
        a(f"v_xor_b32 v30, s{S_TAG}, v33")
        for r in (35, 37, 39):
            a(f"v_xor_b32 v31, s{S_TAG}, v{r}"); a("v_or_b32 v30, v30, v31")
        a("v_cmp_ne_u32 vcc, 0, v30")
        a("s_cbranch_vccz L_Q_got")
        self.spin_guard("L_Q_poll", "L_Q_got")
        a.label("L_Q_got")
        a(f"v_add_u32 v3, {L_Q}, v3")
        a("ds_write2_b32 v3, v32, v34 offset0:0 offset1:1")
        a("ds_write2_b32 v3, v36, v38 offset0:128 offset1:129")
        a("s_waitcnt lgkmcnt(0)")
        self.stamp(3)
        a("s_barrier")
        a(f"s_cmp_ge_u32 s{S_SP}, 28")
        a("s_cbranch_scc1 L_Q_end")
        U, MM, CBK, KC = S_T0+4, S_T0+5, S_T0+6, S_T0+7
        a(f"s_mul_i32 s{U}, s{S_G}, 28"); a(f"s_add_u32 s{U}, s{U}, s{S_SP}")
        a(f"s_cmp_ge_u32 s{U}, 112"); a(f"s_cselect_b32 s{MM}, 1, 0")
        a(f"s_mul_i32 s{S_T0}, s{MM}, 112"); a(f"s_sub_u32 s{U}, s{U}, s{S_T0}")
        a(f"s_lshr_b32 s{CBK}, s{U}, 2"); a(f"s_and_b32 s{KC}, s{U}, 3")
        a(f"s_mul_i32 s{S_T0}, s{KC}, {128*3584}"); a(f"s_lshl_b32 s{S_T0+1}, s{CBK}, 7")
        a(f"s_add_u32 s{S_T0}, s{S_T0}, s{S_T0+1}")
        a(f"s_cmp_eq_u32 s{MM}, 0"); a("s_cbranch_scc0 L_Q_up")
        a(f"s_add_u32 s{SRD_C}, s{S_WG}, s{S_T0}"); a(f"s_addc_u32 s{SRD_C+1}, s{S_WG+1}, 0")
        a("s_branch L_Q_srd")
        a.label("L_Q_up")
        a(f"s_add_u32 s{SRD_C}, s{S_WU}, s{S_T0}"); a(f"s_addc_u32 s{SRD_C+1}, s{S_WU+1}, 0")
        a.label("L_Q_srd")
        a(f"s_sub_u32 s{SRD_C+2}, {512*3584}, s{S_T0}"); a(f"s_mov_b32 s{SRD_C+3}, 0x00020000")
        a("v_lshrrev_b32 v1, 3, v0"); a(f"s_mov_b32 s{S_T0+2}, 3584"); a(f"v_mul_lo_u32 v1, v1, s{S_T0+2}")
        a("v_and_b32 v2, 7, v0"); a("v_lshlrev_b32 v2, 4, v2"); a("v_add_u32 v1, v1, v2")
        self.gemv_loads(SRD_C, 64, 8*3584)
        a("v_lshrrev_b32 v2, 3, v0"); a("v_lshlrev_b32 v2, 3, v2")
        a(f"s_lshl_b32 s{S_T0}, s{KC}, 10"); a(f"v_add_u32 v2, s{S_T0}, v2")
        self.read_T(128, 3, 64)
        a("s_waitcnt lgkmcnt(0)")
        self.gemv_compute(64, 128, 16, 0, 24, 26, (8,))
        a(f"v_mov_b32 v25, s{S_TAG}"); a(f"v_mov_b32 v27, s{S_TAG}")
        a(f"s_lshl_b32 s{S_T0}, s{MM}, 2"); a(f"s_add_u32 s{S_T0}, s{S_T0}, s{KC}")
        a(f"s_mul_i32 s{S_T0}, s{S_T0}, {1792*8}"); a(f"s_lshl_b32 s{S_T0+1}, s{CBK}, 9")
        a(f"s_add_u32 s{S_T0}, s{S_T0}, s{S_T0+1}"); a(f"s_add_u32 s{S_T0}, s{S_T0}, {WS_GU}")
        a("v_and_b32 v2, 7, v0"); a("v_lshlrev_b32 v2, 6, v2")
        a("v_lshrrev_b32 v3, 4, v0"); a("v_lshlrev_b32 v3, 4, v3"); a("v_add_u32 v2, v2, v3")
        a("s_mov_b32 exec_lo, 0x00ff00ff"); a("s_mov_b32 exec_hi, 0x00ff00ff")
        a(f"buffer_store_dwordx4 v[24:27], v2, {S(SRD_WS)}, s{S_T0} offen sc1")
        a("s_mov_b64 exec, -1")
        a.label("L_Q_end")
        self.stamp(4)
        self.dump_stamps(5, 1)
        self.hdump([(2, 7, "max"), (3, 8, "max"), (1, 14, "max"), (4, 9, "max")], nsleep=0)
        a("s_waitcnt vmcnt(0)")
        a("s_branch L_end")

    def masked_gemv(self, pv, wb0, n, PB=32, D0=56, D1=60):
        a = self.a
        for i0 in range(0, n, 4):
            m = min(4, n - i0)
            for r in range(m):
                a(f"v_and_b32 v{PB+4*r+2}, v{pv+i0+r}, v5")
                a(f"v_and_b32 v{PB+4*r+3}, v{pv+i0+r}, v7")
            for r in range(m):
                wb = wb0 + 4*(i0+r)
                a(f"v_mfma_f32_16x16x32_bf16 {V4(D0)}, {V4(PB+4*r+2)}, {V4(wb)}, {V4(D0)}")
                a(f"v_mfma_f32_16x16x32_bf16 {V4(D1)}, {V4(PB+4*r)}, {V4(wb)}, {V4(D1)}")

    def wwave(self):
        a = self.a
        a.label("L_W")
        RB, CB, PART = S_T0+10, S_T0+11, S_T0+12
        a(f"s_lshr_b32 s{RB}, s{S_SP}, 2"); a(f"s_and_b32 s{CB}, s{S_SP}, 3")
        a(f"s_lshl_b32 s{PART}, s{S_G}, 3"); a(f"s_add_u32 s{PART}, s{PART}, s{RB}")
        a(f"s_lshl_b32 s{S_T0}, s{PART}, 16")
        a(f"s_lshl_b32 s{S_T0+1}, s{CB}, 8"); a(f"s_add_u32 s{S_T0}, s{S_T0}, s{S_T0+1}")
        srd(a, SRD_A, S_WO, S_T0, size=65536)
        a(f"s_sub_u32 s{SRD_A+2}, 65536, s{S_T0+1}")
        a(f"s_mul_i32 s{S_T0}, s{PART}, {28*1024}"); a(f"s_add_u32 s{S_T0}, s{S_T0}, s{S_T0+1}")
        srd(a, SRD_D, S_WD, S_T0, size=28*1024)
        a(f"s_sub_u32 s{SRD_D+2}, {28*1024}, s{S_T0+1}")
        srd(a, SRD_B, S_X, size=1024)
        srd(a, SRD_C, S_OUT, size=1024)
        a("v_lshrrev_b32 v1, 4, v0"); a("v_lshlrev_b32 v1, 10, v1")
        a("v_and_b32 v2, 15, v0"); a("v_lshlrev_b32 v2, 4, v2"); a("v_add_u32 v1, v1, v2")
        self.get_tag()
        a(f"s_getreg_b32 s{S_T0+9}, hwreg(HW_REG_XCC_ID)")
        a(f"s_lshl_b32 s{S_T0+8}, s{S_G}, 8"); a(f"s_add_u32 s{S_T0+8}, s{S_T0+8}, {WS_XT}")
        a(f"s_lshl_b32 s{S_T0}, s{S_SP}, 3")
        a(f"v_mov_b32 v16, s{S_T0+9}"); a(f"v_mov_b32 v17, s{S_TAG}"); a(f"v_mov_b32 v18, s{S_T0}")
        a("s_mov_b64 exec, 1")
        a(f"buffer_store_dwordx2 v[16:17], v18, {S(SRD_WS)}, s{S_T0+8} offen sc1")
        a("s_mov_b64 exec, -1")
        a("s_barrier")
        if self.early < 3: a("s_barrier")
        a("s_barrier")
        a(f"s_setprio {self.auxprio}")
        WO = 64; WD = 128
        a(f"s_mov_b32 s{S_OFF}, 0")
        for i in range(16):
            a(f"buffer_load_dwordx4 {V4(WO+4*i)}, v1, {S(SRD_A)}, s{S_OFF} offen {self.wflag}")
            if i < 15: a(f"s_add_u32 s{S_OFF}, s{S_OFF}, 4096")
        a(f"s_mov_b32 s{S_OFF}, 0")
        for i in range(7):
            a(f"buffer_load_dwordx4 {V4(WD+4*i)}, v1, {S(SRD_D)}, s{S_OFF} offen {self.wflag}")
            if i < 6: a(f"s_add_u32 s{S_OFF}, s{S_OFF}, 4096")
        a(f"s_lshl_b32 s{S_T0+2}, s{S_G}, 7"); a(f"s_lshl_b32 s{S_T0+3}, s{S_SP}, 2")
        a(f"s_add_u32 s{S_T0+2}, s{S_T0+2}, s{S_T0+3}")
        a(f"v_mov_b32 v2, s{S_T0+2}")
        a(f"buffer_load_dword v8, v2, {S(SRD_B)}, 0 offen")
        a(f"s_lshl_b32 s{S_T0+3}, s{S_T0+2}, 2")
        a(f"v_mov_b32 v3, s{S_T0+3}")
        a(f"ds_read_b128 v[12:15], v3 offset:{L_T}")
        a(f"v_mov_b32 v3, {L_RS}")
        a("ds_read_b32 v9, v3")
        self.masksXY(5, 7, 28)
        for k in range(5):
            a(f"v_mov_b32 v{32+4*k}, 0"); a(f"v_mov_b32 v{33+4*k}, 0")
        for k in range(8): a(f"v_mov_b32 v{56+k}, 0")
        a(f"s_mov_b32 s{S_M1}, 0xffff0000"); a(f"s_mov_b32 s{S_M1+1}, 0xffff0000")
        a(f"s_mov_b32 s{S_M2}, 0"); a(f"s_mov_b32 s{S_M2+1}, -1")
        a(f"s_mul_i32 s{S_T0+4}, s{PART}, {28*8}"); a(f"s_add_u32 s{S_T0+4}, s{S_T0+4}, {WS_GU}")
        a(f"s_add_u32 s{S_T0+5}, s{S_T0+4}, {4*1792*8}")
        a("v_lshrrev_b32 v10, 4, v0"); a(f"s_mov_b32 s{S_T0}, {1792*8}"); a(f"v_mul_lo_u32 v10, v10, s{S_T0}")
        a("v_and_b32 v11, 15, v0"); a("v_min_u32 v11, 13, v11"); a("v_lshlrev_b32 v11, 4, v11")
        a("v_add_u32 v10, v10, v11")
        a("v_and_b32 v11, 31, v0"); a("v_lshlrev_b32 v11, 3, v11")
        a.label("L_W_ypoll")
        a(f"buffer_load_dwordx4 v[16:19], v10, {S(SRD_WS)}, s{S_T0+4} offen sc1")
        a(f"buffer_load_dwordx4 v[20:23], v10, {S(SRD_WS)}, s{S_T0+5} offen sc1")
        a(f"buffer_load_dwordx2 v[24:25], v11, {S(SRD_WS)}, s{S_T0+8} offen sc1")
        a("s_waitcnt vmcnt(0)")
        a(f"v_xor_b32 v30, s{S_TAG}, v17")
        for r in (19, 21, 23, 25):
            a(f"v_xor_b32 v31, s{S_TAG}, v{r}"); a("v_or_b32 v30, v30, v31")
        a("v_cmp_ne_u32 vcc, 0, v30")
        a("s_cbranch_vccz L_W_ygot")
        self.spin_guard("L_W_ypoll", "L_W_ygot", sleep=32)
        a.label("L_W_ygot")
        a(f"v_cmp_ne_u32 vcc, s{S_T0+9}, v24")
        a("s_cmp_eq_u64 vcc, 0")
        a(f"s_cselect_b32 s{S_T0}, {0 if self.forceslow else 1}, 0")
        a(f"v_mov_b32 v26, s{S_T0}"); a(f"v_mov_b32 v27, {L_SAME}")
        a("ds_write_b32 v27, v26")
        for v in (16, 18, 20, 22): rows_reduce(a, v, 30, "v_add_f32")
        for v in (16, 18, 20, 22): rnd(a, v)
        for v in (16, 18):
            a(f"v_mul_f32 v28, s{S_LOG2E}, v{v}")
            a("v_sub_f32 v28, 0, v28")
            a("v_exp_f32 v28, v28")
            a("v_add_f32 v28, 1.0, v28")
            a("v_rcp_f32 v28, v28")
            a(f"v_mul_f32 v{v}, v{v}, v28")
            rnd(a, v)
        a("v_mul_f32 v16, v16, v20"); a("v_mul_f32 v18, v18, v22")
        a("v_cvt_pk_bf16_f32 v16, v16, v16"); a("v_cvt_pk_bf16_f32 v18, v18, v18")
        a("v_and_b32 v20, 1, v0"); a("v_lshlrev_b32 v20, 7, v20")
        a("v_bfe_u32 v21, v0, 1, 3"); a("v_lshlrev_b32 v21, 2, v21"); a("v_add_u32 v20, v20, v21")
        a("s_mov_b64 exec, 0x3fff")
        a(f"ds_write_b32 v20, v16 offset:{L_HP}")
        a(f"ds_write_b32 v20, v18 offset:{L_HP+64}")
        a("s_mov_b64 exec, -1")
        a("v_lshrrev_b32 v24, 4, v0"); a("v_lshlrev_b32 v24, 6, v24")
        a("s_waitcnt lgkmcnt(0)")
        HV = 160
        for k in range(2):
            a(f"ds_read_b128 {V4(HV+4*k)}, v24 offset:{L_HP+16*k}")
        a("s_waitcnt lgkmcnt(0)")
        self.masked_gemv(HV, WD, 7)
        for k in range(8): a(f"v_mul_f32 v{56+k}, v{56+k}, v9")
        a("v_lshlrev_b32 v12, 16, v8"); a(f"v_and_b32 v14, s{S_HI}, v8")
        a("v_add_f32 v12, v12, v13"); a("v_add_f32 v14, v14, v15")
        a(f"s_lshl_b32 s{S_T0+6}, s{PART}, 12")
        a(f"s_lshl_b32 s{S_T0+7}, s{CB}, 10"); a(f"s_add_u32 s{S_T0+6}, s{S_T0+6}, s{S_T0+7}")
        a(f"s_add_u32 s{S_T0+6}, s{S_T0+6}, {WS_AP}")
        a("v_and_b32 v20, 15, v0"); a("v_lshlrev_b32 v20, 6, v20")
        a("v_lshrrev_b32 v21, 4, v0"); a("v_lshlrev_b32 v21, 4, v21"); a("v_add_u32 v20, v20, v21")
        a(f"s_lshl_b32 s{S_T0+7}, s{S_T0+2}, 2"); a(f"s_add_u32 s{S_T0+7}, s{S_T0+7}, {WS_AP}")
        a("v_lshlrev_b32 v10, 12, v0")
        a("v_lshlrev_b32 v22, 2, v0")
        a("v_and_b32 v23, 3, v0"); a("v_lshlrev_b32 v23, 6, v23")
        a("v_lshrrev_b32 v25, 2, v0"); a("v_lshlrev_b32 v25, 2, v25"); a("v_add_u32 v23, v23, v25")
        a(f"v_mov_b32 v29, s{S_TAG}"); a(f"v_mov_b32 v31, s{S_TAG}")
        a(f"s_mov_b32 s{S_SPIN}, {SPIN_LIMIT}")
        a("s_waitcnt lgkmcnt(0)")
        self.stamp(1)
        a("s_barrier")
        a("s_barrier")
        self.stamp(2)
        for k in range(4):
            a(f"ds_read_b32 v{16+k}, v22 offset:{L_G+256*k}")
        a("s_waitcnt lgkmcnt(0)")
        a("v_add_f32 v16, v16, v17"); a("v_add_f32 v18, v18, v19"); a("v_add_f32 v26, v16, v18")
        a("v_cvt_pk_bf16_f32 v26, v26, v26")
        a(f"ds_write_b32 v23, v26 offset:{L_PP}")
        a("s_waitcnt lgkmcnt(0)")
        PPV = 168
        for k in range(4):
            a(f"ds_read_b128 {V4(PPV+4*k)}, v24 offset:{L_PP+16*k}")
        a("s_waitcnt lgkmcnt(0)")
        D0 = 56; D1 = 60
        self.masked_gemv(PPV, 64, 16)
        m1 = f"s[{S_M1}:{S_M1+1}]"; m2 = f"s[{S_M2}:{S_M2+1}]"
        a(f"v_cndmask_b32 v26, v{D0}, v{D0+2}, {m1}")
        a(f"v_cndmask_b32 v27, v{D1}, v{D1+2}, {m1}")
        a(f"v_cndmask_b32 v28, v26, v27, {m2}")
        a(f"v_cndmask_b32 v26, v{D0+1}, v{D0+3}, {m1}")
        a(f"v_cndmask_b32 v27, v{D1+1}, v{D1+3}, {m1}")
        a(f"v_cndmask_b32 v30, v26, v27, {m2}")
        a(f"buffer_store_dwordx4 v[28:31], v20, {S(SRD_WS)}, s{S_T0+6} offen sc1")
        self.stamp(3)
        a.label("L_W_apoll")
        a(f"buffer_load_dwordx4 v[24:27], v10, {S(SRD_WS)}, s{S_T0+7} offen sc1")
        a("s_waitcnt vmcnt(0)")
        a(f"v_xor_b32 v16, s{S_TAG}, v25")
        a(f"v_xor_b32 v17, s{S_TAG}, v27"); a("v_or_b32 v16, v16, v17")
        a("v_cmp_ne_u32 vcc, 0, v16")
        a("s_cbranch_vccz L_W_agot")
        self.spin_guard("L_W_apoll", "L_W_agot")
        a.label("L_W_agot")
        self.stamp(4)
        allreduce64(a, 24, 16, "v_add_f32"); allreduce64(a, 26, 17, "v_add_f32")
        a("v_add_f32 v24, v24, v12"); a("v_add_f32 v26, v26, v14")
        if self.perturb:
            import struct
            bits = struct.unpack("<I", struct.pack("<f", float(self.perturb)))[0]
            a(f"v_add_f32 v24, {bits:#x}, v24"); a(f"v_add_f32 v26, {bits:#x}, v26")
        a("v_cvt_pk_bf16_f32 v24, v24, v26")
        a("s_mov_b64 exec, 1")
        a(f"buffer_store_dword v24, v2, {S(SRD_C)}, 0 offen")
        a("s_cmp_lg_u32 s2, 0")
        a("s_cbranch_scc1 L_W_noep")
        a(f"v_mov_b32 v25, s{S_TAG}"); a("v_mov_b32 v26, 0")
        a(f"buffer_store_dword v25, v26, {S(SRD_WS)}, 0 offen sc1")
        a.label("L_W_noep")
        a("s_mov_b64 exec, -1")
        self.stamp(5)
        if self.spin:
            if self.spin.startswith("S"):
                a(f"v_mov_b32 v3, {L_RS+16}"); a("ds_read_b128 v[4:7], v3"); a("s_waitcnt lgkmcnt(0)")
                a("v_max_u32 v4, v4, v5"); a("v_max_u32 v6, v6, v7"); a("v_max_u32 v4, v4, v6")
                a(f"v_readfirstlane_b32 s{S_T0}, v4")
            else:
                k = int(self.spin[1:])
                a("s_waitcnt lgkmcnt(0)")
                a(f"s_mov_b32 s{S_T0}, s{S_TS+2*k}")
            a(f"s_add_u32 s{S_T0}, s{S_T0}, 10000")
            a.label("L_spin")
            a(f"s_memrealtime s[{S_T0+2}:{S_T0+3}]"); a("s_waitcnt lgkmcnt(0)")
            a(f"s_sub_u32 s{S_T0+4}, s{S_T0+2}, s{S_T0}")
            a(f"s_cmp_lt_i32 s{S_T0+4}, 0")
            a("s_cbranch_scc1 L_spin")
        self.dump_stamps(6, 3)
        self.hdump([(0, 0, "min"), (5, 1, "max"), (1, 10, "max"), (3, 11, "max"), (4, 12, "max"), (0, 13, "max")])
        a("s_waitcnt vmcnt(0)")

    def build(self):
        self.prologue()
        self.swave()
        self.qwave()
        self.wwave()
        self.a.label("L_end")
        self.a("s_endpgm")
        body = self.a.text()
        stub = open("parallel_sum__gqa_block_cached__moe_arch_mod__decode.s.ref").read()
        head = stub[:stub.index("; @launch")]
        txt = head + f"; @launch grid=(256,1,1) block=(384,1,1) lds={LDS_BYTES}\n"
        txt += f""".amdgcn_target "amdgcn-amd-amdhsa--gfx950"
.text
.globl {KNAME}
.p2align 8
.type {KNAME},@function
{KNAME}:
{body}
.section .rodata,"a"
.p2align 6
.amdhsa_kernel {KNAME}
  .amdhsa_next_free_vgpr 256
  .amdhsa_next_free_sgpr 102
  .amdhsa_accum_offset 256
  .amdhsa_group_segment_fixed_size 0
  .amdhsa_kernarg_size 104
  .amdhsa_user_sgpr_count 2
  .amdhsa_user_sgpr_kernarg_segment_ptr 1
  .amdhsa_system_sgpr_workgroup_id_x 1
.end_amdhsa_kernel
"""
        return txt

if __name__ == "__main__":
    import argparse
    p = argparse.ArgumentParser()
    p.add_argument("--dbg", action="store_true")
    p.add_argument("--wflag", default="nt")
    p.add_argument("--hdbg", action="store_true")
    p.add_argument("--spin", default=None)
    p.add_argument("--perturb", default=None)
    p.add_argument("--forceslow", action="store_true")
    p.add_argument("--nofast", action="store_true")
    p.add_argument("--auxprio", type=int, default=3)
    p.add_argument("--qprio", type=int, default=3)
    p.add_argument("--early", type=int, default=3)
    p.add_argument("-o", default="parallel_sum__gqa_block_cached__moe_arch_mod__decode.s")
    args = p.parse_args()
    g = Gen(dbg=args.dbg, wflag=args.wflag, hdbg=args.hdbg, spin=args.spin, perturb=args.perturb,
            forceslow=args.forceslow, auxprio=args.auxprio, qprio=args.qprio, nofast=args.nofast, early=args.early)
    t = g.build()
    open(args.o, "w").write(t)
    print("wrote", args.o, len(t), "bytes")
```

```python
import sys
from asmlib import Asm

KNAME = "parallel_sum__gqa_block_cached__moe_arch_mod__decode_kernel"
WS_QG = 0x1000
WS_XT = 0x6000
WS_ST = 0x8000
WS_AP = 0x10000
WS_GU = 0x60000
WS_OP = 0x100000
WS_DBG = 0x200000
WS_SIZE = 0x300000
L_T = 0; L_Q = 4096; L_O = 5120; L_ST = 13312; L_G = 13568; L_PP = 14592; L_RS = 14848
L_CNT = 14852; L_SAME = 14856; L_HP = 14912
LDS_BYTES = 15360
SPIN_LIMIT = 40000

S_X, S_K, S_V, S_WQ, S_WO, S_WR, S_WG, S_WU, S_WD, S_OUT, S_WS = 8, 10, 12, 14, 16, 20, 22, 24, 26, 28, 32
S_G, S_SP, S_WAVE, S_TAG = 34, 35, 36, 37
SRD_WS = 40
SRD_A = 44
SRD_B = 48
SRD_C = 52
SRD_D = 4
S_OFF = 56
S_SO = 3
S_OFFS = (76, 77, 78)
S_SPIN = 57
S_HI = 58
S_LOG2E = 59
S_SCALE = 60
S_M1 = 62
S_M2 = 64
S_T0 = 66
S_TS = 80

def srd(a, d, base, off_sgpr=None, off_imm=0, size=0):
    if off_sgpr is not None:
        a(f"s_add_u32 s{d}, s{base}, s{off_sgpr}")
        a(f"s_addc_u32 s{d+1}, s{base+1}, 0")
    else:
        a(f"s_mov_b32 s{d}, s{base}")
        a(f"s_mov_b32 s{d+1}, s{base+1}")
    a(f"s_mov_b32 s{d+2}, {size:#x}")
    a(f"s_mov_b32 s{d+3}, 0x00020000")

def S(d): return f"s[{d}:{d+3}]"
def V4(r): return f"v[{r}:{r+3}]"
def V2(r): return f"v[{r}:{r+1}]"

def allreduce64(a, v, t, op):
    a(f"{op}_dpp v{v}, v{v}, v{v} quad_perm:[1,0,3,2] row_mask:0xf bank_mask:0xf")
    a(f"{op}_dpp v{v}, v{v}, v{v} quad_perm:[2,3,0,1] row_mask:0xf bank_mask:0xf")
    a(f"{op}_dpp v{v}, v{v}, v{v} row_half_mirror row_mask:0xf bank_mask:0xf")
    a(f"{op}_dpp v{v}, v{v}, v{v} row_mirror row_mask:0xf bank_mask:0xf")
    rows_reduce(a, v, t, op)

def rows_reduce(a, v, t, op):
    a(f"v_mov_b32 v{t}, v{v}")
    a(f"v_permlane16_swap_b32 v{v}, v{t}")
    a(f"{op} v{v}, v{v}, v{t}")
    a(f"v_mov_b32 v{t}, v{v}")
    a(f"v_permlane32_swap_b32 v{v}, v{t}")
    a(f"{op} v{v}, v{v}, v{t}")

def rnd(a, v):
    a(f"v_cvt_pk_bf16_f32 v{v}, v{v}, v{v}")
    a(f"v_and_b32 v{v}, s{S_HI}, v{v}")

class Gen:
    def __init__(self, dbg=False, wflag="nt", hdbg=False, spin=None, perturb=None, forceslow=False, auxprio=3, qprio=3, nofast=False, early=3):
        self.hdbg = hdbg; self.spin = spin; self.perturb = perturb
        if hdbg: dbg = False
        self.dbg = dbg; self.wflag = wflag; self.forceslow = forceslow; self.auxprio = auxprio; self.qprio = qprio
        self.nofast = nofast; self.early = early
        self.a = Asm()

    def hdump(self, items, nsleep=5):
        if not self.hdbg: return
        a = self.a
        a("s_waitcnt lgkmcnt(0) vmcnt(0)")
        a("s_setprio 0")
        for _ in range(nsleep): a("s_sleep 127")
        srd(a, SRD_C, 30, size=256)
        a("s_mov_b64 exec, 1")
        for (st, w, mode) in items:
            if mode == "min":
                a(f"s_not_b32 s{S_T0}, s{S_TS+2*st}")
                a(f"v_mov_b32 v2, s{S_T0}")
            else:
                a(f"v_mov_b32 v2, s{S_TS+2*st}")
            a(f"v_mov_b32 v3, {4*w}")
            a(f"buffer_atomic_umax v2, v3, {S(SRD_C)}, 0 offen sc1")
            a("s_waitcnt vmcnt(0)")
        a("s_mov_b64 exec, -1")

    def stamp(self, idx):
        if self.dbg or self.hdbg or self.spin:
            self.a(f"s_memrealtime s[{S_TS+2*idx}:{S_TS+2*idx+1}]")

    def dump_stamps(self, n, slot, vt=2):
        if not self.dbg: return
        a = self.a
        a("s_waitcnt lgkmcnt(0) vmcnt(0)")
        a(f"s_lshl_b32 s{S_T0}, s2, 10")
        a(f"s_lshl_b32 s{S_T0+1}, s{S_WAVE}, 7")
        a(f"s_add_u32 s{S_T0}, s{S_T0}, s{S_T0+1}")
        a(f"s_add_u32 s{S_T0}, s{S_T0}, {WS_DBG}")
        a("s_mov_b64 exec, 1")
        a(f"v_mov_b32 v{vt+2}, s{S_T0}")
        for i in range(n):
            a(f"v_mov_b32 v{vt}, s{S_TS+2*i}")
            a(f"v_mov_b32 v{vt+1}, s{S_TS+2*i+1}")
            a(f"buffer_store_dwordx2 {V2(vt)}, v{vt+2}, {S(SRD_WS)}, 0 offen offset:{8*i}")
            a("s_waitcnt vmcnt(0)")
        a("s_mov_b64 exec, -1")

    def spin_guard(self, lab_retry, lab_done, sleep=1):
        a = self.a
        a(f"s_sub_u32 s{S_SPIN}, s{S_SPIN}, 1")
        a(f"s_cmp_eq_u32 s{S_SPIN}, 0")
        a(f"s_cbranch_scc1 {lab_done}")
        if sleep: a(f"s_sleep {sleep}")
        a(f"s_branch {lab_retry}")

    def prologue(self):
        a = self.a
        a("s_cmp_ge_u32 s2, 256")
        a("s_cbranch_scc1 L_end")
        self.stamp(0)
        a("s_load_dwordx16 s[8:23], s[0:1], 0")
        a("s_load_dwordx8 s[24:31], s[0:1], 64")
        a(f"s_load_dwordx2 s[{S_WS}:{S_WS+1}], s[0:1], 96")
        a("v_lshrrev_b32 v1, 6, v0")
        a("v_and_b32 v0, 63, v0")
        a(f"s_and_b32 s{S_G}, s2, 7")
        a(f"s_lshr_b32 s{S_SP}, s2, 3")
        a(f"v_readfirstlane_b32 s{S_WAVE}, v1")
        a(f"s_mov_b32 s{S_HI}, 0xffff0000")
        a(f"s_mov_b32 s{S_LOG2E}, 0x3fb8aa3b")
        a(f"s_mov_b32 s{S_SPIN}, {SPIN_LIMIT}")
        a("s_waitcnt lgkmcnt(0)")
        a(f"s_load_dword s{S_TAG}, s[{S_WS}:{S_WS+1}], 0")
        srd(a, SRD_WS, S_WS, size=WS_SIZE)
        a(f"s_cmp_lt_u32 s{S_WAVE}, 4")
        a("s_cbranch_scc1 L_S")
        a(f"s_cmp_eq_u32 s{S_WAVE}, 4")
        a("s_cbranch_scc1 L_Q")
        a("s_branch L_W")

    def get_tag(self):
        a = self.a
        a("s_waitcnt lgkmcnt(0)")
        a(f"s_add_u32 s{S_TAG}, s{S_TAG}, 1")

    RING = 64
    def issueK(self, slot):
        a = self.a; b = self.RING + 64*slot
        for t in range(2):
            for c in range(4):
                r = b + 16*t + 4*c
                a(f"buffer_load_dwordx4 {V4(r)}, v{1+t}, {S(SRD_A)}, s{S_OFFS[slot]} offen offset:{64*c} nt")
    def issueV(self, slot):
        a = self.a; b = self.RING + 64*slot + 32
        for r8 in range(8):
            r = b + 4*r8
            a(f"buffer_load_dwordx4 {V4(r)}, v{3+(r8>>2)}, {S(SRD_B)}, s{S_OFFS[slot]} offen offset:{1024*(r8&3)} nt")

    def group(self, slot, kwait=40, vwait=40, reissue=True):
        a = self.a
        b = self.RING + 64*slot
        SC = 32; PB = 10; D0 = 40; D1 = 44; Q = 48
        vM, vMC, vL, vMX, vMY = 6, 8, 9, 5, 7
        a(f"s_cmp_ge_u32 s{S_OFFS[slot]}, 0x80000")
        a("s_cbranch_scc1 L_S_done")
        a("s_mov_b64 exec, 1")
        a(f"ds_inc_rtn_u32 v28, v10, v5 offset:{L_CNT}")
        a("s_mov_b64 exec, -1")
        a(f"s_waitcnt vmcnt({kwait})")
        for c in range(4):
            for t in range(2):
                cc = "0" if c == 0 else V4(SC+4*t)
                a(f"v_mfma_f32_16x16x32_bf16 {V4(SC+4*t)}, {V4(b+16*t+4*c)}, {V4(Q+4*c)}, {cc}")
        a("s_waitcnt lgkmcnt(0)")
        a(f"v_readfirstlane_b32 s{S_T0}, v28")
        a(f"s_lshl_b32 s{S_OFFS[slot]}, s{S_T0}, 13")
        self.issueK(slot)
        for k in range(4):
            s0 = SC+2*k; t = 28+k
            a(f"v_cvt_pk_bf16_f32 v{t}, v{s0}, v{s0+1}")
        for k in range(4):
            s0 = SC+2*k; t = 28+k
            a(f"v_lshlrev_b32 v{s0}, 16, v{t}")
            a(f"v_and_b32 v{s0+1}, s{S_HI}, v{t}")
        for k in range(4):
            s0 = SC+2*k
            a(f"v_pk_mul_f32 {V2(s0)}, {V2(s0)}, s[{S_SCALE}:{S_SCALE+1}]")
        for k in range(4):
            s0 = SC+2*k; t = 28+k
            a(f"v_cvt_pk_bf16_f32 v{t}, v{s0}, v{s0+1}")
        for k in range(4):
            s0 = SC+2*k; t = 28+k
            a(f"v_lshlrev_b32 v{s0}, 16, v{t}")
            a(f"v_and_b32 v{s0+1}, s{S_HI}, v{t}")
        a(f"v_max3_f32 v28, v{SC}, v{SC+1}, v{SC+2}")
        a(f"v_max3_f32 v29, v{SC+3}, v{SC+4}, v{SC+5}")
        a(f"v_max3_f32 v28, v28, v{SC+6}, v{SC+7}")
        a(f"v_max_f32 v28, v28, v29")
        a(f"v_cmp_gt_f32 vcc, v28, v{vM}")
        skip = a.uniq("L_skip")
        a(f"s_cbranch_vccz {skip}")
        rows_reduce(a, 28, 29, "v_max_f32")
        a(f"v_max_f32 v28, v28, v{vM}")
        a(f"v_mul_f32 v29, s{S_LOG2E}, v28")
        a(f"v_sub_f32 v30, v{vMC}, v29")
        a(f"v_exp_f32 v30, v30")
        a(f"v_mov_b32 v{vM}, v28")
        a(f"v_mov_b32 v{vMC}, v29")
        a(f"v_mul_f32 v{vL}, v{vL}, v30")
        for h in range(4):
            a(f"v_mov_b32_dpp v31, v30 row_newbcast:{4*h} row_mask:{1<<h:#x} bank_mask:0xf")
        for k in range(8):
            a(f"v_mul_f32 v{D0+k}, v{D0+k}, v31")
        a.label(skip)
        for k in range(8):
            a(f"v_fma_f32 v{SC+k}, v{SC+k}, s{S_LOG2E}, -v{vMC}")
        for k in range(8):
            a(f"v_exp_f32 v{SC+k}, v{SC+k}")
        for t in range(2):
            for r in range(4):
                a(f"v_cvt_pk_bf16_f32 v{28+r}, v{SC+4*t+r}, v{SC+4*t+r}")
            for r in range(4):
                a(f"v_and_b32 v{PB+4*r+2}, v{28+r}, v{vMX}")
                a(f"v_and_b32 v{PB+4*r+3}, v{28+r}, v{vMY}")
            if t == 0:
                a(f"s_waitcnt vmcnt({vwait})")
            for r in range(4):
                vb = b + 32 + 4*(4*t+r)
                a(f"v_mfma_f32_16x16x32_bf16 {V4(D0)}, {V4(PB+4*r+2)}, {V4(vb)}, {V4(D0)}")
                a(f"v_mfma_f32_16x16x32_bf16 {V4(D1)}, {V4(PB+4*r)}, {V4(vb)}, {V4(D1)}")
        self.issueV(slot)
        a(f"v_pk_add_f32 v[28:29], {V2(SC)}, {V2(SC+2)}")
        a(f"v_pk_add_f32 v[30:31], {V2(SC+4)}, {V2(SC+6)}")
        a(f"v_pk_add_f32 v[28:29], v[28:29], v[30:31]")
        a(f"v_add_f32 v28, v28, v29")
        a(f"v_add_f32 v{vL}, v{vL}, v28")

    def masksXY(self, vX, vY, t):
        a = self.a
        a(f"v_and_b32 v{t}, 3, v0")
        a(f"v_mov_b32 v{vX}, 0"); a(f"v_mov_b32 v{vY}, 0")
        a(f"v_mov_b32 v{t+1}, 0xffff")
        a(f"v_mov_b32 v{t+2}, s{S_HI}")
        a(f"v_cmp_eq_u32 vcc, 0, v{t}"); a(f"v_cndmask_b32 v{vX}, v{vX}, v{t+1}, vcc")
        a(f"v_cmp_eq_u32 vcc, 1, v{t}"); a(f"v_cndmask_b32 v{vX}, v{vX}, v{t+2}, vcc")
        a(f"v_cmp_eq_u32 vcc, 2, v{t}"); a(f"v_cndmask_b32 v{vY}, v{vY}, v{t+1}, vcc")
        a(f"v_cmp_eq_u32 vcc, 3, v{t}"); a(f"v_cndmask_b32 v{vY}, v{vY}, v{t+2}, vcc")

    def swave(self):
        a = self.a
        a.label("L_S")
        a(f"s_lshl_b32 s{S_T0}, s{S_G}, 24")
        a(f"s_lshl_b32 s{S_T0+1}, s{S_SP}, 19")
        a(f"s_add_u32 s{S_T0}, s{S_T0}, s{S_T0+1}")
        srd(a, SRD_A, S_K, S_T0, size=0x80000)
        srd(a, SRD_B, S_V, S_T0, size=0x80000)
        a("v_and_b32 v1, 3, v0"); a("v_lshlrev_b32 v1, 10, v1")
        a("v_bfe_u32 v2, v0, 2, 2"); a("v_lshlrev_b32 v2, 8, v2"); a("v_add_u32 v1, v1, v2")
        a("v_lshrrev_b32 v2, 4, v0"); a("v_lshlrev_b32 v2, 4, v2"); a("v_add_u32 v1, v1, v2")
        a("v_add_u32 v2, 0x1000, v1")
        a("v_lshlrev_b32 v3, 4, v0"); a("v_add_u32 v4, 0x1000, v3")
        for k in range(3):
            a(f"s_lshl_b32 s{S_OFFS[k]}, s{S_WAVE}, 13")
            if k: a(f"s_add_u32 s{S_OFFS[k]}, s{S_OFFS[k]}, {32768*k}")
        a("s_barrier")
        self.stamp(1)
        for slot in range(3):
            if slot == self.early: a("s_barrier")
            self.issueK(slot); self.issueV(slot)
        self.masksXY(5, 7, 28)
        for k in range(5):
            a(f"v_mov_b32 v{10+4*k}, 0"); a(f"v_mov_b32 v{11+4*k}, 0")
        for k in range(8): a(f"v_mov_b32 v{40+k}, 0")
        a("v_mov_b32 v6, 0xff800000"); a("v_mov_b32 v8, 0xff800000"); a("v_mov_b32 v9, 0")
        a(f"s_mov_b32 s{S_SCALE}, 0x3db504f3"); a(f"s_mov_b32 s{S_SCALE+1}, 0x3db504f3")
        a("v_bfe_u32 v28, v0, 2, 2"); a("v_lshlrev_b32 v28, 8, v28")
        a("v_lshrrev_b32 v29, 4, v0"); a("v_lshlrev_b32 v29, 4, v29"); a("v_add_u32 v28, v28, v29")
        a(f"s_lshl_b32 s{S_T0}, s{S_G}, 5"); a(f"s_add_u32 s{S_T0}, s{S_T0}, s{S_SP}")
        a(f"s_lshl_b32 s{S_T0}, s{S_T0}, 12")
        a(f"s_lshl_b32 s67, s{S_WAVE}, 10")
        a(f"s_add_u32 s67, s{S_T0}, s67"); a(f"s_add_u32 s67, s67, {WS_OP}")
        a(f"s_lshl_b32 s68, s{S_G}, 2"); a(f"s_add_u32 s68, s68, s{S_WAVE}")
        a(f"s_lshl_b32 s68, s68, 5"); a(f"s_add_u32 s68, s68, s{S_SP}")
        a(f"s_lshl_b32 s68, s68, 4"); a(f"s_add_u32 s68, s68, {WS_ST}")
        a(f"s_lshr_b32 s74, s{S_SP}, 3"); a(f"s_bfe_u32 s75, s{S_SP}, 0x10002")
        a(f"s_lshl_b32 s{S_T0}, s{S_G}, 5"); a(f"s_lshl_b32 s69, s{S_WAVE}, 3")
        a(f"s_add_u32 s{S_T0}, s{S_T0}, s69"); a(f"s_lshl_b32 s{S_T0}, s{S_T0}, 12")
        a(f"s_lshl_b32 s69, s74, 10"); a(f"s_add_u32 s{S_T0}, s{S_T0}, s69")
        a(f"s_lshl_b32 s69, s75, 9"); a(f"s_add_u32 s{S_T0}, s{S_T0}, s69")
        a(f"s_add_u32 s69, s{S_T0}, {WS_OP}")
        for u in range(1, 4):
            a(f"s_add_u32 s{69+u}, s69, {8192*u}")
        a(f"s_lshl_b32 s73, s{S_G}, 2"); a(f"s_add_u32 s73, s73, s74")
        a(f"s_lshl_b32 s73, s73, 9"); a(f"s_add_u32 s73, s73, {WS_ST}")
        self.get_tag()
        self.stamp(2)
        a("s_barrier")
        self.stamp(3)
        for c in range(4):
            a(f"ds_read_b128 {V4(48+4*c)}, v28 offset:{L_Q+64*c}")
        a("s_waitcnt lgkmcnt(0)")
        a.label("L_S_loop")
        for slot in range(3):
            self.group(slot)
        a("s_branch L_S_loop")
        a.label("L_S_done")
        a("s_waitcnt vmcnt(0)")
        self.stamp(4)
        rows_reduce(a, 9, 28, "v_add_f32")
        a("v_lshlrev_b32 v28, 5, v0")
        a(f"s_lshl_b32 s{S_T0}, s{S_WAVE}, 11")
        a(f"v_add_u32 v28, s{S_T0}, v28")
        a(f"ds_write_b128 v28, {V4(40)} offset:{L_O}")
        a(f"ds_write_b128 v28, {V4(44)} offset:{L_O+16}")
        a("v_lshlrev_b32 v29, 3, v0")
        a(f"s_lshl_b32 s{S_T0}, s{S_WAVE}, 3")
        a(f"v_add_u32 v29, s{S_T0}, v29")
        a("s_mov_b64 exec, 0x1111")
        a(f"ds_write_b64 v29, v[8:9] offset:{L_ST}")
        a("s_mov_b64 exec, -1")
        a("s_waitcnt lgkmcnt(0)")
        a("s_barrier")
        self.stamp(5)
        a(f"s_lshl_b32 s{S_T0}, s{S_WAVE}, 5")
        a(f"v_mov_b32 v28, s{S_T0}")
        a(f"ds_read_b128 v[64:67], v28 offset:{L_ST}")
        a(f"ds_read_b128 v[68:71], v28 offset:{L_ST+16}")
        a(f"ds_read_b32 v90, v10 offset:{L_SAME}")
        a(f"s_lshl_b32 s{S_T0}, s{S_WAVE}, 9")
        a("v_lshlrev_b32 v29, 3, v0")
        a(f"v_add_u32 v29, s{S_T0}, v29")
        for k in range(4):
            a(f"ds_read_b64 {V2(72+2*k)}, v29 offset:{L_O+2048*k}")
        a(f"v_mov_b32 v85, s{S_TAG}"); a(f"v_mov_b32 v87, s{S_TAG}")
        a(f"v_mov_b32 v81, s{S_TAG}"); a(f"v_mov_b32 v83, s{S_TAG}")
        a("v_lshlrev_b32 v28, 4, v0")
        a("s_waitcnt lgkmcnt(4)")
        a(f"v_readfirstlane_b32 s{S_T0}, v90")
        a("v_max3_f32 v80, v64, v66, v68")
        a("v_max_f32 v80, v80, v70")
        for k in range(4):
            a(f"v_sub_f32 v{64+2*k}, v{64+2*k}, v80")
        for k in range(4):
            a(f"v_exp_f32 v{64+2*k}, v{64+2*k}")
        a("v_mul_f32 v82, v64, v65")
        a("v_fma_f32 v82, v66, v67, v82")
        a("v_fma_f32 v82, v68, v69, v82")
        a("v_fma_f32 v82, v70, v71, v82")
        a("s_waitcnt lgkmcnt(0)")
        a("v_mul_f32 v84, v64, v72"); a("v_mul_f32 v86, v64, v73")
        for k in range(1, 4):
            a(f"v_fma_f32 v84, v{64+2*k}, v{72+2*k}, v84")
            a(f"v_fma_f32 v86, v{64+2*k}, v{73+2*k}, v86")
        paths = [("sc1",)] if self.nofast else [("",), ("sc1",)]
        if not self.nofast:
            a(f"s_cmp_eq_u32 s{S_T0}, 0")
            a("s_cbranch_scc1 L_S_pubslow")
        for pi_, (fl,) in enumerate(paths):
            if pi_ == 1: a.label("L_S_pubslow")
            a(f"buffer_store_dwordx4 v[84:87], v28, {S(SRD_WS)}, s67 offen {fl}")
            a("s_mov_b64 exec, 1")
            a(f"buffer_store_dwordx4 v[80:83], v10, {S(SRD_WS)}, s68 offen {fl}")
            a("s_mov_b64 exec, -1")
            if pi_ == 0 and not self.nofast: a("s_branch L_S_pubdone")
        a.label("L_S_pubdone")
        self.stamp(6)
        a("v_lshrrev_b32 v28, 5, v0"); a("v_lshlrev_b32 v28, 12, v28")
        a("v_and_b32 v29, 31, v0"); a("v_lshlrev_b32 v29, 4, v29"); a("v_add_u32 v28, v28, v29")
        a.label("L_S_poll")
        for u in range(4):
            a(f"buffer_load_dwordx4 {V4(64+4*u)}, v28, {S(SRD_WS)}, s{69+u} offen sc1")
        a(f"buffer_load_dwordx4 v[80:83], v29, {S(SRD_WS)}, s73 offen sc1")
        a("s_waitcnt vmcnt(0)")
        a(f"v_xor_b32 v30, s{S_TAG}, v65")
        for r in [67, 69, 71, 73, 75, 77, 79, 81, 83]:
            a(f"v_xor_b32 v31, s{S_TAG}, v{r}")
            a("v_or_b32 v30, v30, v31")
        a("v_cmp_ne_u32 vcc, 0, v30")
        a("s_cbranch_vccz L_S_got")
        self.spin_guard("L_S_poll", "L_S_got")
        a.label("L_S_got")
        self.stamp(7)
        a("v_mov_b32 v30, v80")
        allreduce64(a, 30, 31, "v_max_f32")
        a("v_sub_f32 v80, v80, v30")
        a("v_exp_f32 v80, v80")
        a("v_mul_f32 v82, v80, v82")
        allreduce64(a, 82, 31, "v_add_f32")
        a("v_rcp_f32 v82, v82")
        a("v_add_f32 v80, v80, v80")
        a("v_mul_f32 v80, v80, v82")
        a("v_lshrrev_b32 v30, 5, v0")
        a(f"s_lshl_b32 s{S_T0}, s{S_WAVE}, 3")
        a(f"v_add_u32 v30, s{S_T0}, v30")
        a("v_lshlrev_b32 v30, 2, v30")
        for u in range(4):
            if u: a("v_add_u32 v30, 8, v30")
            a(f"ds_bpermute_b32 v{84+u}, v30, v80")
        a("s_waitcnt lgkmcnt(0)")
        a("v_mul_f32 v88, v84, v64"); a("v_mul_f32 v89, v84, v66")
        for u in range(1, 4):
            a(f"v_fma_f32 v88, v{84+u}, v{64+4*u}, v88")
            a(f"v_fma_f32 v89, v{84+u}, v{66+4*u}, v89")
        a("v_mov_b32 v90, v88"); a("v_mov_b32 v91, v89")
        a("v_permlane32_swap_b32 v88, v90"); a("v_permlane32_swap_b32 v89, v91")
        a("v_add_f32 v88, v88, v90"); a("v_add_f32 v89, v89, v91")
        a("v_and_b32 v30, 31, v0"); a("v_lshlrev_b32 v30, 3, v30")
        a(f"s_lshl_b32 s{S_T0}, s{S_WAVE}, 8")
        a(f"v_add_u32 v30, s{S_T0}, v30")
        a(f"ds_write_b64 v30, v[88:89] offset:{L_G}")
        a("s_waitcnt lgkmcnt(0)")
        if self.spin and self.spin.startswith("S"):
            k = int(self.spin[1:])
            a(f"s_lshl_b32 s{S_T0}, s{S_WAVE}, 2"); a(f"s_add_u32 s{S_T0}, s{S_T0}, {L_RS+16}")
            a(f"v_mov_b32 v30, s{S_T0}"); a(f"v_mov_b32 v31, s{S_TS+2*k}")
            a("ds_write_b32 v30, v31"); a("s_waitcnt lgkmcnt(0)")
        a("s_barrier")
        self.stamp(8)
        if self.dbg:
            a(f"s_getreg_b32 s{S_TS+18}, hwreg(HW_REG_XCC_ID)"); a(f"s_mov_b32 s{S_TS+19}, 0")
            self.dump_stamps(10, 0)
        self.hdump([(3, 2, "max"), (4, 3, "max"), (4, 4, "min"), (5, 5, "max"), (7, 6, "max"), (2, 15, "max")])
        a("s_branch L_end")

    def gemv_loads(self, srd_, reg, step):
        a = self.a
        a(f"s_mov_b32 s{S_OFF}, 0")
        for i in range(16):
            a(f"buffer_load_dwordx4 {V4(reg+4*i)}, v1, {S(srd_)}, s{S_OFF} offen {self.wflag}")
            if i < 15: a(f"s_add_u32 s{S_OFF}, s{S_OFF}, {step}")

    def gemv_compute(self, reg, tb, acc, wait_first, outA, outB, rors):
        a = self.a
        for k in range(8): a(f"v_mov_b32 v{acc+k}, 0")
        for i in range(16):
            if wait_first is not None:
                a(f"s_waitcnt vmcnt({wait_first + 15 - i})")
            for k in range(4):
                a(f"v_dot2c_f32_bf16 v{acc+2*k}, v{reg+4*i+k}, v{tb+2*i}")
                a(f"v_dot2c_f32_bf16 v{acc+2*k+1}, v{reg+4*i+k}, v{tb+2*i+1}")
        for k in range(4):
            a(f"v_permlane32_swap_b32 v{acc+k}, v{acc+4+k}")
        for k in range(4):
            a(f"v_add_f32 v{acc+k}, v{acc+k}, v{acc+4+k}")
        a(f"v_permlane16_swap_b32 v{acc}, v{acc+2}")
        a(f"v_permlane16_swap_b32 v{acc+1}, v{acc+3}")
        a(f"v_add_f32 v{outA}, v{acc}, v{acc+2}")
        a(f"v_add_f32 v{outB}, v{acc+1}, v{acc+3}")
        for rr in rors:
            a(f"v_add_f32_dpp v{outA}, v{outA}, v{outA} row_ror:{rr} row_mask:0xf bank_mask:0xf")
            a(f"v_add_f32_dpp v{outB}, v{outB}, v{outB} row_ror:{rr} row_mask:0xf bank_mask:0xf")

    def read_T(self, tb, shift, stride):
        a = self.a
        for i in range(16):
            a(f"ds_read_b64 {V2(tb+2*i)}, v2 offset:{L_T+stride*i}")

    def qwave(self):
        a = self.a
        a.label("L_Q")
        a(f"s_setprio {self.qprio}")
        srd(a, SRD_A, S_X, size=1024)
        srd(a, SRD_B, S_WR, size=1024)
        a(f"s_lshl_b32 s{S_T0}, s{S_G}, 10"); a(f"s_lshl_b32 s{S_T0+1}, s{S_SP}, 5")
        a(f"s_add_u32 s{S_T0}, s{S_T0}, s{S_T0+1}")
        a(f"s_add_u32 s{SRD_C}, s{S_WQ}, s{S_T0}"); a(f"s_addc_u32 s{SRD_C+1}, s{S_WQ+1}, 0")
        a(f"s_sub_u32 s{SRD_C+2}, {512*8192}, s{S_T0}"); a(f"s_mov_b32 s{SRD_C+3}, 0x00020000")
        a("v_lshlrev_b32 v3, 4, v0")
        a(f"buffer_load_dwordx4 v[4:7], v3, {S(SRD_A)}, 0 offen")
        a(f"buffer_load_dwordx4 v[8:11], v3, {S(SRD_B)}, 0 offen")
        a("v_lshrrev_b32 v1, 1, v0"); a("v_lshlrev_b32 v1, 13, v1")
        a("v_and_b32 v2, 1, v0"); a("v_lshlrev_b32 v2, 4, v2"); a("v_add_u32 v1, v1, v2")
        self.gemv_loads(SRD_C, 64, 32*8192)
        a(f"v_mov_b32 v12, {L_CNT}"); a("v_mov_b32 v13, 12")
        a("ds_write_b32 v12, v13")
        a("s_waitcnt lgkmcnt(0)")
        a("s_barrier")
        a("s_waitcnt vmcnt(17)")
        for k in range(4):
            a(f"v_lshlrev_b32 v{16+2*k}, 16, v{4+k}")
            a(f"v_and_b32 v{17+2*k}, s{S_HI}, v{4+k}")
        a("v_pk_add_f32 v[24:25], v[16:17], v[18:19]")
        a("v_pk_add_f32 v[26:27], v[20:21], v[22:23]")
        a("v_pk_add_f32 v[24:25], v[24:25], v[26:27]")
        a("v_add_f32 v24, v24, v25")
        allreduce64(a, 24, 25, "v_add_f32")
        a("v_mul_f32 v24, 0x3b000000, v24")
        for k in range(8): a(f"v_sub_f32 v{28+k}, v{16+k}, v24")
        a("v_mul_f32 v26, v28, v28")
        for k in range(1, 8): a(f"v_fma_f32 v26, v{28+k}, v{28+k}, v26")
        allreduce64(a, 26, 25, "v_add_f32")
        a("v_mul_f32 v26, 0x3b000000, v26")
        rnd(a, 24); rnd(a, 26)
        a("v_add_f32 v26, 0x3727c5ac, v26"); rnd(a, 26)
        a("v_sqrt_f32 v26, v26"); rnd(a, 26)
        a("v_rcp_f32 v26, v26")
        for k in range(8): a(f"v_sub_f32 v{16+k}, v{16+k}, v24")
        for k in range(4): a(f"v_cvt_pk_bf16_f32 v{28+k}, v{16+2*k}, v{17+2*k}")
        for k in range(4):
            a(f"v_lshlrev_b32 v{16+2*k}, 16, v{28+k}")
            a(f"v_and_b32 v{17+2*k}, s{S_HI}, v{28+k}")
        for k in range(8): a(f"v_mul_f32 v{16+k}, v{16+k}, v26")
        for k in range(4): a(f"v_cvt_pk_bf16_f32 v{12+k}, v{16+2*k}, v{17+2*k}")
        a("v_lshlrev_b32 v2, 6, v0")
        for k in range(4):
            a(f"v_and_b32 v28, 0xffff, v{12+k}")
            a(f"v_lshlrev_b32 v29, 16, v{12+k}")
            a(f"v_lshrrev_b32 v30, 16, v{12+k}")
            a(f"v_and_b32 v31, s{S_HI}, v{12+k}")
            a(f"ds_write_b128 v2, v[28:31] offset:{L_T+16*k}")
            if k < 3:
                a("s_nop 1")
        a("s_waitcnt lgkmcnt(0)")
        a("v_lshrrev_b32 v2, 1, v0"); a("v_lshlrev_b32 v2, 3, v2")
        self.read_T(128, 1, 256)
        a("s_waitcnt lgkmcnt(0)")
        self.stamp(1)
        self.gemv_compute(64, 128, 16, 0, 24, 25, (2, 4, 8))
        self.get_tag()
        a("v_cvt_pk_bf16_f32 v26, v24, v25")
        a(f"v_mov_b32 v27, s{S_TAG}")
        a("v_and_b32 v2, 1, v0"); a("v_lshlrev_b32 v2, 5, v2")
        a("v_lshrrev_b32 v3, 4, v0"); a("v_lshlrev_b32 v3, 3, v3"); a("v_add_u32 v2, v2, v3")
        a(f"s_lshl_b32 s{S_T0}, s{S_G}, 11"); a(f"s_add_u32 s{S_T0}, s{S_T0}, {WS_QG}")
        a(f"s_lshl_b32 s{S_T0+1}, s{S_SP}, 6"); a(f"s_add_u32 s{S_T0+1}, s{S_T0+1}, s{S_T0}")
        a("s_mov_b32 exec_lo, 0x00030003"); a("s_mov_b32 exec_hi, 0x00030003")
        a(f"buffer_store_dwordx2 v[26:27], v2, {S(SRD_WS)}, s{S_T0+1} offen sc1")
        a("s_mov_b64 exec, -1")
        self.stamp(2)
        a("v_mov_b32 v28, 0")
        for k in range(4): a(f"v_dot2c_f32_bf16 v28, v{12+k}, v{8+k}")
        allreduce64(a, 28, 29, "v_add_f32")
        rnd(a, 28)
        a(f"v_mul_f32 v28, s{S_LOG2E}, v28")
        a("v_sub_f32 v28, 0, v28")
        a("v_exp_f32 v28, v28")
        a("v_add_f32 v28, 1.0, v28")
        a("v_rcp_f32 v28, v28")
        rnd(a, 28)
        a(f"v_mov_b32 v29, {L_RS}")
        a("ds_write_b32 v29, v28")
        a("v_lshlrev_b32 v2, 4, v0")
        a("v_lshlrev_b32 v3, 3, v0")
        first = True
        a(f"buffer_load_dwordx4 v[32:35], v2, {S(SRD_WS)}, s{S_T0} offen sc1")
        a(f"buffer_load_dwordx4 v[36:39], v2, {S(SRD_WS)}, s{S_T0} offen offset:1024 sc1")
        if self.early < 3: a("s_barrier")
        a("s_branch L_Q_chk")
        a.label("L_Q_poll")
        a(f"buffer_load_dwordx4 v[32:35], v2, {S(SRD_WS)}, s{S_T0} offen sc1")
        a(f"buffer_load_dwordx4 v[36:39], v2, {S(SRD_WS)}, s{S_T0} offen offset:1024 sc1")
        a.label("L_Q_chk")
        a("s_waitcnt vmcnt(0)")
        a(f"v_xor_b32 v30, s{S_TAG}, v33")
        for r in (35, 37, 39):
            a(f"v_xor_b32 v31, s{S_TAG}, v{r}"); a("v_or_b32 v30, v30, v31")
        a("v_cmp_ne_u32 vcc, 0, v30")
        a("s_cbranch_vccz L_Q_got")
        self.spin_guard("L_Q_poll", "L_Q_got")
        a.label("L_Q_got")
        a(f"v_add_u32 v3, {L_Q}, v3")
        a("ds_write2_b32 v3, v32, v34 offset0:0 offset1:1")
        a("ds_write2_b32 v3, v36, v38 offset0:128 offset1:129")
        a("s_waitcnt lgkmcnt(0)")
        self.stamp(3)
        a("s_barrier")
        a(f"s_cmp_ge_u32 s{S_SP}, 28")
        a("s_cbranch_scc1 L_Q_end")
        U, MM, CBK, KC = S_T0+4, S_T0+5, S_T0+6, S_T0+7
        a(f"s_mul_i32 s{U}, s{S_G}, 28"); a(f"s_add_u32 s{U}, s{U}, s{S_SP}")
        a(f"s_cmp_ge_u32 s{U}, 112"); a(f"s_cselect_b32 s{MM}, 1, 0")
        a(f"s_mul_i32 s{S_T0}, s{MM}, 112"); a(f"s_sub_u32 s{U}, s{U}, s{S_T0}")
        a(f"s_lshr_b32 s{CBK}, s{U}, 2"); a(f"s_and_b32 s{KC}, s{U}, 3")
        a(f"s_mul_i32 s{S_T0}, s{KC}, {128*3584}"); a(f"s_lshl_b32 s{S_T0+1}, s{CBK}, 7")
        a(f"s_add_u32 s{S_T0}, s{S_T0}, s{S_T0+1}")
        a(f"s_cmp_eq_u32 s{MM}, 0"); a("s_cbranch_scc0 L_Q_up")
        a(f"s_add_u32 s{SRD_C}, s{S_WG}, s{S_T0}"); a(f"s_addc_u32 s{SRD_C+1}, s{S_WG+1}, 0")
        a("s_branch L_Q_srd")
        a.label("L_Q_up")
        a(f"s_add_u32 s{SRD_C}, s{S_WU}, s{S_T0}"); a(f"s_addc_u32 s{SRD_C+1}, s{S_WU+1}, 0")
        a.label("L_Q_srd")
        a(f"s_sub_u32 s{SRD_C+2}, {512*3584}, s{S_T0}"); a(f"s_mov_b32 s{SRD_C+3}, 0x00020000")
        a("v_lshrrev_b32 v1, 3, v0"); a(f"s_mov_b32 s{S_T0+2}, 3584"); a(f"v_mul_lo_u32 v1, v1, s{S_T0+2}")
        a("v_and_b32 v2, 7, v0"); a("v_lshlrev_b32 v2, 4, v2"); a("v_add_u32 v1, v1, v2")
        self.gemv_loads(SRD_C, 64, 8*3584)
        a("v_lshrrev_b32 v2, 3, v0"); a("v_lshlrev_b32 v2, 3, v2")
        a(f"s_lshl_b32 s{S_T0}, s{KC}, 10"); a(f"v_add_u32 v2, s{S_T0}, v2")
        self.read_T(128, 3, 64)
        a("s_waitcnt lgkmcnt(0)")
        self.gemv_compute(64, 128, 16, 0, 24, 26, (8,))
        a(f"v_mov_b32 v25, s{S_TAG}"); a(f"v_mov_b32 v27, s{S_TAG}")
        a(f"s_lshl_b32 s{S_T0}, s{MM}, 2"); a(f"s_add_u32 s{S_T0}, s{S_T0}, s{KC}")
        a(f"s_mul_i32 s{S_T0}, s{S_T0}, {1792*8}"); a(f"s_lshl_b32 s{S_T0+1}, s{CBK}, 9")
        a(f"s_add_u32 s{S_T0}, s{S_T0}, s{S_T0+1}"); a(f"s_add_u32 s{S_T0}, s{S_T0}, {WS_GU}")
        a("v_and_b32 v2, 7, v0"); a("v_lshlrev_b32 v2, 6, v2")
        a("v_lshrrev_b32 v3, 4, v0"); a("v_lshlrev_b32 v3, 4, v3"); a("v_add_u32 v2, v2, v3")
        a("s_mov_b32 exec_lo, 0x00ff00ff"); a("s_mov_b32 exec_hi, 0x00ff00ff")
        a(f"buffer_store_dwordx4 v[24:27], v2, {S(SRD_WS)}, s{S_T0} offen sc1")
        a("s_mov_b64 exec, -1")
        a.label("L_Q_end")
        self.stamp(4)
        if self.spin and self.spin.startswith("Q"):
            k = int(self.spin[1:])
            a("s_waitcnt lgkmcnt(0)")
            a(f"v_mov_b32 v30, {L_RS+16}")
            for r in range(4): a(f"v_mov_b32 v{32+r}, s{S_TS+2*k}")
            a("ds_write_b128 v30, v[32:35]"); a("s_waitcnt lgkmcnt(0)")
        self.dump_stamps(5, 1)
        self.hdump([(2, 7, "max"), (3, 8, "max"), (1, 14, "max"), (4, 9, "max")], nsleep=0)
        a("s_waitcnt vmcnt(0)")
        a("s_branch L_end")

    def masked_gemv(self, pv, wb0, n, PB=32, D0=56, D1=60):
        a = self.a
        for i0 in range(0, n, 4):
            m = min(4, n - i0)
            for r in range(m):
                a(f"v_and_b32 v{PB+4*r+2}, v{pv+i0+r}, v5")
                a(f"v_and_b32 v{PB+4*r+3}, v{pv+i0+r}, v7")
            for r in range(m):
                wb = wb0 + 4*(i0+r)
                a(f"v_mfma_f32_16x16x32_bf16 {V4(D0)}, {V4(PB+4*r+2)}, {V4(wb)}, {V4(D0)}")
                a(f"v_mfma_f32_16x16x32_bf16 {V4(D1)}, {V4(PB+4*r)}, {V4(wb)}, {V4(D1)}")

    def wwave(self):
        a = self.a
        a.label("L_W")
        RB, CB, PART = S_T0+10, S_T0+11, S_T0+12
        a(f"s_lshr_b32 s{RB}, s{S_SP}, 2"); a(f"s_and_b32 s{CB}, s{S_SP}, 3")
        a(f"s_lshl_b32 s{PART}, s{S_G}, 3"); a(f"s_add_u32 s{PART}, s{PART}, s{RB}")
        a(f"s_lshl_b32 s{S_T0}, s{PART}, 16")
        a(f"s_lshl_b32 s{S_T0+1}, s{CB}, 8"); a(f"s_add_u32 s{S_T0}, s{S_T0}, s{S_T0+1}")
        srd(a, SRD_A, S_WO, S_T0, size=65536)
        a(f"s_sub_u32 s{SRD_A+2}, 65536, s{S_T0+1}")
        a(f"s_mul_i32 s{S_T0}, s{PART}, {28*1024}"); a(f"s_add_u32 s{S_T0}, s{S_T0}, s{S_T0+1}")
        srd(a, SRD_D, S_WD, S_T0, size=28*1024)
        a(f"s_sub_u32 s{SRD_D+2}, {28*1024}, s{S_T0+1}")
        srd(a, SRD_B, S_X, size=1024)
        srd(a, SRD_C, S_OUT, size=1024)
        a("v_lshrrev_b32 v1, 4, v0"); a("v_lshlrev_b32 v1, 10, v1")
        a("v_and_b32 v2, 15, v0"); a("v_lshlrev_b32 v2, 4, v2"); a("v_add_u32 v1, v1, v2")
        self.get_tag()
        a(f"s_getreg_b32 s{S_T0+9}, hwreg(HW_REG_XCC_ID)")
        a(f"s_lshl_b32 s{S_T0+8}, s{S_G}, 8"); a(f"s_add_u32 s{S_T0+8}, s{S_T0+8}, {WS_XT}")
        a(f"s_lshl_b32 s{S_T0}, s{S_SP}, 3")
        a(f"v_mov_b32 v16, s{S_T0+9}"); a(f"v_mov_b32 v17, s{S_TAG}"); a(f"v_mov_b32 v18, s{S_T0}")
        a("s_mov_b64 exec, 1")
        a(f"buffer_store_dwordx2 v[16:17], v18, {S(SRD_WS)}, s{S_T0+8} offen sc1")
        a("s_mov_b64 exec, -1")
        a("s_barrier")
        if self.early < 3: a("s_barrier")
        a("s_barrier")
        a(f"s_setprio {self.auxprio}")
        WO = 64; WD = 128
        a(f"s_mov_b32 s{S_OFF}, 0")
        for i in range(16):
            a(f"buffer_load_dwordx4 {V4(WO+4*i)}, v1, {S(SRD_A)}, s{S_OFF} offen {self.wflag}")
            if i < 15: a(f"s_add_u32 s{S_OFF}, s{S_OFF}, 4096")
        a(f"s_mov_b32 s{S_OFF}, 0")
        for i in range(7):
            a(f"buffer_load_dwordx4 {V4(WD+4*i)}, v1, {S(SRD_D)}, s{S_OFF} offen {self.wflag}")
            if i < 6: a(f"s_add_u32 s{S_OFF}, s{S_OFF}, 4096")
        a(f"s_lshl_b32 s{S_T0+2}, s{S_G}, 7"); a(f"s_lshl_b32 s{S_T0+3}, s{S_SP}, 2")
        a(f"s_add_u32 s{S_T0+2}, s{S_T0+2}, s{S_T0+3}")
        a(f"v_mov_b32 v2, s{S_T0+2}")
        a(f"buffer_load_dword v8, v2, {S(SRD_B)}, 0 offen")
        a(f"s_lshl_b32 s{S_T0+3}, s{S_T0+2}, 2")
        a(f"v_mov_b32 v3, s{S_T0+3}")
        a(f"ds_read_b128 v[12:15], v3 offset:{L_T}")
        a(f"v_mov_b32 v3, {L_RS}")
        a("ds_read_b32 v9, v3")
        self.masksXY(5, 7, 28)
        for k in range(5):
            a(f"v_mov_b32 v{32+4*k}, 0"); a(f"v_mov_b32 v{33+4*k}, 0")
        for k in range(8): a(f"v_mov_b32 v{56+k}, 0")
        a(f"s_mov_b32 s{S_M1}, 0xffff0000"); a(f"s_mov_b32 s{S_M1+1}, 0xffff0000")
        a(f"s_mov_b32 s{S_M2}, 0"); a(f"s_mov_b32 s{S_M2+1}, -1")
        a(f"s_mul_i32 s{S_T0+4}, s{PART}, {28*8}"); a(f"s_add_u32 s{S_T0+4}, s{S_T0+4}, {WS_GU}")
        a(f"s_add_u32 s{S_T0+5}, s{S_T0+4}, {4*1792*8}")
        a("v_lshrrev_b32 v10, 4, v0"); a(f"s_mov_b32 s{S_T0}, {1792*8}"); a(f"v_mul_lo_u32 v10, v10, s{S_T0}")
        a("v_and_b32 v11, 15, v0"); a("v_min_u32 v11, 13, v11"); a("v_lshlrev_b32 v11, 4, v11")
        a("v_add_u32 v10, v10, v11")
        a("v_and_b32 v11, 31, v0"); a("v_lshlrev_b32 v11, 3, v11")
        a.label("L_W_ypoll")
        a(f"buffer_load_dwordx4 v[16:19], v10, {S(SRD_WS)}, s{S_T0+4} offen sc1")
        a(f"buffer_load_dwordx4 v[20:23], v10, {S(SRD_WS)}, s{S_T0+5} offen sc1")
        a(f"buffer_load_dwordx2 v[24:25], v11, {S(SRD_WS)}, s{S_T0+8} offen sc1")
        a("s_waitcnt vmcnt(0)")
        a(f"v_xor_b32 v30, s{S_TAG}, v17")
        for r in (19, 21, 23, 25):
            a(f"v_xor_b32 v31, s{S_TAG}, v{r}"); a("v_or_b32 v30, v30, v31")
        a("v_cmp_ne_u32 vcc, 0, v30")
        a("s_cbranch_vccz L_W_ygot")
        self.spin_guard("L_W_ypoll", "L_W_ygot", sleep=32)
        a.label("L_W_ygot")
        a(f"v_cmp_ne_u32 vcc, s{S_T0+9}, v24")
        a("s_cmp_eq_u64 vcc, 0")
        a(f"s_cselect_b32 s{S_T0}, {0 if self.forceslow else 1}, 0")
        a(f"v_mov_b32 v26, s{S_T0}"); a(f"v_mov_b32 v27, {L_SAME}")
        a("ds_write_b32 v27, v26")
        for v in (16, 18, 20, 22): rows_reduce(a, v, 30, "v_add_f32")
        for v in (16, 18, 20, 22): rnd(a, v)
        for v in (16, 18):
            a(f"v_mul_f32 v28, s{S_LOG2E}, v{v}")
            a("v_sub_f32 v28, 0, v28")
            a("v_exp_f32 v28, v28")
            a("v_add_f32 v28, 1.0, v28")
            a("v_rcp_f32 v28, v28")
            a(f"v_mul_f32 v{v}, v{v}, v28")
            rnd(a, v)
        a("v_mul_f32 v16, v16, v20"); a("v_mul_f32 v18, v18, v22")
        a("v_cvt_pk_bf16_f32 v16, v16, v16"); a("v_cvt_pk_bf16_f32 v18, v18, v18")
        a("v_and_b32 v20, 1, v0"); a("v_lshlrev_b32 v20, 7, v20")
        a("v_bfe_u32 v21, v0, 1, 3"); a("v_lshlrev_b32 v21, 2, v21"); a("v_add_u32 v20, v20, v21")
        a("s_mov_b64 exec, 0x3fff")
        a(f"ds_write_b32 v20, v16 offset:{L_HP}")
        a(f"ds_write_b32 v20, v18 offset:{L_HP+64}")
        a("s_mov_b64 exec, -1")
        a("v_lshrrev_b32 v24, 4, v0"); a("v_lshlrev_b32 v24, 6, v24")
        a("s_waitcnt lgkmcnt(0)")
        HV = 160
        for k in range(2):
            a(f"ds_read_b128 {V4(HV+4*k)}, v24 offset:{L_HP+16*k}")
        a("s_waitcnt lgkmcnt(0)")
        self.masked_gemv(HV, WD, 7)
        for k in range(8): a(f"v_mul_f32 v{56+k}, v{56+k}, v9")
        a("v_lshlrev_b32 v12, 16, v8"); a(f"v_and_b32 v14, s{S_HI}, v8")
        a("v_add_f32 v12, v12, v13"); a("v_add_f32 v14, v14, v15")
        a(f"s_lshl_b32 s{S_T0+6}, s{PART}, 12")
        a(f"s_lshl_b32 s{S_T0+7}, s{CB}, 10"); a(f"s_add_u32 s{S_T0+6}, s{S_T0+6}, s{S_T0+7}")
        a(f"s_add_u32 s{S_T0+6}, s{S_T0+6}, {WS_AP}")
        a("v_and_b32 v20, 15, v0"); a("v_lshlrev_b32 v20, 6, v20")
        a("v_lshrrev_b32 v21, 4, v0"); a("v_lshlrev_b32 v21, 4, v21"); a("v_add_u32 v20, v20, v21")
        a(f"s_lshl_b32 s{S_T0+7}, s{S_T0+2}, 2"); a(f"s_add_u32 s{S_T0+7}, s{S_T0+7}, {WS_AP}")
        a("v_lshlrev_b32 v10, 12, v0")
        a("v_lshlrev_b32 v22, 2, v0")
        a("v_and_b32 v23, 3, v0"); a("v_lshlrev_b32 v23, 6, v23")
        a("v_lshrrev_b32 v25, 2, v0"); a("v_lshlrev_b32 v25, 2, v25"); a("v_add_u32 v23, v23, v25")
        a(f"v_mov_b32 v29, s{S_TAG}"); a(f"v_mov_b32 v31, s{S_TAG}")
        a(f"s_mov_b32 s{S_SPIN}, {SPIN_LIMIT}")
        a("s_waitcnt lgkmcnt(0)")
        self.stamp(1)
        a("s_barrier")
        a("s_barrier")
        self.stamp(2)
        for k in range(4):
            a(f"ds_read_b32 v{16+k}, v22 offset:{L_G+256*k}")
        a("s_waitcnt lgkmcnt(0)")
        a("v_add_f32 v16, v16, v17"); a("v_add_f32 v18, v18, v19"); a("v_add_f32 v26, v16, v18")
        a("v_cvt_pk_bf16_f32 v26, v26, v26")
        a(f"ds_write_b32 v23, v26 offset:{L_PP}")
        a("s_waitcnt lgkmcnt(0)")
        PPV = 168
        for k in range(4):
            a(f"ds_read_b128 {V4(PPV+4*k)}, v24 offset:{L_PP+16*k}")
        a("s_waitcnt lgkmcnt(0)")
        D0 = 56; D1 = 60
        self.masked_gemv(PPV, 64, 16)
        m1 = f"s[{S_M1}:{S_M1+1}]"; m2 = f"s[{S_M2}:{S_M2+1}]"
        a(f"v_cndmask_b32 v26, v{D0}, v{D0+2}, {m1}")
        a(f"v_cndmask_b32 v27, v{D1}, v{D1+2}, {m1}")
        a(f"v_cndmask_b32 v28, v26, v27, {m2}")
        a(f"v_cndmask_b32 v26, v{D0+1}, v{D0+3}, {m1}")
        a(f"v_cndmask_b32 v27, v{D1+1}, v{D1+3}, {m1}")
        a(f"v_cndmask_b32 v30, v26, v27, {m2}")
        a(f"buffer_store_dwordx4 v[28:31], v20, {S(SRD_WS)}, s{S_T0+6} offen sc1")
        self.stamp(3)
        a.label("L_W_apoll")
        a(f"buffer_load_dwordx4 v[24:27], v10, {S(SRD_WS)}, s{S_T0+7} offen sc1")
        a("s_waitcnt vmcnt(0)")
        a(f"v_xor_b32 v16, s{S_TAG}, v25")
        a(f"v_xor_b32 v17, s{S_TAG}, v27"); a("v_or_b32 v16, v16, v17")
        a("v_cmp_ne_u32 vcc, 0, v16")
        a("s_cbranch_vccz L_W_agot")
        self.spin_guard("L_W_apoll", "L_W_agot")
        a.label("L_W_agot")
        self.stamp(4)
        allreduce64(a, 24, 16, "v_add_f32"); allreduce64(a, 26, 17, "v_add_f32")
        a("v_add_f32 v24, v24, v12"); a("v_add_f32 v26, v26, v14")
        if self.perturb:
            import struct
            bits = struct.unpack("<I", struct.pack("<f", float(self.perturb)))[0]
            a(f"v_add_f32 v24, {bits:#x}, v24"); a(f"v_add_f32 v26, {bits:#x}, v26")
        a("v_cvt_pk_bf16_f32 v24, v24, v26")
        a("s_mov_b64 exec, 1")
        a(f"buffer_store_dword v24, v2, {S(SRD_C)}, 0 offen")
        a("s_cmp_lg_u32 s2, 0")
        a("s_cbranch_scc1 L_W_noep")
        a(f"v_mov_b32 v25, s{S_TAG}"); a("v_mov_b32 v26, 0")
        a(f"buffer_store_dword v25, v26, {S(SRD_WS)}, 0 offen sc1")
        a.label("L_W_noep")
        a("s_mov_b64 exec, -1")
        self.stamp(5)
        if self.spin:
            if self.spin[0] in "SQ":
                a(f"v_mov_b32 v3, {L_RS+16}"); a("ds_read_b128 v[4:7], v3"); a("s_waitcnt lgkmcnt(0)")
                a("v_max_u32 v4, v4, v5"); a("v_max_u32 v6, v6, v7"); a("v_max_u32 v4, v4, v6")
                a(f"v_readfirstlane_b32 s{S_T0}, v4")
            else:
                k = int(self.spin[1:])
                a("s_waitcnt lgkmcnt(0)")
                a(f"s_mov_b32 s{S_T0}, s{S_TS+2*k}")
            a(f"s_add_u32 s{S_T0}, s{S_T0}, 10000")
            a.label("L_spin")
            a(f"s_memrealtime s[{S_T0+2}:{S_T0+3}]"); a("s_waitcnt lgkmcnt(0)")
            a(f"s_sub_u32 s{S_T0+4}, s{S_T0+2}, s{S_T0}")
            a(f"s_cmp_lt_i32 s{S_T0+4}, 0")
            a("s_cbranch_scc1 L_spin")
        self.dump_stamps(6, 3)
        self.hdump([(0, 0, "min"), (5, 1, "max"), (1, 10, "max"), (3, 11, "max"), (4, 12, "max"), (0, 13, "max")])
        a("s_waitcnt vmcnt(0)")

    def build(self):
        self.prologue()
        self.swave()
        self.qwave()
        self.wwave()
        self.a.label("L_end")
        self.a("s_endpgm")
        body = self.a.text()
        stub = open("parallel_sum__gqa_block_cached__moe_arch_mod__decode.s.ref").read()
        head = stub[:stub.index("; @launch")]
        txt = head + f"; @launch grid=(256,1,1) block=(384,1,1) lds={LDS_BYTES}\n"
        txt += f""".amdgcn_target "amdgcn-amd-amdhsa--gfx950"
.text
.globl {KNAME}
.p2align 8
.type {KNAME},@function
{KNAME}:
{body}
.section .rodata,"a"
.p2align 6
.amdhsa_kernel {KNAME}
  .amdhsa_next_free_vgpr 256
  .amdhsa_next_free_sgpr 102
  .amdhsa_accum_offset 256
  .amdhsa_group_segment_fixed_size 0
  .amdhsa_kernarg_size 104
  .amdhsa_user_sgpr_count 2
  .amdhsa_user_sgpr_kernarg_segment_ptr 1
  .amdhsa_system_sgpr_workgroup_id_x 1
.end_amdhsa_kernel
"""
        return txt

if __name__ == "__main__":
    import argparse
    p = argparse.ArgumentParser()
    p.add_argument("--dbg", action="store_true")
    p.add_argument("--wflag", default="nt")
    p.add_argument("--hdbg", action="store_true")
    p.add_argument("--spin", default=None)
    p.add_argument("--perturb", default=None)
    p.add_argument("--forceslow", action="store_true")
    p.add_argument("--nofast", action="store_true")
    p.add_argument("--auxprio", type=int, default=3)
    p.add_argument("--qprio", type=int, default=3)
    p.add_argument("--early", type=int, default=3)
    p.add_argument("-o", default="parallel_sum__gqa_block_cached__moe_arch_mod__decode.s")
    args = p.parse_args()
    g = Gen(dbg=args.dbg, wflag=args.wflag, hdbg=args.hdbg, spin=args.spin, perturb=args.perturb,
            forceslow=args.forceslow, auxprio=args.auxprio, qprio=args.qprio, nofast=args.nofast, early=args.early)
    t = g.build()
    open(args.o, "w").write(t)
    print("wrote", args.o, len(t), "bytes")
```

```python
import sys
from asmlib import Asm

KNAME = "parallel_sum__gqa_block_cached__moe_arch_mod__decode_kernel"
WS_QG = 0x1000
WS_XT = 0x6000
WS_ST = 0x8000
WS_AP = 0x10000
WS_GU = 0x60000
WS_OP = 0x100000
WS_DBG = 0x200000
WS_SIZE = 0x300000
L_T = 0; L_Q = 4096; L_O = 5120; L_ST = 13312; L_G = 13568; L_PP = 14592; L_RS = 14848
L_CNT = 14852; L_SAME = 14856; L_HP = 14912
LDS_BYTES = 15360
SPIN_LIMIT = 40000

S_X, S_K, S_V, S_WQ, S_WO, S_WR, S_WG, S_WU, S_WD, S_OUT, S_WS = 8, 10, 12, 14, 16, 20, 22, 24, 26, 28, 32
S_G, S_SP, S_WAVE, S_TAG = 34, 35, 36, 37
SRD_WS = 40
SRD_A = 44
SRD_B = 48
SRD_C = 52
SRD_D = 4
S_OFF = 56
S_SO = 3
S_OFFS = (76, 77, 78)
S_SPIN = 57
S_HI = 58
S_LOG2E = 59
S_SCALE = 60
S_M1 = 62
S_M2 = 64
S_T0 = 66
S_TS = 80
S_DR = 74

def srd(a, d, base, off_sgpr=None, off_imm=0, size=0):
    if off_sgpr is not None:
        a(f"s_add_u32 s{d}, s{base}, s{off_sgpr}")
        a(f"s_addc_u32 s{d+1}, s{base+1}, 0")
    else:
        a(f"s_mov_b32 s{d}, s{base}")
        a(f"s_mov_b32 s{d+1}, s{base+1}")
    a(f"s_mov_b32 s{d+2}, {size:#x}")
    a(f"s_mov_b32 s{d+3}, 0x00020000")

def S(d): return f"s[{d}:{d+3}]"
def V4(r): return f"v[{r}:{r+3}]"
def V2(r): return f"v[{r}:{r+1}]"

def allreduce64(a, v, t, op):
    a(f"{op}_dpp v{v}, v{v}, v{v} quad_perm:[1,0,3,2] row_mask:0xf bank_mask:0xf")
    a(f"{op}_dpp v{v}, v{v}, v{v} quad_perm:[2,3,0,1] row_mask:0xf bank_mask:0xf")
    a(f"{op}_dpp v{v}, v{v}, v{v} row_half_mirror row_mask:0xf bank_mask:0xf")
    a(f"{op}_dpp v{v}, v{v}, v{v} row_mirror row_mask:0xf bank_mask:0xf")
    rows_reduce(a, v, t, op)

def rows_reduce(a, v, t, op):
    a(f"v_mov_b32 v{t}, v{v}")
    a(f"v_permlane16_swap_b32 v{v}, v{t}")
    a(f"{op} v{v}, v{v}, v{t}")
    a(f"v_mov_b32 v{t}, v{v}")
    a(f"v_permlane32_swap_b32 v{v}, v{t}")
    a(f"{op} v{v}, v{v}, v{t}")

def rnd(a, v):
    a(f"v_cvt_pk_bf16_f32 v{v}, v{v}, v{v}")
    a(f"v_and_b32 v{v}, s{S_HI}, v{v}")

class Gen:
    def __init__(self, dbg=False, wflag="nt", hdbg=False, spin=None, perturb=None, forceslow=False, auxprio=3, qprio=3, nofast=False, early=3, nob=False, ilv=False, series=False, drain=False):
        self.hdbg = hdbg; self.spin = spin; self.perturb = perturb
        if hdbg: dbg = False
        self.dbg = dbg; self.wflag = wflag; self.forceslow = forceslow; self.auxprio = auxprio; self.qprio = qprio
        self.nofast = nofast; self.early = early; self.nob = nob; self.ilv = ilv; self.series = series; self.drain = drain
        self.a = Asm()

    def hdump(self, items, nsleep=5):
        if not self.hdbg: return
        a = self.a
        a("s_waitcnt lgkmcnt(0) vmcnt(0)")
        a("s_setprio 0")
        for _ in range(nsleep): a("s_sleep 127")
        srd(a, SRD_C, 30, size=256)
        a("s_mov_b64 exec, 1")
        for (st, w, mode) in items:
            if mode == "min":
                a(f"s_not_b32 s{S_T0}, s{S_TS+2*st}")
                a(f"v_mov_b32 v2, s{S_T0}")
            else:
                a(f"v_mov_b32 v2, s{S_TS+2*st}")
            a(f"v_mov_b32 v3, {4*w}")
            a(f"buffer_atomic_umax v2, v3, {S(SRD_C)}, 0 offen sc1")
            a("s_waitcnt vmcnt(0)")
        a("s_mov_b64 exec, -1")

    def stamp(self, idx):
        if self.dbg or self.hdbg or self.spin:
            self.a(f"s_memrealtime s[{S_TS+2*idx}:{S_TS+2*idx+1}]")

    def dump_stamps(self, n, slot, vt=2):
        if not self.dbg: return
        a = self.a
        a("s_waitcnt lgkmcnt(0) vmcnt(0)")
        a(f"s_lshl_b32 s{S_T0}, s2, 10")
        a(f"s_lshl_b32 s{S_T0+1}, s{S_WAVE}, 7")
        a(f"s_add_u32 s{S_T0}, s{S_T0}, s{S_T0+1}")
        a(f"s_add_u32 s{S_T0}, s{S_T0}, {WS_DBG}")
        a("s_mov_b64 exec, 1")
        a(f"v_mov_b32 v{vt+2}, s{S_T0}")
        for i in range(n):
            a(f"v_mov_b32 v{vt}, s{S_TS+2*i}")
            a(f"v_mov_b32 v{vt+1}, s{S_TS+2*i+1}")
            a(f"buffer_store_dwordx2 {V2(vt)}, v{vt+2}, {S(SRD_WS)}, 0 offen offset:{8*i}")
            a("s_waitcnt vmcnt(0)")
        a("s_mov_b64 exec, -1")

    def spin_guard(self, lab_retry, lab_done, sleep=1):
        a = self.a
        a(f"s_sub_u32 s{S_SPIN}, s{S_SPIN}, 1")
        a(f"s_cmp_eq_u32 s{S_SPIN}, 0")
        a(f"s_cbranch_scc1 {lab_done}")
        if sleep: a(f"s_sleep {sleep}")
        a(f"s_branch {lab_retry}")

    def prologue(self):
        a = self.a
        a("s_cmp_ge_u32 s2, 256")
        a("s_cbranch_scc1 L_end")
        self.stamp(0)
        a("s_load_dwordx16 s[8:23], s[0:1], 0")
        a("s_load_dwordx8 s[24:31], s[0:1], 64")
        a(f"s_load_dwordx2 s[{S_WS}:{S_WS+1}], s[0:1], 96")
        a("v_lshrrev_b32 v1, 6, v0")
        a("v_and_b32 v0, 63, v0")
        a(f"s_and_b32 s{S_G}, s2, 7")
        a(f"s_lshr_b32 s{S_SP}, s2, 3")
        a(f"v_readfirstlane_b32 s{S_WAVE}, v1")
        a(f"s_mov_b32 s{S_HI}, 0xffff0000")
        a(f"s_mov_b32 s{S_LOG2E}, 0x3fb8aa3b")
        a(f"s_mov_b32 s{S_SPIN}, {SPIN_LIMIT}")
        a("s_waitcnt lgkmcnt(0)")
        a(f"s_load_dword s{S_TAG}, s[{S_WS}:{S_WS+1}], 0")
        srd(a, SRD_WS, S_WS, size=WS_SIZE)
        a(f"s_cmp_lt_u32 s{S_WAVE}, 4")
        a("s_cbranch_scc1 L_S")
        a(f"s_cmp_eq_u32 s{S_WAVE}, 4")
        a("s_cbranch_scc1 L_Q")
        a("s_branch L_W")

    def get_tag(self):
        a = self.a
        a("s_waitcnt lgkmcnt(0)")
        a(f"s_add_u32 s{S_TAG}, s{S_TAG}, 1")

    RING = 64
    def issueK(self, slot):
        a = self.a; b = self.RING + 64*slot
        for t in range(2):
            for c in range(4):
                r = b + 16*t + 4*c
                a(f"buffer_load_dwordx4 {V4(r)}, v{1+t}, {S(SRD_A)}, s{S_OFFS[slot]} offen offset:{64*c} nt")
    def issueV(self, slot):
        a = self.a; b = self.RING + 64*slot + 32
        for r8 in range(8):
            r = b + 4*r8
            a(f"buffer_load_dwordx4 {V4(r)}, v{3+(r8>>2)}, {S(SRD_B)}, s{S_OFFS[slot]} offen offset:{1024*(r8&3)} nt")

    def group(self, slot, kwait=40, vwait=40, reissue=True):
        a = self.a
        b = self.RING + 64*slot
        SC = 32; PB = 10; D0 = 40; D1 = 44; Q = 48
        vM, vMC, vL, vMX, vMY = 6, 8, 9, 5, 7
        a(f"s_cmp_ge_u32 s{S_OFFS[slot]}, {0x1000000 if self.ilv else 0x80000:#x}")
        a("s_cbranch_scc1 L_S_done")
        a("s_mov_b64 exec, 1")
        a(f"ds_inc_rtn_u32 v28, v10, v5 offset:{L_CNT}")
        a("s_mov_b64 exec, -1")
        if self.drain: self.ladder([40, 24, 8])
        else: a(f"s_waitcnt vmcnt({kwait})")
        for c in range(4):
            for t in range(2):
                cc = "0" if c == 0 else V4(SC+4*t)
                a(f"v_mfma_f32_16x16x32_bf16 {V4(SC+4*t)}, {V4(b+16*t+4*c)}, {V4(Q+4*c)}, {cc}")
        if self.series: a("s_memrealtime s[96:97]")
        a("s_waitcnt lgkmcnt(0)")
        if self.series:
            a("s_mov_b32 m0, s95"); a("s_nop 4"); a("v_writelane_b32 v0, s96, m0"); a("s_add_u32 s95, s95, 1")
        a(f"v_readfirstlane_b32 s{S_T0}, v28")
        if self.ilv:
            a(f"s_lshl_b32 s{S_T0}, s{S_T0}, 18")
            a(f"s_add_u32 s{S_OFFS[slot]}, s{S_T0}, s79")
        else:
            a(f"s_lshl_b32 s{S_OFFS[slot]}, s{S_T0}, 13")
        if self.drain:
            inv = a.uniq("L_inv"); cont = a.uniq("L_cont")
            a(f"s_cmp_ge_u32 s{S_OFFS[slot]}, {0x1000000 if self.ilv else 0x80000:#x}")
            a(f"s_cbranch_scc0 {cont}")
            a(f"s_add_u32 s{S_DR}, s{S_DR}, 1")
            a(f"s_branch {inv}")
            a.label(cont)
            self.issueK(slot)
            a.label(inv)
        else:
            self.issueK(slot)
        for k in range(4):
            s0 = SC+2*k; t = 28+k
            a(f"v_cvt_pk_bf16_f32 v{t}, v{s0}, v{s0+1}")
        for k in range(4):
            s0 = SC+2*k; t = 28+k
            a(f"v_lshlrev_b32 v{s0}, 16, v{t}")
            a(f"v_and_b32 v{s0+1}, s{S_HI}, v{t}")
        for k in range(4):
            s0 = SC+2*k
            a(f"v_pk_mul_f32 {V2(s0)}, {V2(s0)}, s[{S_SCALE}:{S_SCALE+1}]")
        for k in range(4):
            s0 = SC+2*k; t = 28+k
            a(f"v_cvt_pk_bf16_f32 v{t}, v{s0}, v{s0+1}")
        for k in range(4):
            s0 = SC+2*k; t = 28+k
            a(f"v_lshlrev_b32 v{s0}, 16, v{t}")
            a(f"v_and_b32 v{s0+1}, s{S_HI}, v{t}")
        a(f"v_max3_f32 v28, v{SC}, v{SC+1}, v{SC+2}")
        a(f"v_max3_f32 v29, v{SC+3}, v{SC+4}, v{SC+5}")
        a(f"v_max3_f32 v28, v28, v{SC+6}, v{SC+7}")
        a(f"v_max_f32 v28, v28, v29")
        a(f"v_cmp_gt_f32 vcc, v28, v{vM}")
        skip = a.uniq("L_skip")
        a(f"s_cbranch_vccz {skip}")
        rows_reduce(a, 28, 29, "v_max_f32")
        a(f"v_max_f32 v28, v28, v{vM}")
        a(f"v_mul_f32 v29, s{S_LOG2E}, v28")
        a(f"v_sub_f32 v30, v{vMC}, v29")
        a(f"v_exp_f32 v30, v30")
        a(f"v_mov_b32 v{vM}, v28")
        a(f"v_mov_b32 v{vMC}, v29")
        a(f"v_mul_f32 v{vL}, v{vL}, v30")
        for h in range(4):
            a(f"v_mov_b32_dpp v31, v30 row_newbcast:{4*h} row_mask:{1<<h:#x} bank_mask:0xf")
        for k in range(8):
            a(f"v_mul_f32 v{D0+k}, v{D0+k}, v31")
        a.label(skip)
        for k in range(8):
            a(f"v_fma_f32 v{SC+k}, v{SC+k}, s{S_LOG2E}, -v{vMC}")
        for k in range(8):
            a(f"v_exp_f32 v{SC+k}, v{SC+k}")
        for t in range(2):
            for r in range(4):
                a(f"v_cvt_pk_bf16_f32 v{28+r}, v{SC+4*t+r}, v{SC+4*t+r}")
            for r in range(4):
                a(f"v_and_b32 v{PB+4*r+2}, v{28+r}, v{vMX}")
                a(f"v_and_b32 v{PB+4*r+3}, v{28+r}, v{vMY}")
            if t == 0:
                if self.drain: self.ladder([40, 32, 16, 0])
                else: a(f"s_waitcnt vmcnt({vwait})")
            for r in range(4):
                vb = b + 32 + 4*(4*t+r)
                a(f"v_mfma_f32_16x16x32_bf16 {V4(D0)}, {V4(PB+4*r+2)}, {V4(vb)}, {V4(D0)}")
                a(f"v_mfma_f32_16x16x32_bf16 {V4(D1)}, {V4(PB+4*r)}, {V4(vb)}, {V4(D1)}")
        if self.drain:
            skv = a.uniq("L_skv")
            a(f"s_cmp_lg_u32 s{S_DR}, 0"); a(f"s_cbranch_scc1 {skv}")
            self.issueV(slot)
            a.label(skv)
        else:
            self.issueV(slot)
        a(f"v_pk_add_f32 v[28:29], {V2(SC)}, {V2(SC+2)}")
        a(f"v_pk_add_f32 v[30:31], {V2(SC+4)}, {V2(SC+6)}")
        a(f"v_pk_add_f32 v[28:29], v[28:29], v[30:31]")
        a(f"v_add_f32 v28, v28, v29")
        a(f"v_add_f32 v{vL}, v{vL}, v28")

    def ladder(self, waits):
        a = self.a
        labs = [a.uniq("L_lad") for _ in waits]
        for i in range(len(waits)-1):
            a(f"s_cmp_eq_u32 s{S_DR}, {i}"); a(f"s_cbranch_scc1 {labs[i]}")
        for i in range(len(waits)-1, -1, -1):
            if i < len(waits)-1: a.label(labs[i])
            a(f"s_waitcnt vmcnt({waits[i]})")

    def masksXY(self, vX, vY, t):
        a = self.a
        a(f"v_and_b32 v{t}, 3, v0")
        a(f"v_mov_b32 v{vX}, 0"); a(f"v_mov_b32 v{vY}, 0")
        a(f"v_mov_b32 v{t+1}, 0xffff")
        a(f"v_mov_b32 v{t+2}, s{S_HI}")
        a(f"v_cmp_eq_u32 vcc, 0, v{t}"); a(f"v_cndmask_b32 v{vX}, v{vX}, v{t+1}, vcc")
        a(f"v_cmp_eq_u32 vcc, 1, v{t}"); a(f"v_cndmask_b32 v{vX}, v{vX}, v{t+2}, vcc")
        a(f"v_cmp_eq_u32 vcc, 2, v{t}"); a(f"v_cndmask_b32 v{vY}, v{vY}, v{t+1}, vcc")
        a(f"v_cmp_eq_u32 vcc, 3, v{t}"); a(f"v_cndmask_b32 v{vY}, v{vY}, v{t+2}, vcc")

    def swave(self):
        a = self.a
        a.label("L_S")
        a(f"s_lshl_b32 s{S_T0}, s{S_G}, 24")
        if not self.ilv:
            a(f"s_lshl_b32 s{S_T0+1}, s{S_SP}, 19")
            a(f"s_add_u32 s{S_T0}, s{S_T0}, s{S_T0+1}")
        srd(a, SRD_A, S_K, S_T0, size=0x1000000 if self.ilv else 0x80000)
        srd(a, SRD_B, S_V, S_T0, size=0x1000000 if self.ilv else 0x80000)
        a(f"s_lshl_b32 s79, s{S_SP}, 13")
        a("v_and_b32 v1, 3, v0"); a("v_lshlrev_b32 v1, 10, v1")
        a("v_bfe_u32 v2, v0, 2, 2"); a("v_lshlrev_b32 v2, 8, v2"); a("v_add_u32 v1, v1, v2")
        a("v_lshrrev_b32 v2, 4, v0"); a("v_lshlrev_b32 v2, 4, v2"); a("v_add_u32 v1, v1, v2")
        a("v_add_u32 v2, 0x1000, v1")
        a("v_lshlrev_b32 v3, 4, v0"); a("v_add_u32 v4, 0x1000, v3")
        for k in range(3):
            if self.ilv:
                a(f"s_lshl_b32 s{S_OFFS[k]}, s{S_WAVE}, 18")
                a(f"s_add_u32 s{S_OFFS[k]}, s{S_OFFS[k]}, s79")
                if k: a(f"s_add_u32 s{S_OFFS[k]}, s{S_OFFS[k]}, {(4<<18)*k}")
            else:
                a(f"s_lshl_b32 s{S_OFFS[k]}, s{S_WAVE}, 13")
                if k: a(f"s_add_u32 s{S_OFFS[k]}, s{S_OFFS[k]}, {32768*k}")
        a("s_barrier")
        self.stamp(1)
        for slot in range(3):
            if slot == self.early: a("s_barrier")
            self.issueK(slot); self.issueV(slot)
        self.masksXY(5, 7, 28)
        for k in range(5):
            a(f"v_mov_b32 v{10+4*k}, 0"); a(f"v_mov_b32 v{11+4*k}, 0")
        for k in range(8): a(f"v_mov_b32 v{40+k}, 0")
        a("v_mov_b32 v6, 0xff800000"); a("v_mov_b32 v8, 0xff800000"); a("v_mov_b32 v9, 0")
        a(f"s_mov_b32 s{S_SCALE}, 0x3db504f3"); a(f"s_mov_b32 s{S_SCALE+1}, 0x3db504f3")
        a("v_bfe_u32 v28, v0, 2, 2"); a("v_lshlrev_b32 v28, 8, v28")
        a("v_lshrrev_b32 v29, 4, v0"); a("v_lshlrev_b32 v29, 4, v29"); a("v_add_u32 v28, v28, v29")
        a(f"s_lshl_b32 s{S_T0}, s{S_G}, 5"); a(f"s_add_u32 s{S_T0}, s{S_T0}, s{S_SP}")
        a(f"s_lshl_b32 s{S_T0}, s{S_T0}, 12")
        a(f"s_lshl_b32 s67, s{S_WAVE}, 10")
        a(f"s_add_u32 s67, s{S_T0}, s67"); a(f"s_add_u32 s67, s67, {WS_OP}")
        a(f"s_lshl_b32 s68, s{S_G}, 2"); a(f"s_add_u32 s68, s68, s{S_WAVE}")
        a(f"s_lshl_b32 s68, s68, 5"); a(f"s_add_u32 s68, s68, s{S_SP}")
        a(f"s_lshl_b32 s68, s68, 4"); a(f"s_add_u32 s68, s68, {WS_ST}")
        a(f"s_lshr_b32 s74, s{S_SP}, 3"); a(f"s_bfe_u32 s75, s{S_SP}, 0x10002")
        a(f"s_lshl_b32 s{S_T0}, s{S_G}, 5"); a(f"s_lshl_b32 s69, s{S_WAVE}, 3")
        a(f"s_add_u32 s{S_T0}, s{S_T0}, s69"); a(f"s_lshl_b32 s{S_T0}, s{S_T0}, 12")
        a(f"s_lshl_b32 s69, s74, 10"); a(f"s_add_u32 s{S_T0}, s{S_T0}, s69")
        a(f"s_lshl_b32 s69, s75, 9"); a(f"s_add_u32 s{S_T0}, s{S_T0}, s69")
        a(f"s_add_u32 s69, s{S_T0}, {WS_OP}")
        for u in range(1, 4):
            a(f"s_add_u32 s{69+u}, s69, {8192*u}")
        a(f"s_lshl_b32 s73, s{S_G}, 2"); a(f"s_add_u32 s73, s73, s74")
        a(f"s_lshl_b32 s73, s73, 9"); a(f"s_add_u32 s73, s73, {WS_ST}")
        a(f"s_mov_b32 s{S_DR}, 0")
        self.get_tag()
        self.stamp(2)
        a("s_barrier")
        self.stamp(3)
        for c in range(4):
            a(f"ds_read_b128 {V4(48+4*c)}, v28 offset:{L_Q+64*c}")
        a("s_waitcnt lgkmcnt(0)")
        if self.series: a("s_mov_b32 s95, 0"); a("v_mov_b32 v0, 0")
        a.label("L_S_loop")
        for slot in range(3):
            self.group(slot)
        a("s_branch L_S_loop")
        a.label("L_S_done")
        a("s_waitcnt vmcnt(0)")
        self.stamp(4)
        if self.series:
            a("v_mbcnt_lo_u32_b32 v28, -1, 0"); a("v_mbcnt_hi_u32_b32 v28, -1, v28")
            a("v_lshlrev_b32 v29, 2, v28")
            a(f"s_lshl_b32 s94, s2, 2"); a(f"s_add_u32 s94, s94, s{S_WAVE}"); a("s_lshl_b32 s94, s94, 8"); a(f"s_add_u32 s94, s94, {WS_DBG+0x40000}")
            a(f"buffer_store_dword v0, v29, {S(SRD_WS)}, s94 offen")
            a("s_waitcnt vmcnt(0)")
            a("v_mov_b32 v0, v28")
        rows_reduce(a, 9, 28, "v_add_f32")
        a("v_lshlrev_b32 v28, 5, v0")
        a(f"s_lshl_b32 s{S_T0}, s{S_WAVE}, 11")
        a(f"v_add_u32 v28, s{S_T0}, v28")
        a(f"ds_write_b128 v28, {V4(40)} offset:{L_O}")
        a(f"ds_write_b128 v28, {V4(44)} offset:{L_O+16}")
        a("v_lshlrev_b32 v29, 3, v0")
        a(f"s_lshl_b32 s{S_T0}, s{S_WAVE}, 3")
        a(f"v_add_u32 v29, s{S_T0}, v29")
        a("s_mov_b64 exec, 0x1111")
        a(f"ds_write_b64 v29, v[8:9] offset:{L_ST}")
        a("s_mov_b64 exec, -1")
        a("s_waitcnt lgkmcnt(0)")
        a("s_barrier")
        self.stamp(5)
        a(f"s_lshl_b32 s{S_T0}, s{S_WAVE}, 5")
        a(f"v_mov_b32 v28, s{S_T0}")
        a(f"ds_read_b128 v[64:67], v28 offset:{L_ST}")
        a(f"ds_read_b128 v[68:71], v28 offset:{L_ST+16}")
        a(f"ds_read_b32 v90, v10 offset:{L_SAME}")
        a(f"s_lshl_b32 s{S_T0}, s{S_WAVE}, 9")
        a("v_lshlrev_b32 v29, 3, v0")
        a(f"v_add_u32 v29, s{S_T0}, v29")
        for k in range(4):
            a(f"ds_read_b64 {V2(72+2*k)}, v29 offset:{L_O+2048*k}")
        a(f"v_mov_b32 v85, s{S_TAG}"); a(f"v_mov_b32 v87, s{S_TAG}")
        a(f"v_mov_b32 v81, s{S_TAG}"); a(f"v_mov_b32 v83, s{S_TAG}")
        a("v_lshlrev_b32 v28, 4, v0")
        a("s_waitcnt lgkmcnt(4)")
        a(f"v_readfirstlane_b32 s{S_T0}, v90")
        a("v_max3_f32 v80, v64, v66, v68")
        a("v_max_f32 v80, v80, v70")
        for k in range(4):
            a(f"v_sub_f32 v{64+2*k}, v{64+2*k}, v80")
        for k in range(4):
            a(f"v_exp_f32 v{64+2*k}, v{64+2*k}")
        a("v_mul_f32 v82, v64, v65")
        a("v_fma_f32 v82, v66, v67, v82")
        a("v_fma_f32 v82, v68, v69, v82")
        a("v_fma_f32 v82, v70, v71, v82")
        a("s_waitcnt lgkmcnt(0)")
        a("v_mul_f32 v84, v64, v72"); a("v_mul_f32 v86, v64, v73")
        for k in range(1, 4):
            a(f"v_fma_f32 v84, v{64+2*k}, v{72+2*k}, v84")
            a(f"v_fma_f32 v86, v{64+2*k}, v{73+2*k}, v86")
        paths = [("sc1",)] if self.nofast else [("",), ("sc1",)]
        if not self.nofast:
            a(f"s_cmp_eq_u32 s{S_T0}, 0")
            a("s_cbranch_scc1 L_S_pubslow")
        for pi_, (fl,) in enumerate(paths):
            if pi_ == 1: a.label("L_S_pubslow")
            a(f"buffer_store_dwordx4 v[84:87], v28, {S(SRD_WS)}, s67 offen {fl}")
            a("s_mov_b64 exec, 1")
            a(f"buffer_store_dwordx4 v[80:83], v10, {S(SRD_WS)}, s68 offen {fl}")
            a("s_mov_b64 exec, -1")
            if pi_ == 0 and not self.nofast: a("s_branch L_S_pubdone")
        a.label("L_S_pubdone")
        self.stamp(6)
        a("v_lshrrev_b32 v28, 5, v0"); a("v_lshlrev_b32 v28, 12, v28")
        a("v_and_b32 v29, 31, v0"); a("v_lshlrev_b32 v29, 4, v29"); a("v_add_u32 v28, v28, v29")
        a.label("L_S_poll")
        for u in range(4):
            a(f"buffer_load_dwordx4 {V4(64+4*u)}, v28, {S(SRD_WS)}, s{69+u} offen sc1")
        a(f"buffer_load_dwordx4 v[80:83], v29, {S(SRD_WS)}, s73 offen sc1")
        a("s_waitcnt vmcnt(0)")
        a(f"v_xor_b32 v30, s{S_TAG}, v65")
        for r in [67, 69, 71, 73, 75, 77, 79, 81, 83]:
            a(f"v_xor_b32 v31, s{S_TAG}, v{r}")
            a("v_or_b32 v30, v30, v31")
        a("v_cmp_ne_u32 vcc, 0, v30")
        a("s_cbranch_vccz L_S_got")
        self.spin_guard("L_S_poll", "L_S_got")
        a.label("L_S_got")
        self.stamp(7)
        a("v_mov_b32 v30, v80")
        allreduce64(a, 30, 31, "v_max_f32")
        a("v_sub_f32 v80, v80, v30")
        a("v_exp_f32 v80, v80")
        a("v_mul_f32 v82, v80, v82")
        allreduce64(a, 82, 31, "v_add_f32")
        a("v_rcp_f32 v82, v82")
        a("v_add_f32 v80, v80, v80")
        a("v_mul_f32 v80, v80, v82")
        a("v_lshrrev_b32 v30, 5, v0")
        a(f"s_lshl_b32 s{S_T0}, s{S_WAVE}, 3")
        a(f"v_add_u32 v30, s{S_T0}, v30")
        a("v_lshlrev_b32 v30, 2, v30")
        for u in range(4):
            if u: a("v_add_u32 v30, 8, v30")
            a(f"ds_bpermute_b32 v{84+u}, v30, v80")
        a("s_waitcnt lgkmcnt(0)")
        a("v_mul_f32 v88, v84, v64"); a("v_mul_f32 v89, v84, v66")
        for u in range(1, 4):
            a(f"v_fma_f32 v88, v{84+u}, v{64+4*u}, v88")
            a(f"v_fma_f32 v89, v{84+u}, v{66+4*u}, v89")
        a("v_mov_b32 v90, v88"); a("v_mov_b32 v91, v89")
        a("v_permlane32_swap_b32 v88, v90"); a("v_permlane32_swap_b32 v89, v91")
        a("v_add_f32 v88, v88, v90"); a("v_add_f32 v89, v89, v91")
        a("v_and_b32 v30, 31, v0"); a("v_lshlrev_b32 v30, 3, v30")
        a(f"s_lshl_b32 s{S_T0}, s{S_WAVE}, 8")
        a(f"v_add_u32 v30, s{S_T0}, v30")
        a(f"ds_write_b64 v30, v[88:89] offset:{L_G}")
        a("s_waitcnt lgkmcnt(0)")
        if self.spin and self.spin.startswith("S"):
            k = int(self.spin[1:])
            a(f"s_lshl_b32 s{S_T0}, s{S_WAVE}, 2"); a(f"s_add_u32 s{S_T0}, s{S_T0}, {L_RS+16}")
            a(f"v_mov_b32 v30, s{S_T0}"); a(f"v_mov_b32 v31, s{S_TS+2*k}")
            a("ds_write_b32 v30, v31"); a("s_waitcnt lgkmcnt(0)")
        a("s_barrier")
        self.stamp(8)
        if self.dbg:
            a(f"s_getreg_b32 s{S_TS+18}, hwreg(HW_REG_XCC_ID)"); a(f"s_mov_b32 s{S_TS+19}, 0")
            self.dump_stamps(10, 0)
        self.hdump([(3, 2, "max"), (4, 3, "max"), (4, 4, "min"), (5, 5, "max"), (7, 6, "max"), (2, 15, "max")])
        a("s_branch L_end")

    def gemv_loads(self, srd_, reg, step):
        a = self.a
        a(f"s_mov_b32 s{S_OFF}, 0")
        for i in range(16):
            a(f"buffer_load_dwordx4 {V4(reg+4*i)}, v1, {S(srd_)}, s{S_OFF} offen {self.wflag}")
            if i < 15: a(f"s_add_u32 s{S_OFF}, s{S_OFF}, {step}")

    def gemv_compute(self, reg, tb, acc, wait_first, outA, outB, rors):
        a = self.a
        for k in range(8): a(f"v_mov_b32 v{acc+k}, 0")
        for i in range(16):
            if wait_first is not None:
                a(f"s_waitcnt vmcnt({wait_first + 15 - i})")
            for k in range(4):
                a(f"v_dot2c_f32_bf16 v{acc+2*k}, v{reg+4*i+k}, v{tb+2*i}")
                a(f"v_dot2c_f32_bf16 v{acc+2*k+1}, v{reg+4*i+k}, v{tb+2*i+1}")
        for k in range(4):
            a(f"v_permlane32_swap_b32 v{acc+k}, v{acc+4+k}")
        for k in range(4):
            a(f"v_add_f32 v{acc+k}, v{acc+k}, v{acc+4+k}")
        a(f"v_permlane16_swap_b32 v{acc}, v{acc+2}")
        a(f"v_permlane16_swap_b32 v{acc+1}, v{acc+3}")
        a(f"v_add_f32 v{outA}, v{acc}, v{acc+2}")
        a(f"v_add_f32 v{outB}, v{acc+1}, v{acc+3}")
        for rr in rors:
            a(f"v_add_f32_dpp v{outA}, v{outA}, v{outA} row_ror:{rr} row_mask:0xf bank_mask:0xf")
            a(f"v_add_f32_dpp v{outB}, v{outB}, v{outB} row_ror:{rr} row_mask:0xf bank_mask:0xf")

    def read_T(self, tb, shift, stride):
        a = self.a
        for i in range(16):
            a(f"ds_read_b64 {V2(tb+2*i)}, v2 offset:{L_T+stride*i}")

    def qwave(self):
        a = self.a
        a.label("L_Q")
        a(f"s_setprio {self.qprio}")
        srd(a, SRD_A, S_X, size=1024)
        srd(a, SRD_B, S_WR, size=1024)
        a(f"s_lshl_b32 s{S_T0}, s{S_G}, 10"); a(f"s_lshl_b32 s{S_T0+1}, s{S_SP}, 5")
        a(f"s_add_u32 s{S_T0}, s{S_T0}, s{S_T0+1}")
        a(f"s_add_u32 s{SRD_C}, s{S_WQ}, s{S_T0}"); a(f"s_addc_u32 s{SRD_C+1}, s{S_WQ+1}, 0")
        a(f"s_sub_u32 s{SRD_C+2}, {512*8192}, s{S_T0}"); a(f"s_mov_b32 s{SRD_C+3}, 0x00020000")
        a("v_lshlrev_b32 v3, 4, v0")
        a(f"buffer_load_dwordx4 v[4:7], v3, {S(SRD_A)}, 0 offen")
        a(f"buffer_load_dwordx4 v[8:11], v3, {S(SRD_B)}, 0 offen")
        a("v_lshrrev_b32 v1, 1, v0"); a("v_lshlrev_b32 v1, 13, v1")
        a("v_and_b32 v2, 1, v0"); a("v_lshlrev_b32 v2, 4, v2"); a("v_add_u32 v1, v1, v2")
        self.gemv_loads(SRD_C, 64, 32*8192)
        a(f"v_mov_b32 v12, {L_CNT}"); a("v_mov_b32 v13, 12")
        a("ds_write_b32 v12, v13")
        a("s_waitcnt lgkmcnt(0)")
        a("s_barrier")
        if self.nob: a("s_barrier")
        a("s_waitcnt vmcnt(17)")
        for k in range(4):
            a(f"v_lshlrev_b32 v{16+2*k}, 16, v{4+k}")
            a(f"v_and_b32 v{17+2*k}, s{S_HI}, v{4+k}")
        a("v_pk_add_f32 v[24:25], v[16:17], v[18:19]")
        a("v_pk_add_f32 v[26:27], v[20:21], v[22:23]")
        a("v_pk_add_f32 v[24:25], v[24:25], v[26:27]")
        a("v_add_f32 v24, v24, v25")
        allreduce64(a, 24, 25, "v_add_f32")
        a("v_mul_f32 v24, 0x3b000000, v24")
        for k in range(8): a(f"v_sub_f32 v{28+k}, v{16+k}, v24")
        a("v_mul_f32 v26, v28, v28")
        for k in range(1, 8): a(f"v_fma_f32 v26, v{28+k}, v{28+k}, v26")
        allreduce64(a, 26, 25, "v_add_f32")
        a("v_mul_f32 v26, 0x3b000000, v26")
        rnd(a, 24); rnd(a, 26)
        a("v_add_f32 v26, 0x3727c5ac, v26"); rnd(a, 26)
        a("v_sqrt_f32 v26, v26"); rnd(a, 26)
        a("v_rcp_f32 v26, v26")
        for k in range(8): a(f"v_sub_f32 v{16+k}, v{16+k}, v24")
        for k in range(4): a(f"v_cvt_pk_bf16_f32 v{28+k}, v{16+2*k}, v{17+2*k}")
        for k in range(4):
            a(f"v_lshlrev_b32 v{16+2*k}, 16, v{28+k}")
            a(f"v_and_b32 v{17+2*k}, s{S_HI}, v{28+k}")
        for k in range(8): a(f"v_mul_f32 v{16+k}, v{16+k}, v26")
        for k in range(4): a(f"v_cvt_pk_bf16_f32 v{12+k}, v{16+2*k}, v{17+2*k}")
        a("v_lshlrev_b32 v2, 6, v0")
        for k in range(4):
            a(f"v_and_b32 v28, 0xffff, v{12+k}")
            a(f"v_lshlrev_b32 v29, 16, v{12+k}")
            a(f"v_lshrrev_b32 v30, 16, v{12+k}")
            a(f"v_and_b32 v31, s{S_HI}, v{12+k}")
            a(f"ds_write_b128 v2, v[28:31] offset:{L_T+16*k}")
            if k < 3:
                a("s_nop 1")
        a("s_waitcnt lgkmcnt(0)")
        a("v_lshrrev_b32 v2, 1, v0"); a("v_lshlrev_b32 v2, 3, v2")
        self.read_T(128, 1, 256)
        a("s_waitcnt lgkmcnt(0)")
        self.stamp(1)
        self.gemv_compute(64, 128, 16, 0, 24, 25, (2, 4, 8))
        self.get_tag()
        a("v_cvt_pk_bf16_f32 v26, v24, v25")
        a(f"v_mov_b32 v27, s{S_TAG}")
        a("v_and_b32 v2, 1, v0"); a("v_lshlrev_b32 v2, 5, v2")
        a("v_lshrrev_b32 v3, 4, v0"); a("v_lshlrev_b32 v3, 3, v3"); a("v_add_u32 v2, v2, v3")
        a(f"s_lshl_b32 s{S_T0}, s{S_G}, 11"); a(f"s_add_u32 s{S_T0}, s{S_T0}, {WS_QG}")
        a(f"s_lshl_b32 s{S_T0+1}, s{S_SP}, 6"); a(f"s_add_u32 s{S_T0+1}, s{S_T0+1}, s{S_T0}")
        a("s_mov_b32 exec_lo, 0x00030003"); a("s_mov_b32 exec_hi, 0x00030003")
        a(f"buffer_store_dwordx2 v[26:27], v2, {S(SRD_WS)}, s{S_T0+1} offen sc1")
        a("s_mov_b64 exec, -1")
        self.stamp(2)
        a("v_mov_b32 v28, 0")
        for k in range(4): a(f"v_dot2c_f32_bf16 v28, v{12+k}, v{8+k}")
        allreduce64(a, 28, 29, "v_add_f32")
        rnd(a, 28)
        a(f"v_mul_f32 v28, s{S_LOG2E}, v28")
        a("v_sub_f32 v28, 0, v28")
        a("v_exp_f32 v28, v28")
        a("v_add_f32 v28, 1.0, v28")
        a("v_rcp_f32 v28, v28")
        rnd(a, 28)
        a(f"v_mov_b32 v29, {L_RS}")
        a("ds_write_b32 v29, v28")
        a("v_lshlrev_b32 v2, 4, v0")
        a("v_lshlrev_b32 v3, 3, v0")
        first = True
        a(f"buffer_load_dwordx4 v[32:35], v2, {S(SRD_WS)}, s{S_T0} offen sc1")
        a(f"buffer_load_dwordx4 v[36:39], v2, {S(SRD_WS)}, s{S_T0} offen offset:1024 sc1")
        if self.early < 3: a("s_barrier")
        a("s_branch L_Q_chk")
        a.label("L_Q_poll")
        a(f"buffer_load_dwordx4 v[32:35], v2, {S(SRD_WS)}, s{S_T0} offen sc1")
        a(f"buffer_load_dwordx4 v[36:39], v2, {S(SRD_WS)}, s{S_T0} offen offset:1024 sc1")
        a.label("L_Q_chk")
        a("s_waitcnt vmcnt(0)")
        a(f"v_xor_b32 v30, s{S_TAG}, v33")
        for r in (35, 37, 39):
            a(f"v_xor_b32 v31, s{S_TAG}, v{r}"); a("v_or_b32 v30, v30, v31")
        a("v_cmp_ne_u32 vcc, 0, v30")
        a("s_cbranch_vccz L_Q_got")
        self.spin_guard("L_Q_poll", "L_Q_got")
        a.label("L_Q_got")
        a(f"v_add_u32 v3, {L_Q}, v3")
        a("ds_write2_b32 v3, v32, v34 offset0:0 offset1:1")
        a("ds_write2_b32 v3, v36, v38 offset0:128 offset1:129")
        a("s_waitcnt lgkmcnt(0)")
        self.stamp(3)
        if not self.nob: a("s_barrier")
        a(f"s_cmp_ge_u32 s{S_SP}, 28")
        a("s_cbranch_scc1 L_Q_end")
        U, MM, CBK, KC = S_T0+4, S_T0+5, S_T0+6, S_T0+7
        a(f"s_mul_i32 s{U}, s{S_G}, 28"); a(f"s_add_u32 s{U}, s{U}, s{S_SP}")
        a(f"s_cmp_ge_u32 s{U}, 112"); a(f"s_cselect_b32 s{MM}, 1, 0")
        a(f"s_mul_i32 s{S_T0}, s{MM}, 112"); a(f"s_sub_u32 s{U}, s{U}, s{S_T0}")
        a(f"s_lshr_b32 s{CBK}, s{U}, 2"); a(f"s_and_b32 s{KC}, s{U}, 3")
        a(f"s_mul_i32 s{S_T0}, s{KC}, {128*3584}"); a(f"s_lshl_b32 s{S_T0+1}, s{CBK}, 7")
        a(f"s_add_u32 s{S_T0}, s{S_T0}, s{S_T0+1}")
        a(f"s_cmp_eq_u32 s{MM}, 0"); a("s_cbranch_scc0 L_Q_up")
        a(f"s_add_u32 s{SRD_C}, s{S_WG}, s{S_T0}"); a(f"s_addc_u32 s{SRD_C+1}, s{S_WG+1}, 0")
        a("s_branch L_Q_srd")
        a.label("L_Q_up")
        a(f"s_add_u32 s{SRD_C}, s{S_WU}, s{S_T0}"); a(f"s_addc_u32 s{SRD_C+1}, s{S_WU+1}, 0")
        a.label("L_Q_srd")
        a(f"s_sub_u32 s{SRD_C+2}, {512*3584}, s{S_T0}"); a(f"s_mov_b32 s{SRD_C+3}, 0x00020000")
        a("v_lshrrev_b32 v1, 3, v0"); a(f"s_mov_b32 s{S_T0+2}, 3584"); a(f"v_mul_lo_u32 v1, v1, s{S_T0+2}")
        a("v_and_b32 v2, 7, v0"); a("v_lshlrev_b32 v2, 4, v2"); a("v_add_u32 v1, v1, v2")
        self.gemv_loads(SRD_C, 64, 8*3584)
        a("v_lshrrev_b32 v2, 3, v0"); a("v_lshlrev_b32 v2, 3, v2")
        a(f"s_lshl_b32 s{S_T0}, s{KC}, 10"); a(f"v_add_u32 v2, s{S_T0}, v2")
        self.read_T(128, 3, 64)
        a("s_waitcnt lgkmcnt(0)")
        self.gemv_compute(64, 128, 16, 0, 24, 26, (8,))
        a(f"v_mov_b32 v25, s{S_TAG}"); a(f"v_mov_b32 v27, s{S_TAG}")
        a(f"s_lshl_b32 s{S_T0}, s{MM}, 2"); a(f"s_add_u32 s{S_T0}, s{S_T0}, s{KC}")
        a(f"s_mul_i32 s{S_T0}, s{S_T0}, {1792*8}"); a(f"s_lshl_b32 s{S_T0+1}, s{CBK}, 9")
        a(f"s_add_u32 s{S_T0}, s{S_T0}, s{S_T0+1}"); a(f"s_add_u32 s{S_T0}, s{S_T0}, {WS_GU}")
        a("v_and_b32 v2, 7, v0"); a("v_lshlrev_b32 v2, 6, v2")
        a("v_lshrrev_b32 v3, 4, v0"); a("v_lshlrev_b32 v3, 4, v3"); a("v_add_u32 v2, v2, v3")
        a("s_mov_b32 exec_lo, 0x00ff00ff"); a("s_mov_b32 exec_hi, 0x00ff00ff")
        a(f"buffer_store_dwordx4 v[24:27], v2, {S(SRD_WS)}, s{S_T0} offen sc1")
        a("s_mov_b64 exec, -1")
        a.label("L_Q_end")
        self.stamp(4)
        if self.spin and self.spin.startswith("Q"):
            k = int(self.spin[1:])
            a("s_waitcnt lgkmcnt(0)")
            a(f"v_mov_b32 v30, {L_RS+16}")
            for r in range(4): a(f"v_mov_b32 v{32+r}, s{S_TS+2*k}")
            a("ds_write_b128 v30, v[32:35]"); a("s_waitcnt lgkmcnt(0)")
        self.dump_stamps(5, 1)
        self.hdump([(2, 7, "max"), (3, 8, "max"), (1, 14, "max"), (4, 9, "max")], nsleep=0)
        a("s_waitcnt vmcnt(0)")
        a("s_branch L_end")

    def masked_gemv(self, pv, wb0, n, PB=32, D0=56, D1=60):
        a = self.a
        for i0 in range(0, n, 4):
            m = min(4, n - i0)
            for r in range(m):
                a(f"v_and_b32 v{PB+4*r+2}, v{pv+i0+r}, v5")
                a(f"v_and_b32 v{PB+4*r+3}, v{pv+i0+r}, v7")
            for r in range(m):
                wb = wb0 + 4*(i0+r)
                a(f"v_mfma_f32_16x16x32_bf16 {V4(D0)}, {V4(PB+4*r+2)}, {V4(wb)}, {V4(D0)}")
                a(f"v_mfma_f32_16x16x32_bf16 {V4(D1)}, {V4(PB+4*r)}, {V4(wb)}, {V4(D1)}")

    def wwave(self):
        a = self.a
        a.label("L_W")
        RB, CB, PART = S_T0+10, S_T0+11, S_T0+12
        a(f"s_lshr_b32 s{RB}, s{S_SP}, 2"); a(f"s_and_b32 s{CB}, s{S_SP}, 3")
        a(f"s_lshl_b32 s{PART}, s{S_G}, 3"); a(f"s_add_u32 s{PART}, s{PART}, s{RB}")
        a(f"s_lshl_b32 s{S_T0}, s{PART}, 16")
        a(f"s_lshl_b32 s{S_T0+1}, s{CB}, 8"); a(f"s_add_u32 s{S_T0}, s{S_T0}, s{S_T0+1}")
        srd(a, SRD_A, S_WO, S_T0, size=65536)
        a(f"s_sub_u32 s{SRD_A+2}, 65536, s{S_T0+1}")
        a(f"s_mul_i32 s{S_T0}, s{PART}, {28*1024}"); a(f"s_add_u32 s{S_T0}, s{S_T0}, s{S_T0+1}")
        srd(a, SRD_D, S_WD, S_T0, size=28*1024)
        a(f"s_sub_u32 s{SRD_D+2}, {28*1024}, s{S_T0+1}")
        srd(a, SRD_B, S_X, size=1024)
        srd(a, SRD_C, S_OUT, size=1024)
        a("v_lshrrev_b32 v1, 4, v0"); a("v_lshlrev_b32 v1, 10, v1")
        a("v_and_b32 v2, 15, v0"); a("v_lshlrev_b32 v2, 4, v2"); a("v_add_u32 v1, v1, v2")
        self.get_tag()
        a(f"s_getreg_b32 s{S_T0+9}, hwreg(HW_REG_XCC_ID)")
        a(f"s_lshl_b32 s{S_T0+8}, s{S_G}, 8"); a(f"s_add_u32 s{S_T0+8}, s{S_T0+8}, {WS_XT}")
        a(f"s_lshl_b32 s{S_T0}, s{S_SP}, 3")
        a(f"v_mov_b32 v16, s{S_T0+9}"); a(f"v_mov_b32 v17, s{S_TAG}"); a(f"v_mov_b32 v18, s{S_T0}")
        a("s_mov_b64 exec, 1")
        a(f"buffer_store_dwordx2 v[16:17], v18, {S(SRD_WS)}, s{S_T0+8} offen sc1")
        a("s_mov_b64 exec, -1")
        a("s_barrier")
        if self.early < 3: a("s_barrier")
        a("s_barrier")
        a(f"s_setprio {self.auxprio}")
        WO = 64; WD = 128
        a(f"s_mov_b32 s{S_OFF}, 0")
        for i in range(16):
            a(f"buffer_load_dwordx4 {V4(WO+4*i)}, v1, {S(SRD_A)}, s{S_OFF} offen {self.wflag}")
            if i < 15: a(f"s_add_u32 s{S_OFF}, s{S_OFF}, 4096")
        a(f"s_mov_b32 s{S_OFF}, 0")
        for i in range(7):
            a(f"buffer_load_dwordx4 {V4(WD+4*i)}, v1, {S(SRD_D)}, s{S_OFF} offen {self.wflag}")
            if i < 6: a(f"s_add_u32 s{S_OFF}, s{S_OFF}, 4096")
        a(f"s_lshl_b32 s{S_T0+2}, s{S_G}, 7"); a(f"s_lshl_b32 s{S_T0+3}, s{S_SP}, 2")
        a(f"s_add_u32 s{S_T0+2}, s{S_T0+2}, s{S_T0+3}")
        a(f"v_mov_b32 v2, s{S_T0+2}")
        a(f"buffer_load_dword v8, v2, {S(SRD_B)}, 0 offen")
        a(f"s_lshl_b32 s{S_T0+3}, s{S_T0+2}, 2")
        a(f"v_mov_b32 v3, s{S_T0+3}")
        a(f"ds_read_b128 v[12:15], v3 offset:{L_T}")
        a(f"v_mov_b32 v3, {L_RS}")
        a("ds_read_b32 v9, v3")
        self.masksXY(5, 7, 28)
        for k in range(5):
            a(f"v_mov_b32 v{32+4*k}, 0"); a(f"v_mov_b32 v{33+4*k}, 0")
        for k in range(8): a(f"v_mov_b32 v{56+k}, 0")
        a(f"s_mov_b32 s{S_M1}, 0xffff0000"); a(f"s_mov_b32 s{S_M1+1}, 0xffff0000")
        a(f"s_mov_b32 s{S_M2}, 0"); a(f"s_mov_b32 s{S_M2+1}, -1")
        a(f"s_mul_i32 s{S_T0+4}, s{PART}, {28*8}"); a(f"s_add_u32 s{S_T0+4}, s{S_T0+4}, {WS_GU}")
        a(f"s_add_u32 s{S_T0+5}, s{S_T0+4}, {4*1792*8}")
        a("v_lshrrev_b32 v10, 4, v0"); a(f"s_mov_b32 s{S_T0}, {1792*8}"); a(f"v_mul_lo_u32 v10, v10, s{S_T0}")
        a("v_and_b32 v11, 15, v0"); a("v_min_u32 v11, 13, v11"); a("v_lshlrev_b32 v11, 4, v11")
        a("v_add_u32 v10, v10, v11")
        a("v_and_b32 v11, 31, v0"); a("v_lshlrev_b32 v11, 3, v11")
        a.label("L_W_ypoll")
        a(f"buffer_load_dwordx4 v[16:19], v10, {S(SRD_WS)}, s{S_T0+4} offen sc1")
        a(f"buffer_load_dwordx4 v[20:23], v10, {S(SRD_WS)}, s{S_T0+5} offen sc1")
        a(f"buffer_load_dwordx2 v[24:25], v11, {S(SRD_WS)}, s{S_T0+8} offen sc1")
        a("s_waitcnt vmcnt(0)")
        a(f"v_xor_b32 v30, s{S_TAG}, v17")
        for r in (19, 21, 23, 25):
            a(f"v_xor_b32 v31, s{S_TAG}, v{r}"); a("v_or_b32 v30, v30, v31")
        a("v_cmp_ne_u32 vcc, 0, v30")
        a("s_cbranch_vccz L_W_ygot")
        self.spin_guard("L_W_ypoll", "L_W_ygot", sleep=32)
        a.label("L_W_ygot")
        a(f"v_cmp_ne_u32 vcc, s{S_T0+9}, v24")
        a("s_cmp_eq_u64 vcc, 0")
        a(f"s_cselect_b32 s{S_T0}, {0 if self.forceslow else 1}, 0")
        a(f"v_mov_b32 v26, s{S_T0}"); a(f"v_mov_b32 v27, {L_SAME}")
        a("ds_write_b32 v27, v26")
        for v in (16, 18, 20, 22): rows_reduce(a, v, 30, "v_add_f32")
        for v in (16, 18, 20, 22): rnd(a, v)
        for v in (16, 18):
            a(f"v_mul_f32 v28, s{S_LOG2E}, v{v}")
            a("v_sub_f32 v28, 0, v28")
            a("v_exp_f32 v28, v28")
            a("v_add_f32 v28, 1.0, v28")
            a("v_rcp_f32 v28, v28")
            a(f"v_mul_f32 v{v}, v{v}, v28")
            rnd(a, v)
        a("v_mul_f32 v16, v16, v20"); a("v_mul_f32 v18, v18, v22")
        a("v_cvt_pk_bf16_f32 v16, v16, v16"); a("v_cvt_pk_bf16_f32 v18, v18, v18")
        a("v_and_b32 v20, 1, v0"); a("v_lshlrev_b32 v20, 7, v20")
        a("v_bfe_u32 v21, v0, 1, 3"); a("v_lshlrev_b32 v21, 2, v21"); a("v_add_u32 v20, v20, v21")
        a("s_mov_b64 exec, 0x3fff")
        a(f"ds_write_b32 v20, v16 offset:{L_HP}")
        a(f"ds_write_b32 v20, v18 offset:{L_HP+64}")
        a("s_mov_b64 exec, -1")
        a("v_lshrrev_b32 v24, 4, v0"); a("v_lshlrev_b32 v24, 6, v24")
        a("s_waitcnt lgkmcnt(0)")
        HV = 160
        for k in range(2):
            a(f"ds_read_b128 {V4(HV+4*k)}, v24 offset:{L_HP+16*k}")
        a("s_waitcnt lgkmcnt(0)")
        self.masked_gemv(HV, WD, 7)
        for k in range(8): a(f"v_mul_f32 v{56+k}, v{56+k}, v9")
        a("v_lshlrev_b32 v12, 16, v8"); a(f"v_and_b32 v14, s{S_HI}, v8")
        a("v_add_f32 v12, v12, v13"); a("v_add_f32 v14, v14, v15")
        a(f"s_lshl_b32 s{S_T0+6}, s{PART}, 12")
        a(f"s_lshl_b32 s{S_T0+7}, s{CB}, 10"); a(f"s_add_u32 s{S_T0+6}, s{S_T0+6}, s{S_T0+7}")
        a(f"s_add_u32 s{S_T0+6}, s{S_T0+6}, {WS_AP}")
        a("v_and_b32 v20, 15, v0"); a("v_lshlrev_b32 v20, 6, v20")
        a("v_lshrrev_b32 v21, 4, v0"); a("v_lshlrev_b32 v21, 4, v21"); a("v_add_u32 v20, v20, v21")
        a(f"s_lshl_b32 s{S_T0+7}, s{S_T0+2}, 2"); a(f"s_add_u32 s{S_T0+7}, s{S_T0+7}, {WS_AP}")
        a("v_lshlrev_b32 v10, 12, v0")
        a("v_lshlrev_b32 v22, 2, v0")
        a("v_and_b32 v23, 3, v0"); a("v_lshlrev_b32 v23, 6, v23")
        a("v_lshrrev_b32 v25, 2, v0"); a("v_lshlrev_b32 v25, 2, v25"); a("v_add_u32 v23, v23, v25")
        a(f"v_mov_b32 v29, s{S_TAG}"); a(f"v_mov_b32 v31, s{S_TAG}")
        a(f"s_mov_b32 s{S_SPIN}, {SPIN_LIMIT}")
        a("s_waitcnt lgkmcnt(0)")
        self.stamp(1)
        a("s_barrier")
        a("s_barrier")
        self.stamp(2)
        for k in range(4):
            a(f"ds_read_b32 v{16+k}, v22 offset:{L_G+256*k}")
        a("s_waitcnt lgkmcnt(0)")
        a("v_add_f32 v16, v16, v17"); a("v_add_f32 v18, v18, v19"); a("v_add_f32 v26, v16, v18")
        a("v_cvt_pk_bf16_f32 v26, v26, v26")
        a(f"ds_write_b32 v23, v26 offset:{L_PP}")
        a("s_waitcnt lgkmcnt(0)")
        PPV = 168
        for k in range(4):
            a(f"ds_read_b128 {V4(PPV+4*k)}, v24 offset:{L_PP+16*k}")
        a("s_waitcnt lgkmcnt(0)")
        D0 = 56; D1 = 60
        self.masked_gemv(PPV, 64, 16)
        m1 = f"s[{S_M1}:{S_M1+1}]"; m2 = f"s[{S_M2}:{S_M2+1}]"
        a(f"v_cndmask_b32 v26, v{D0}, v{D0+2}, {m1}")
        a(f"v_cndmask_b32 v27, v{D1}, v{D1+2}, {m1}")
        a(f"v_cndmask_b32 v28, v26, v27, {m2}")
        a(f"v_cndmask_b32 v26, v{D0+1}, v{D0+3}, {m1}")
        a(f"v_cndmask_b32 v27, v{D1+1}, v{D1+3}, {m1}")
        a(f"v_cndmask_b32 v30, v26, v27, {m2}")
        a(f"buffer_store_dwordx4 v[28:31], v20, {S(SRD_WS)}, s{S_T0+6} offen sc1")
        self.stamp(3)
        a.label("L_W_apoll")
        a(f"buffer_load_dwordx4 v[24:27], v10, {S(SRD_WS)}, s{S_T0+7} offen sc1")
        a("s_waitcnt vmcnt(0)")
        a(f"v_xor_b32 v16, s{S_TAG}, v25")
        a(f"v_xor_b32 v17, s{S_TAG}, v27"); a("v_or_b32 v16, v16, v17")
        a("v_cmp_ne_u32 vcc, 0, v16")
        a("s_cbranch_vccz L_W_agot")
        self.spin_guard("L_W_apoll", "L_W_agot")
        a.label("L_W_agot")
        self.stamp(4)
        allreduce64(a, 24, 16, "v_add_f32"); allreduce64(a, 26, 17, "v_add_f32")
        a("v_add_f32 v24, v24, v12"); a("v_add_f32 v26, v26, v14")
        if self.perturb:
            import struct
            bits = struct.unpack("<I", struct.pack("<f", float(self.perturb)))[0]
            a(f"v_add_f32 v24, {bits:#x}, v24"); a(f"v_add_f32 v26, {bits:#x}, v26")
        a("v_cvt_pk_bf16_f32 v24, v24, v26")
        a("s_mov_b64 exec, 1")
        a(f"buffer_store_dword v24, v2, {S(SRD_C)}, 0 offen")
        a("s_cmp_lg_u32 s2, 0")
        a("s_cbranch_scc1 L_W_noep")
        a(f"v_mov_b32 v25, s{S_TAG}"); a("v_mov_b32 v26, 0")
        a(f"buffer_store_dword v25, v26, {S(SRD_WS)}, 0 offen sc1")
        a.label("L_W_noep")
        a("s_mov_b64 exec, -1")
        self.stamp(5)
        if self.spin:
            if self.spin[0] in "SQ":
                a(f"v_mov_b32 v3, {L_RS+16}"); a("ds_read_b128 v[4:7], v3"); a("s_waitcnt lgkmcnt(0)")
                a("v_max_u32 v4, v4, v5"); a("v_max_u32 v6, v6, v7"); a("v_max_u32 v4, v4, v6")
                a(f"v_readfirstlane_b32 s{S_T0}, v4")
            else:
                k = int(self.spin[1:])
                a("s_waitcnt lgkmcnt(0)")
                a(f"s_mov_b32 s{S_T0}, s{S_TS+2*k}")
            a(f"s_add_u32 s{S_T0}, s{S_T0}, 10000")
            a.label("L_spin")
            a(f"s_memrealtime s[{S_T0+2}:{S_T0+3}]"); a("s_waitcnt lgkmcnt(0)")
            a(f"s_sub_u32 s{S_T0+4}, s{S_T0+2}, s{S_T0}")
            a(f"s_cmp_lt_i32 s{S_T0+4}, 0")
            a("s_cbranch_scc1 L_spin")
        self.dump_stamps(6, 3)
        self.hdump([(0, 0, "min"), (5, 1, "max"), (1, 10, "max"), (3, 11, "max"), (4, 12, "max"), (0, 13, "max")])
        a("s_waitcnt vmcnt(0)")

    def build(self):
        self.prologue()
        self.swave()
        self.qwave()
        self.wwave()
        self.a.label("L_end")
        self.a("s_endpgm")
        body = self.a.text()
        stub = open("parallel_sum__gqa_block_cached__moe_arch_mod__decode.s.ref").read()
        head = stub[:stub.index("; @launch")]
        txt = head + f"; @launch grid=(256,1,1) block=(384,1,1) lds={LDS_BYTES}\n"
        txt += f""".amdgcn_target "amdgcn-amd-amdhsa--gfx950"
.text
.globl {KNAME}
.p2align 8
.type {KNAME},@function
{KNAME}:
{body}
.section .rodata,"a"
.p2align 6
.amdhsa_kernel {KNAME}
  .amdhsa_next_free_vgpr 256
  .amdhsa_next_free_sgpr 102
  .amdhsa_accum_offset 256
  .amdhsa_group_segment_fixed_size 0
  .amdhsa_kernarg_size 104
  .amdhsa_user_sgpr_count 2
  .amdhsa_user_sgpr_kernarg_segment_ptr 1
  .amdhsa_system_sgpr_workgroup_id_x 1
.end_amdhsa_kernel
"""
        return txt

if __name__ == "__main__":
    import argparse
    p = argparse.ArgumentParser()
    p.add_argument("--dbg", action="store_true")
    p.add_argument("--wflag", default="nt")
    p.add_argument("--hdbg", action="store_true")
    p.add_argument("--spin", default=None)
    p.add_argument("--perturb", default=None)
    p.add_argument("--forceslow", action="store_true")
    p.add_argument("--nofast", action="store_true")
    p.add_argument("--auxprio", type=int, default=3)
    p.add_argument("--qprio", type=int, default=3)
    p.add_argument("--early", type=int, default=3)
    p.add_argument("--nob", action="store_true")
    p.add_argument("--ilv", action="store_true")
    p.add_argument("--series", action="store_true")
    p.add_argument("--drain", action="store_true")
    p.add_argument("-o", default="parallel_sum__gqa_block_cached__moe_arch_mod__decode.s")
    args = p.parse_args()
    g = Gen(dbg=args.dbg, wflag=args.wflag, hdbg=args.hdbg, spin=args.spin, perturb=args.perturb,
            forceslow=args.forceslow, auxprio=args.auxprio, qprio=args.qprio, nofast=args.nofast, early=args.early, nob=args.nob, ilv=args.ilv, series=args.series, drain=args.drain)
    t = g.build()
    open(args.o, "w").write(t)
    print("wrote", args.o, len(t), "bytes")
```

```python
import sys
from asmlib import Asm

KNAME = "parallel_sum__gqa_block_cached__moe_arch_mod__decode_kernel"
WS_QG = 0x1000
WS_XT = 0x6000
WS_ST = 0x8000
WS_AP = 0x10000
WS_GU = 0x60000
WS_OP = 0x100000
WS_CNT = 0xA0000
WS_DBG = 0x200000
WS_SIZE = 0x300000
L_T = 0; L_Q = 4096; L_O = 5120; L_ST = 13312; L_G = 13568; L_PP = 14592; L_RS = 14848
L_CNT = 14852; L_SAME = 14856; L_HP = 14912; L_TAB = 15168; NTAB = 40
LDS_BYTES = 15360
SPIN_LIMIT = 40000

S_X, S_K, S_V, S_WQ, S_WO, S_WR, S_WG, S_WU, S_WD, S_OUT, S_WS = 8, 10, 12, 14, 16, 20, 22, 24, 26, 28, 32
S_G, S_SP, S_WAVE, S_TAG = 34, 35, 36, 37
SRD_WS = 40
SRD_A = 44
SRD_B = 48
SRD_C = 52
SRD_D = 4
S_OFF = 56
S_SO = 3
S_OFFS = (76, 77, 78)
S_SPIN = 57
S_HI = 58
S_LOG2E = 59
S_SCALE = 60
S_M1 = 62
S_M2 = 64
S_T0 = 66
S_TS = 80
S_DR = 74
S_CB = 38
S_TK = 79
S_RND = 75

def srd(a, d, base, off_sgpr=None, off_imm=0, size=0):
    if off_sgpr is not None:
        a(f"s_add_u32 s{d}, s{base}, s{off_sgpr}")
        a(f"s_addc_u32 s{d+1}, s{base+1}, 0")
    else:
        a(f"s_mov_b32 s{d}, s{base}")
        a(f"s_mov_b32 s{d+1}, s{base+1}")
    a(f"s_mov_b32 s{d+2}, {size:#x}")
    a(f"s_mov_b32 s{d+3}, 0x00020000")

def S(d): return f"s[{d}:{d+3}]"
def V4(r): return f"v[{r}:{r+3}]"
def V2(r): return f"v[{r}:{r+1}]"

def allreduce64(a, v, t, op):
    a(f"{op}_dpp v{v}, v{v}, v{v} quad_perm:[1,0,3,2] row_mask:0xf bank_mask:0xf")
    a(f"{op}_dpp v{v}, v{v}, v{v} quad_perm:[2,3,0,1] row_mask:0xf bank_mask:0xf")
    a(f"{op}_dpp v{v}, v{v}, v{v} row_half_mirror row_mask:0xf bank_mask:0xf")
    a(f"{op}_dpp v{v}, v{v}, v{v} row_mirror row_mask:0xf bank_mask:0xf")
    rows_reduce(a, v, t, op)

def rows_reduce(a, v, t, op):
    a(f"v_mov_b32 v{t}, v{v}")
    a(f"v_permlane16_swap_b32 v{v}, v{t}")
    a(f"{op} v{v}, v{v}, v{t}")
    a(f"v_mov_b32 v{t}, v{v}")
    a(f"v_permlane32_swap_b32 v{v}, v{t}")
    a(f"{op} v{v}, v{v}, v{t}")

def rnd(a, v):
    a(f"v_cvt_pk_bf16_f32 v{v}, v{v}, v{v}")
    a(f"v_and_b32 v{v}, s{S_HI}, v{v}")

class Gen:
    def __init__(self, dbg=False, wflag="nt", hdbg=False, spin=None, perturb=None, forceslow=False, auxprio=3, qprio=3, nofast=False, early=3, nob=False, ilv=False, series=False, drain=True, fasta0=False, ppoll=0, noa0=False, pool=False, pmap='blk', nstat=16, rot=0, atlat=False, vrot=0, grot=0, qf=0, dyn=0, dlook=2, dsleep=4):
        self.hdbg = hdbg; self.spin = spin; self.perturb = perturb
        if hdbg: dbg = False
        self.dbg = dbg; self.wflag = wflag; self.forceslow = forceslow; self.auxprio = auxprio; self.qprio = qprio
        self.nofast = nofast; self.early = early; self.nob = nob; self.ilv = ilv; self.series = series; self.drain = drain; self.fasta0 = fasta0; self.ppoll = ppoll; self.noa0 = noa0; self.pool = pool; self.pmap = pmap; self.nstat = nstat; self.rot = rot; self.atlat = atlat; self.vrot = vrot; self.grot = grot; self.qf = qf; self.dyn = dyn; self.dlook = dlook; self.dsleep = dsleep
        self.a = Asm()

    def hdump(self, items, nsleep=5):
        if not self.hdbg: return
        a = self.a
        a("s_waitcnt lgkmcnt(0) vmcnt(0)")
        a("s_setprio 0")
        for _ in range(nsleep): a("s_sleep 127")
        srd(a, SRD_C, 30, size=256)
        a("s_mov_b64 exec, 1")
        for (st, w, mode) in items:
            if mode == "min":
                a(f"s_not_b32 s{S_T0}, s{S_TS+2*st}")
                a(f"v_mov_b32 v2, s{S_T0}")
            else:
                a(f"v_mov_b32 v2, s{S_TS+2*st}")
            a(f"v_mov_b32 v3, {4*w}")
            a(f"buffer_atomic_umax v2, v3, {S(SRD_C)}, 0 offen sc1")
            a("s_waitcnt vmcnt(0)")
        a("s_mov_b64 exec, -1")

    def stamp(self, idx):
        if self.dbg or self.hdbg or self.spin:
            self.a(f"s_memrealtime s[{S_TS+2*idx}:{S_TS+2*idx+1}]")

    def dump_stamps(self, n, slot, vt=2):
        if not self.dbg: return
        a = self.a
        a("s_waitcnt lgkmcnt(0) vmcnt(0)")
        a(f"s_lshl_b32 s{S_T0}, s2, 10")
        a(f"s_lshl_b32 s{S_T0+1}, s{S_WAVE}, 7")
        a(f"s_add_u32 s{S_T0}, s{S_T0}, s{S_T0+1}")
        a(f"s_add_u32 s{S_T0}, s{S_T0}, {WS_DBG}")
        a("s_mov_b64 exec, 1")
        a(f"v_mov_b32 v{vt+2}, s{S_T0}")
        for i in range(n):
            a(f"v_mov_b32 v{vt}, s{S_TS+2*i}")
            a(f"v_mov_b32 v{vt+1}, s{S_TS+2*i+1}")
            a(f"buffer_store_dwordx2 {V2(vt)}, v{vt+2}, {S(SRD_WS)}, 0 offen offset:{8*i}")
            a("s_waitcnt vmcnt(0)")
        a("s_mov_b64 exec, -1")

    def spin_guard(self, lab_retry, lab_done, sleep=1):
        a = self.a
        a(f"s_sub_u32 s{S_SPIN}, s{S_SPIN}, 1")
        a(f"s_cmp_eq_u32 s{S_SPIN}, 0")
        a(f"s_cbranch_scc1 {lab_done}")
        if sleep: a(f"s_sleep {sleep}")
        a(f"s_branch {lab_retry}")

    def prologue(self):
        a = self.a
        a("s_cmp_ge_u32 s2, 256")
        a("s_cbranch_scc1 L_end")
        self.stamp(0)
        a("s_load_dwordx16 s[8:23], s[0:1], 0")
        a("s_load_dwordx8 s[24:31], s[0:1], 64")
        a(f"s_load_dwordx2 s[{S_WS}:{S_WS+1}], s[0:1], 96")
        a("v_lshrrev_b32 v1, 6, v0")
        a("v_and_b32 v0, 63, v0")
        a(f"s_and_b32 s{S_G}, s2, 7")
        a(f"s_lshr_b32 s{S_SP}, s2, 3")
        a(f"v_readfirstlane_b32 s{S_WAVE}, v1")
        a(f"s_mov_b32 s{S_HI}, 0xffff0000")
        a(f"s_mov_b32 s{S_LOG2E}, 0x3fb8aa3b")
        a(f"s_mov_b32 s{S_SPIN}, {SPIN_LIMIT}")
        a("s_waitcnt lgkmcnt(0)")
        a(f"s_load_dword s{S_TAG}, s[{S_WS}:{S_WS+1}], 0")
        srd(a, SRD_WS, S_WS, size=WS_SIZE)
        a(f"s_cmp_lt_u32 s{S_WAVE}, 4")
        a("s_cbranch_scc1 L_S")
        if self.qf:
            a("s_branch L_F")
        else:
            a(f"s_cmp_eq_u32 s{S_WAVE}, 4")
            a("s_cbranch_scc1 L_Q")
            a("s_branch L_W")

    def get_tag(self):
        a = self.a
        a("s_waitcnt lgkmcnt(0)")
        a(f"s_add_u32 s{S_TAG}, s{S_TAG}, 1")

    RING = 64
    def issueK(self, slot):
        a = self.a; b = self.RING + 64*slot
        for t in range(2):
            for c in range(4):
                r = b + 16*t + 4*c
                a(f"buffer_load_dwordx4 {V4(r)}, v{1+t}, {S(SRD_A)}, s{S_OFFS[slot]} offen offset:{64*c} nt")
    def issueV(self, slot):
        a = self.a; b = self.RING + 64*slot + 32
        for r8 in range(8):
            r = b + 4*r8
            a(f"buffer_load_dwordx4 {V4(r)}, v{3+(r8>>2)}, {S(SRD_B)}, s{S_OFFS[slot]} offen offset:{1024*(r8&3)} nt")

    def tk2off(self, slot):
        a = self.a
        NS = self.nstat
        if self.pmap == "blk":
            a(f"s_and_b32 s{S_T0}, s{S_TK}, 31"); a(f"s_lshl_b32 s{S_T0}, s{S_T0}, 19")
            a(f"s_lshr_b32 s{S_OFFS[slot]}, s{S_TK}, 5"); a(f"s_add_u32 s{S_OFFS[slot]}, s{S_OFFS[slot]}, {NS-4}")
            a(f"s_lshl_b32 s{S_OFFS[slot]}, s{S_OFFS[slot]}, 13")
            a(f"s_add_u32 s{S_OFFS[slot]}, s{S_OFFS[slot]}, s{S_T0}")
        elif self.pmap == "t4":
            a(f"s_and_b32 s{S_T0}, s{S_TK}, 3"); a(f"s_lshl_b32 s{S_T0}, s{S_T0}, 13")
            a(f"s_bfe_u32 s100, s{S_TK}, 0x50002"); a("s_lshl_b32 s100, s100, 19")
            a(f"s_add_u32 s{S_T0}, s{S_T0}, s100")
            a(f"s_lshr_b32 s{S_OFFS[slot]}, s{S_TK}, 7")
            a(f"s_lshl_b32 s{S_OFFS[slot]}, s{S_OFFS[slot]}, 15")
            a(f"s_add_u32 s{S_OFFS[slot]}, s{S_OFFS[slot]}, s{S_T0}")
            a(f"s_cmp_ge_u32 s{S_TK}, 2048")
            return
        elif self.pmap == "w4":
            a(f"s_and_b32 s{S_T0}, s{S_TK}, 31"); a(f"s_lshl_b32 s{S_T0}, s{S_T0}, 19")
            a(f"s_add_u32 s{S_T0}, s{S_T0}, s75")
            a(f"s_lshr_b32 s{S_OFFS[slot]}, s{S_TK}, 5")
            if self.vrot or self.grot:
                a(f"s_and_b32 s100, s{S_TK}, 31"); a(f"s_mul_i32 s100, s100, {self.vrot}")
                a(f"s_add_u32 s{S_OFFS[slot]}, s{S_OFFS[slot]}, s100")
                a(f"s_add_u32 s{S_OFFS[slot]}, s{S_OFFS[slot]}, s101")
                a(f"s_and_b32 s{S_OFFS[slot]}, s{S_OFFS[slot]}, 15")
            a(f"s_lshl_b32 s{S_OFFS[slot]}, s{S_OFFS[slot]}, 15")
            a(f"s_add_u32 s{S_OFFS[slot]}, s{S_OFFS[slot]}, s{S_T0}")
            a(f"s_cmp_ge_u32 s{S_TK}, 512")
            return
        else:
            raise NotImplementedError
        a(f"s_cmp_ge_u32 s{S_TK}, {32*(64-NS+4)}")

    def fetch_ticket(self, mode):
        a = self.a
        if mode == "pool" and self.pmap in ("w4", "t4"):
            st = a.uniq("L_st"); c2 = a.uniq("L_c2")
            a(f"s_cmp_eq_u32 s3, 0"); a(f"s_cbranch_scc1 {st}")
            a(f"s_mov_b32 s{S_TK}, 1")
            a(f"s_atomic_add s{S_TK}, s[{S_CB}:{S_CB+1}], 0 glc")
            a(f"s_branch {c2}")
            a.label(st)
            if self.rot:
                a(f"s_add_u32 s{S_T0}, s{S_TK}, {self.rot}"); a(f"s_and_b32 s{S_T0}, s{S_T0}, 31")
                a(f"s_add_u32 s{S_TK}, s{S_TK}, 32"); a(f"s_andn2_b32 s{S_TK}, s{S_TK}, 31")
                a(f"s_or_b32 s{S_TK}, s{S_TK}, s{S_T0}")
            else:
                a(f"s_add_u32 s{S_TK}, s{S_TK}, {32 if self.pmap == 'w4' else 128}")
            a.label(c2)
        elif mode == "pool":
            a(f"s_mov_b32 s{S_TK}, 1")
            a(f"s_atomic_add s{S_TK}, s[{S_CB}:{S_CB+1}], 0 glc")
        else:
            a("s_mov_b64 exec, 1")
            a(f"ds_inc_rtn_u32 v0, v10, v5 offset:{L_CNT}")
            a("s_mov_b64 exec, -1")

    def group(self, slot, kwait=40, vwait=40, reissue=True, mode=None):
        a = self.a
        if mode is not None:
            return self.group_p(slot, mode)
        b = self.RING + 64*slot
        SC = 32; PB = 10; D0 = 40; D1 = 44; Q = 48
        vM, vMC, vL, vMX, vMY = 6, 8, 9, 5, 7
        a(f"s_cmp_ge_u32 s{S_OFFS[slot]}, {0x1000000 if (self.ilv or self.dyn) else 0x80000:#x}")
        a("s_cbranch_scc1 L_S_done")
        a("s_mov_b64 exec, 1")
        a(f"ds_inc_rtn_u32 v28, v10, v5 offset:{L_CNT}")
        a("s_mov_b64 exec, -1")
        if self.drain: self.ladder([40, 24, 8])
        else: a(f"s_waitcnt vmcnt({kwait})")
        if self.dyn:
            a("s_mov_b64 exec, 1")
            a("s_waitcnt lgkmcnt(0)")
            a("v_and_b32 v29, -4, v28"); a(f"v_min_u32 v29, {4*(NTAB-1)}, v29")
            a(f"ds_read_b32 v30, v29 offset:{L_TAB}")
            a("s_mov_b64 exec, -1")
        for c in range(4):
            for t in range(2):
                cc = "0" if c == 0 else V4(SC+4*t)
                a(f"v_mfma_f32_16x16x32_bf16 {V4(SC+4*t)}, {V4(b+16*t+4*c)}, {V4(Q+4*c)}, {cc}")
        if self.series: a("s_memrealtime s[96:97]")
        a("s_waitcnt lgkmcnt(0)")
        if self.series:
            a("s_mov_b32 m0, s95"); a("s_nop 4"); a("v_writelane_b32 v0, s96, m0"); a("s_add_u32 s95, s95, 1")
        a(f"v_readfirstlane_b32 s{S_T0}, v28")
        if self.dyn:
            rt = a.uniq("L_rt"); rdy = a.uniq("L_rdy")
            a("v_readfirstlane_b32 s3, v30")
            a("s_cmp_eq_u32 s3, -1"); a(f"s_cbranch_scc0 {rdy}")
            a.label(rt)
            a("s_mov_b64 exec, 1")
            a(f"ds_read_b32 v30, v29 offset:{L_TAB}")
            a("s_mov_b64 exec, -1")
            a("s_waitcnt lgkmcnt(0)")
            a("v_readfirstlane_b32 s3, v30")
            if self.dbg: a("s_add_u32 s94, s94, 1")
            a("s_cmp_eq_u32 s3, -1"); a(f"s_cbranch_scc0 {rdy}")
            self.spin_guard(rt, rdy, sleep=1)
            a.label(rdy)
            a(f"s_and_b32 s{S_T0}, s{S_T0}, 3"); a(f"s_lshl_b32 s{S_T0}, s{S_T0}, 13")
            a(f"s_min_u32 s3, s3, 0x1000000")
            a(f"s_add_u32 s{S_OFFS[slot]}, s3, s{S_T0}")
        elif self.ilv:
            a(f"s_lshl_b32 s{S_T0}, s{S_T0}, 18")
            a(f"s_add_u32 s{S_OFFS[slot]}, s{S_T0}, s79")
        elif self.vrot or self.grot:
            a(f"s_add_u32 s3, s{S_T0}, s75"); a("s_and_b32 s3, s3, 63"); a("s_lshl_b32 s3, s3, 13")
            a(f"s_cmp_ge_u32 s{S_T0}, 64"); a(f"s_cselect_b32 s{S_OFFS[slot]}, 0x80000, s3")
        else:
            a(f"s_lshl_b32 s{S_OFFS[slot]}, s{S_T0}, 13")
        if self.drain:
            inv = a.uniq("L_inv"); cont = a.uniq("L_cont")
            a(f"s_cmp_ge_u32 s{S_OFFS[slot]}, {0x1000000 if (self.ilv or self.dyn) else 0x80000:#x}")
            a(f"s_cbranch_scc0 {cont}")
            a(f"s_add_u32 s{S_DR}, s{S_DR}, 1")
            a(f"s_branch {inv}")
            a.label(cont)
            self.issueK(slot)
            a.label(inv)
        else:
            self.issueK(slot)
        for k in range(4):
            s0 = SC+2*k; t = 28+k
            a(f"v_cvt_pk_bf16_f32 v{t}, v{s0}, v{s0+1}")
        for k in range(4):
            s0 = SC+2*k; t = 28+k
            a(f"v_lshlrev_b32 v{s0}, 16, v{t}")
            a(f"v_and_b32 v{s0+1}, s{S_HI}, v{t}")
        for k in range(4):
            s0 = SC+2*k
            a(f"v_pk_mul_f32 {V2(s0)}, {V2(s0)}, s[{S_SCALE}:{S_SCALE+1}]")
        for k in range(4):
            s0 = SC+2*k; t = 28+k
            a(f"v_cvt_pk_bf16_f32 v{t}, v{s0}, v{s0+1}")
        for k in range(4):
            s0 = SC+2*k; t = 28+k
            a(f"v_lshlrev_b32 v{s0}, 16, v{t}")
            a(f"v_and_b32 v{s0+1}, s{S_HI}, v{t}")
        a(f"v_max3_f32 v28, v{SC}, v{SC+1}, v{SC+2}")
        a(f"v_max3_f32 v29, v{SC+3}, v{SC+4}, v{SC+5}")
        a(f"v_max3_f32 v28, v28, v{SC+6}, v{SC+7}")
        a(f"v_max_f32 v28, v28, v29")
        a(f"v_cmp_gt_f32 vcc, v28, v{vM}")
        skip = a.uniq("L_skip")
        a(f"s_cbranch_vccz {skip}")
        rows_reduce(a, 28, 29, "v_max_f32")
        a(f"v_max_f32 v28, v28, v{vM}")
        a(f"v_mul_f32 v29, s{S_LOG2E}, v28")
        a(f"v_sub_f32 v30, v{vMC}, v29")
        a(f"v_exp_f32 v30, v30")
        a(f"v_mov_b32 v{vM}, v28")
        a(f"v_mov_b32 v{vMC}, v29")
        a(f"v_mul_f32 v{vL}, v{vL}, v30")
        for h in range(4):
            a(f"v_mov_b32_dpp v31, v30 row_newbcast:{4*h} row_mask:{1<<h:#x} bank_mask:0xf")
        for k in range(8):
            a(f"v_mul_f32 v{D0+k}, v{D0+k}, v31")
        a.label(skip)
        for k in range(8):
            a(f"v_fma_f32 v{SC+k}, v{SC+k}, s{S_LOG2E}, -v{vMC}")
        for k in range(8):
            a(f"v_exp_f32 v{SC+k}, v{SC+k}")
        for t in range(2):
            for r in range(4):
                a(f"v_cvt_pk_bf16_f32 v{28+r}, v{SC+4*t+r}, v{SC+4*t+r}")
            for r in range(4):
                a(f"v_and_b32 v{PB+4*r+2}, v{28+r}, v{vMX}")
                a(f"v_and_b32 v{PB+4*r+3}, v{28+r}, v{vMY}")
            if t == 0:
                if self.drain: self.ladder([40, 32, 16, 0])
                else: a(f"s_waitcnt vmcnt({vwait})")
            for r in range(4):
                vb = b + 32 + 4*(4*t+r)
                a(f"v_mfma_f32_16x16x32_bf16 {V4(D0)}, {V4(PB+4*r+2)}, {V4(vb)}, {V4(D0)}")
                a(f"v_mfma_f32_16x16x32_bf16 {V4(D1)}, {V4(PB+4*r)}, {V4(vb)}, {V4(D1)}")
        if self.drain:
            skv = a.uniq("L_skv")
            a(f"s_cmp_lg_u32 s{S_DR}, 0"); a(f"s_cbranch_scc1 {skv}")
            self.issueV(slot)
            a.label(skv)
        else:
            self.issueV(slot)
        a(f"v_pk_add_f32 v[28:29], {V2(SC)}, {V2(SC+2)}")
        a(f"v_pk_add_f32 v[30:31], {V2(SC+4)}, {V2(SC+6)}")
        a(f"v_pk_add_f32 v[28:29], v[28:29], v[30:31]")
        a(f"v_add_f32 v28, v28, v29")
        a(f"v_add_f32 v{vL}, v{vL}, v28")

    def group_p(self, slot, mode):
        a = self.a
        b = self.RING + 64*slot
        SC = 32; PB = 10; D0 = 40; D1 = 44; Q = 48
        vM, vMC, vL, vMX, vMY = 6, 8, 9, 5, 7
        LIM = 0x1000000
        a(f"s_cmp_ge_u32 s{S_OFFS[slot]}, {LIM:#x}")
        a("s_cbranch_scc1 L_S_done")
        self.ladder([40, 24, 8])
        for c in range(4):
            for t in range(2):
                cc = "0" if c == 0 else V4(SC+4*t)
                a(f"v_mfma_f32_16x16x32_bf16 {V4(SC+4*t)}, {V4(b+16*t+4*c)}, {V4(Q+4*c)}, {cc}")
        ser = self.series and mode == "pool"
        if ser: a("s_memrealtime s[96:97]")
        inv = a.uniq("L_inv"); cont = a.uniq("L_cont")
        if self.atlat: a("s_memrealtime s[96:97]")
        a("s_waitcnt lgkmcnt(0)")
        if self.atlat:
            a("s_memrealtime s[98:99]"); a("s_waitcnt lgkmcnt(0)")
            a("s_sub_u32 s96, s98, s96"); a("s_add_u32 s94, s94, s96"); a("s_max_u32 s95, s95, s96")
        if ser:
            a("s_mov_b32 m0, s95"); a("s_nop 4"); a("v_writelane_b32 v0, s96, m0"); a("s_add_u32 s95, s95, 1")
        a(f"s_cmp_lg_u32 s{S_DR}, 0")
        a(f"s_cbranch_scc1 {inv}")
        if mode == "lds":
            a(f"v_readfirstlane_b32 s{S_TK}, v0")
            a(f"s_lshl_b32 s{S_TK}, s{S_TK}, 5"); a(f"s_add_u32 s{S_TK}, s{S_TK}, s{S_SP}")
        self.tk2off(slot)
        a(f"s_cbranch_scc1 {inv}")
        self.fetch_ticket(mode)
        self.issueK(slot)
        a(f"s_branch {cont}")
        a.label(inv)
        a(f"s_mov_b32 s{S_OFFS[slot]}, {LIM:#x}")
        a(f"s_add_u32 s{S_DR}, s{S_DR}, 1")
        a.label(cont)
        for k in range(4):
            s0 = SC+2*k; t = 28+k
            a(f"v_cvt_pk_bf16_f32 v{t}, v{s0}, v{s0+1}")
        for k in range(4):
            s0 = SC+2*k; t = 28+k
            a(f"v_lshlrev_b32 v{s0}, 16, v{t}")
            a(f"v_and_b32 v{s0+1}, s{S_HI}, v{t}")
        for k in range(4):
            s0 = SC+2*k
            a(f"v_pk_mul_f32 {V2(s0)}, {V2(s0)}, s[{S_SCALE}:{S_SCALE+1}]")
        for k in range(4):
            s0 = SC+2*k; t = 28+k
            a(f"v_cvt_pk_bf16_f32 v{t}, v{s0}, v{s0+1}")
        for k in range(4):
            s0 = SC+2*k; t = 28+k
            a(f"v_lshlrev_b32 v{s0}, 16, v{t}")
            a(f"v_and_b32 v{s0+1}, s{S_HI}, v{t}")
        a(f"v_max3_f32 v28, v{SC}, v{SC+1}, v{SC+2}")
        a(f"v_max3_f32 v29, v{SC+3}, v{SC+4}, v{SC+5}")
        a(f"v_max3_f32 v28, v28, v{SC+6}, v{SC+7}")
        a(f"v_max_f32 v28, v28, v29")
        a(f"v_cmp_gt_f32 vcc, v28, v{vM}")
        skip = a.uniq("L_skip")
        a(f"s_cbranch_vccz {skip}")
        rows_reduce(a, 28, 29, "v_max_f32")
        a(f"v_max_f32 v28, v28, v{vM}")
        a(f"v_mul_f32 v29, s{S_LOG2E}, v28")
        a(f"v_sub_f32 v30, v{vMC}, v29")
        a(f"v_exp_f32 v30, v30")
        a(f"v_mov_b32 v{vM}, v28")
        a(f"v_mov_b32 v{vMC}, v29")
        a(f"v_mul_f32 v{vL}, v{vL}, v30")
        for h in range(4):
            a(f"v_mov_b32_dpp v31, v30 row_newbcast:{4*h} row_mask:{1<<h:#x} bank_mask:0xf")
        for k in range(8):
            a(f"v_mul_f32 v{D0+k}, v{D0+k}, v31")
        a.label(skip)
        for k in range(8):
            a(f"v_fma_f32 v{SC+k}, v{SC+k}, s{S_LOG2E}, -v{vMC}")
        for k in range(8):
            a(f"v_exp_f32 v{SC+k}, v{SC+k}")
        for t in range(2):
            for r in range(4):
                a(f"v_cvt_pk_bf16_f32 v{28+r}, v{SC+4*t+r}, v{SC+4*t+r}")
            for r in range(4):
                a(f"v_and_b32 v{PB+4*r+2}, v{28+r}, v{vMX}")
                a(f"v_and_b32 v{PB+4*r+3}, v{28+r}, v{vMY}")
            if t == 0:
                self.ladder([40, 32, 16, 0])
            for r in range(4):
                vb = b + 32 + 4*(4*t+r)
                a(f"v_mfma_f32_16x16x32_bf16 {V4(D0)}, {V4(PB+4*r+2)}, {V4(vb)}, {V4(D0)}")
                a(f"v_mfma_f32_16x16x32_bf16 {V4(D1)}, {V4(PB+4*r)}, {V4(vb)}, {V4(D1)}")
        skv = a.uniq("L_skv")
        a(f"s_cmp_lg_u32 s{S_DR}, 0"); a(f"s_cbranch_scc1 {skv}")
        self.issueV(slot)
        a.label(skv)
        a(f"v_pk_add_f32 v[28:29], {V2(SC)}, {V2(SC+2)}")
        a(f"v_pk_add_f32 v[30:31], {V2(SC+4)}, {V2(SC+6)}")
        a(f"v_pk_add_f32 v[28:29], v[28:29], v[30:31]")
        a(f"v_add_f32 v28, v28, v29")
        a(f"v_add_f32 v{vL}, v{vL}, v28")

    def ladder(self, waits):
        a = self.a
        labs = [a.uniq("L_lad") for _ in waits]
        for i in range(len(waits)-1):
            a(f"s_cmp_eq_u32 s{S_DR}, {i}"); a(f"s_cbranch_scc1 {labs[i]}")
        for i in range(len(waits)-1, -1, -1):
            if i < len(waits)-1: a.label(labs[i])
            a(f"s_waitcnt vmcnt({waits[i]})")

    def masksXY(self, vX, vY, t):
        a = self.a
        a(f"v_and_b32 v{t}, 3, v0")
        a(f"v_mov_b32 v{vX}, 0"); a(f"v_mov_b32 v{vY}, 0")
        a(f"v_mov_b32 v{t+1}, 0xffff")
        a(f"v_mov_b32 v{t+2}, s{S_HI}")
        a(f"v_cmp_eq_u32 vcc, 0, v{t}"); a(f"v_cndmask_b32 v{vX}, v{vX}, v{t+1}, vcc")
        a(f"v_cmp_eq_u32 vcc, 1, v{t}"); a(f"v_cndmask_b32 v{vX}, v{vX}, v{t+2}, vcc")
        a(f"v_cmp_eq_u32 vcc, 2, v{t}"); a(f"v_cndmask_b32 v{vY}, v{vY}, v{t+1}, vcc")
        a(f"v_cmp_eq_u32 vcc, 3, v{t}"); a(f"v_cndmask_b32 v{vY}, v{vY}, v{t+2}, vcc")

    def swave(self):
        a = self.a
        a.label("L_S")
        a(f"s_lshl_b32 s{S_T0}, s{S_G}, 24")
        wide = self.ilv or self.pool or self.dyn
        if not wide:
            a(f"s_lshl_b32 s{S_T0+1}, s{S_SP}, 19")
            a(f"s_add_u32 s{S_T0}, s{S_T0}, s{S_T0+1}")
        srd(a, SRD_A, S_K, S_T0, size=0x1000000 if wide else 0x80000)
        srd(a, SRD_B, S_V, S_T0, size=0x1000000 if wide else 0x80000)
        a(f"s_lshl_b32 s79, s{S_SP}, 13")
        a("v_and_b32 v1, 3, v0"); a("v_lshlrev_b32 v1, 10, v1")
        a("v_bfe_u32 v2, v0, 2, 2"); a("v_lshlrev_b32 v2, 8, v2"); a("v_add_u32 v1, v1, v2")
        a("v_lshrrev_b32 v2, 4, v0"); a("v_lshlrev_b32 v2, 4, v2"); a("v_add_u32 v1, v1, v2")
        a("v_add_u32 v2, 0x1000, v1")
        a("v_lshlrev_b32 v3, 4, v0"); a("v_add_u32 v4, 0x1000, v3")
        for k in range(3):
            if self.ilv:
                a(f"s_lshl_b32 s{S_OFFS[k]}, s{S_WAVE}, 18")
                a(f"s_add_u32 s{S_OFFS[k]}, s{S_OFFS[k]}, s79")
                if k: a(f"s_add_u32 s{S_OFFS[k]}, s{S_OFFS[k]}, {(4<<18)*k}")
            elif (self.vrot or self.grot):
                if k == 0:
                    a(f"s_mul_i32 s92, s{S_SP}, {self.vrot}"); a(f"s_mul_i32 s93, s{S_G}, {self.grot}")
                    a("s_add_u32 s92, s92, s93"); a("s_and_b32 s92, s92, 15")
                a(f"s_add_u32 s{S_OFFS[k]}, s92, {k}"); a(f"s_and_b32 s{S_OFFS[k]}, s{S_OFFS[k]}, 15")
                a(f"s_lshl_b32 s{S_OFFS[k]}, s{S_OFFS[k]}, 15")
                a(f"s_lshl_b32 s93, s{S_WAVE}, 13"); a(f"s_add_u32 s{S_OFFS[k]}, s{S_OFFS[k]}, s93")
                if self.pool:
                    if k == 0: a(f"s_lshl_b32 s79, s{S_SP}, 19")
                    a(f"s_add_u32 s{S_OFFS[k]}, s{S_OFFS[k]}, s79")
            else:
                a(f"s_lshl_b32 s{S_OFFS[k]}, s{S_WAVE}, 13")
                if k: a(f"s_add_u32 s{S_OFFS[k]}, s{S_OFFS[k]}, {32768*k}")
                if self.pool or self.dyn:
                    if k == 0: a(f"s_lshl_b32 s79, s{S_SP}, 19")
                    a(f"s_add_u32 s{S_OFFS[k]}, s{S_OFFS[k]}, s79")
        if not self.noa0: a("s_barrier")
        self.stamp(1)
        for slot in range(3):
            if slot == self.early: a("s_barrier")
            self.issueK(slot); self.issueV(slot)
        self.masksXY(5, 7, 28)
        for k in range(5):
            a(f"v_mov_b32 v{10+4*k}, 0"); a(f"v_mov_b32 v{11+4*k}, 0")
        for k in range(8): a(f"v_mov_b32 v{40+k}, 0")
        a("v_mov_b32 v6, 0xff800000"); a("v_mov_b32 v8, 0xff800000"); a("v_mov_b32 v9, 0")
        a(f"s_mov_b32 s{S_SCALE}, 0x3db504f3"); a(f"s_mov_b32 s{S_SCALE+1}, 0x3db504f3")
        a("v_bfe_u32 v28, v0, 2, 2"); a("v_lshlrev_b32 v28, 8, v28")
        a("v_lshrrev_b32 v29, 4, v0"); a("v_lshlrev_b32 v29, 4, v29"); a("v_add_u32 v28, v28, v29")
        a(f"s_lshl_b32 s{S_T0}, s{S_G}, 5"); a(f"s_add_u32 s{S_T0}, s{S_T0}, s{S_SP}")
        a(f"s_lshl_b32 s{S_T0}, s{S_T0}, 12")
        a(f"s_lshl_b32 s67, s{S_WAVE}, 10")
        a(f"s_add_u32 s67, s{S_T0}, s67"); a(f"s_add_u32 s67, s67, {WS_OP}")
        a(f"s_lshl_b32 s68, s{S_G}, 2"); a(f"s_add_u32 s68, s68, s{S_WAVE}")
        a(f"s_lshl_b32 s68, s68, 5"); a(f"s_add_u32 s68, s68, s{S_SP}")
        a(f"s_lshl_b32 s68, s68, 4"); a(f"s_add_u32 s68, s68, {WS_ST}")
        a(f"s_lshr_b32 s74, s{S_SP}, 3"); a(f"s_bfe_u32 s75, s{S_SP}, 0x10002")
        a(f"s_lshl_b32 s{S_T0}, s{S_G}, 5"); a(f"s_lshl_b32 s69, s{S_WAVE}, 3")
        a(f"s_add_u32 s{S_T0}, s{S_T0}, s69"); a(f"s_lshl_b32 s{S_T0}, s{S_T0}, 12")
        a(f"s_lshl_b32 s69, s74, 10"); a(f"s_add_u32 s{S_T0}, s{S_T0}, s69")
        a(f"s_lshl_b32 s69, s75, 9"); a(f"s_add_u32 s{S_T0}, s{S_T0}, s69")
        a(f"s_add_u32 s69, s{S_T0}, {WS_OP}")
        for u in range(1, 4):
            a(f"s_add_u32 s{69+u}, s69, {8192*u}")
        a(f"s_lshl_b32 s73, s{S_G}, 2"); a(f"s_add_u32 s73, s73, s74")
        a(f"s_lshl_b32 s73, s73, 9"); a(f"s_add_u32 s73, s73, {WS_ST}")
        a(f"s_mov_b32 s{S_DR}, 0")
        if self.dyn and self.dbg: a("s_mov_b32 s94, 0")
        if (self.vrot or self.grot) and not self.pool:
            a(f"s_mul_i32 s75, s{S_SP}, {self.vrot}"); a(f"s_mul_i32 s3, s{S_G}, {self.grot}")
            a("s_add_u32 s75, s75, s3"); a("s_and_b32 s75, s75, 15"); a("s_lshl_b32 s75, s75, 2")
        if self.pool:
            assert self.nstat == 16
            a(f"s_lshl_b32 s{S_T0}, s{S_G}, 12"); a(f"s_add_u32 s{S_T0}, s{S_T0}, {WS_CNT}")
            a(f"s_add_u32 s{S_CB}, s{S_WS}, s{S_T0}"); a(f"s_addc_u32 s{S_CB+1}, s{S_WS+1}, 0")
            if self.pmap == "t4":
                a(f"s_lshl_b32 s{S_TK}, s{S_SP}, 2"); a(f"s_add_u32 s{S_TK}, s{S_TK}, s{S_WAVE}")
                a(f"s_add_u32 s{S_TK}, s{S_TK}, {3 << 7}")
            elif self.pmap == "w4":
                a(f"s_lshl_b32 s{S_T0}, s{S_WAVE}, 10")
                a(f"s_add_u32 s{S_CB}, s{S_CB}, s{S_T0}"); a(f"s_addc_u32 s{S_CB+1}, s{S_CB+1}, 0")
                a(f"s_add_u32 s{S_TK}, s{S_SP}, 96")
                a(f"s_lshl_b32 s75, s{S_WAVE}, 13")
                a(f"s_mul_i32 s101, s{S_G}, {self.grot}")
            else:
                a(f"s_lshl_b32 s{S_TK}, s{S_WAVE}, 5"); a(f"s_add_u32 s{S_TK}, s{S_TK}, s{S_SP}")
        self.get_tag()
        self.stamp(2)
        a("s_barrier")
        self.stamp(3)
        for c in range(4):
            a(f"ds_read_b128 {V4(48+4*c)}, v28 offset:{L_Q+64*c}")
        if self.pool: a(f"ds_read_b32 v29, v10 offset:{L_SAME}")
        a("s_waitcnt lgkmcnt(0)")
        if self.pool:
            a(f"v_readfirstlane_b32 s3, v29")
            if self.pmap not in ("w4", "t4"):
                a(f"s_cmp_eq_u32 s3, 0")
                a("s_cbranch_scc1 L_S_lds")
            if self.series: a("s_mov_b32 s95, 0"); a("v_mov_b32 v0, 0")
            if self.atlat: a("s_mov_b32 s94, 0"); a("s_mov_b32 s95, 0")
            a.label("L_S_loop")
            for slot in range(3):
                self.group(slot, mode="pool")
            a("s_branch L_S_loop")
            if self.pmap not in ("w4", "t4"):
                a.label("L_S_lds")
                a(f"v_mov_b32 v0, s{S_WAVE}")
                a.label("L_S_loop2")
                for slot in range(3):
                    self.group(slot, mode="lds")
                a("s_branch L_S_loop2")
        else:
            if self.series: a("s_mov_b32 s95, 0"); a("v_mov_b32 v0, 0")
            a.label("L_S_loop")
            for slot in range(3):
                self.group(slot)
            a("s_branch L_S_loop")
        a.label("L_S_done")
        if self.atlat: a("s_mov_b32 s100, s94"); a("s_mov_b32 s101, s95")
        if self.dyn and self.dbg: a("s_mov_b32 s100, s94")
        a("s_waitcnt vmcnt(0)")
        self.stamp(4)
        if self.pool and not self.series:
            a("v_mbcnt_lo_u32_b32 v0, -1, 0"); a("v_mbcnt_hi_u32_b32 v0, -1, v0")
        if self.series:
            a("v_mbcnt_lo_u32_b32 v28, -1, 0"); a("v_mbcnt_hi_u32_b32 v28, -1, v28")
            a("v_lshlrev_b32 v29, 2, v28")
            a(f"s_lshl_b32 s94, s2, 2"); a(f"s_add_u32 s94, s94, s{S_WAVE}"); a("s_lshl_b32 s94, s94, 8"); a(f"s_add_u32 s94, s94, {WS_DBG+0x40000}")
            a(f"buffer_store_dword v0, v29, {S(SRD_WS)}, s94 offen")
            a("s_waitcnt vmcnt(0)")
            a("v_mov_b32 v0, v28")
        rows_reduce(a, 9, 28, "v_add_f32")
        a("v_lshlrev_b32 v28, 5, v0")
        a(f"s_lshl_b32 s{S_T0}, s{S_WAVE}, 11")
        a(f"v_add_u32 v28, s{S_T0}, v28")
        a(f"ds_write_b128 v28, {V4(40)} offset:{L_O}")
        a(f"ds_write_b128 v28, {V4(44)} offset:{L_O+16}")
        a("v_lshlrev_b32 v29, 3, v0")
        a(f"s_lshl_b32 s{S_T0}, s{S_WAVE}, 3")
        a(f"v_add_u32 v29, s{S_T0}, v29")
        a("s_mov_b64 exec, 0x1111")
        a(f"ds_write_b64 v29, v[8:9] offset:{L_ST}")
        a("s_mov_b64 exec, -1")
        a("s_waitcnt lgkmcnt(0)")
        a("s_barrier")
        self.stamp(5)
        a(f"s_lshl_b32 s{S_T0}, s{S_WAVE}, 5")
        a(f"v_mov_b32 v28, s{S_T0}")
        a(f"ds_read_b128 v[64:67], v28 offset:{L_ST}")
        a(f"ds_read_b128 v[68:71], v28 offset:{L_ST+16}")
        a(f"ds_read_b32 v90, v10 offset:{L_SAME}")
        a(f"s_lshl_b32 s{S_T0}, s{S_WAVE}, 9")
        a("v_lshlrev_b32 v29, 3, v0")
        a(f"v_add_u32 v29, s{S_T0}, v29")
        for k in range(4):
            a(f"ds_read_b64 {V2(72+2*k)}, v29 offset:{L_O+2048*k}")
        a(f"v_mov_b32 v85, s{S_TAG}"); a(f"v_mov_b32 v87, s{S_TAG}")
        a(f"v_mov_b32 v81, s{S_TAG}"); a(f"v_mov_b32 v83, s{S_TAG}")
        a("v_lshlrev_b32 v28, 4, v0")
        a("s_waitcnt lgkmcnt(4)")
        a(f"v_readfirstlane_b32 s{S_T0}, v90")
        a("v_max3_f32 v80, v64, v66, v68")
        a("v_max_f32 v80, v80, v70")
        for k in range(4):
            a(f"v_sub_f32 v{64+2*k}, v{64+2*k}, v80")
        for k in range(4):
            a(f"v_exp_f32 v{64+2*k}, v{64+2*k}")
        a("v_mul_f32 v82, v64, v65")
        a("v_fma_f32 v82, v66, v67, v82")
        a("v_fma_f32 v82, v68, v69, v82")
        a("v_fma_f32 v82, v70, v71, v82")
        a("s_waitcnt lgkmcnt(0)")
        a("v_mul_f32 v84, v64, v72"); a("v_mul_f32 v86, v64, v73")
        for k in range(1, 4):
            a(f"v_fma_f32 v84, v{64+2*k}, v{72+2*k}, v84")
            a(f"v_fma_f32 v86, v{64+2*k}, v{73+2*k}, v86")
        paths = [("sc1",)] if self.nofast else [("",), ("sc1",)]
        if not self.nofast:
            a(f"s_cmp_eq_u32 s{S_T0}, 0")
            a("s_cbranch_scc1 L_S_pubslow")
        for pi_, (fl,) in enumerate(paths):
            if pi_ == 1: a.label("L_S_pubslow")
            a(f"buffer_store_dwordx4 v[84:87], v28, {S(SRD_WS)}, s67 offen {fl}")
            a("s_mov_b64 exec, 1")
            a(f"buffer_store_dwordx4 v[80:83], v10, {S(SRD_WS)}, s68 offen {fl}")
            a("s_mov_b64 exec, -1")
            if pi_ == 0 and not self.nofast: a("s_branch L_S_pubdone")
        a.label("L_S_pubdone")
        self.stamp(6)
        a("v_lshrrev_b32 v28, 5, v0"); a("v_lshlrev_b32 v28, 12, v28")
        a("v_and_b32 v29, 31, v0"); a("v_lshlrev_b32 v29, 4, v29"); a("v_add_u32 v28, v28, v29")
        a.label("L_S_poll")
        for u in range(4):
            a(f"buffer_load_dwordx4 {V4(64+4*u)}, v28, {S(SRD_WS)}, s{69+u} offen sc1")
        a(f"buffer_load_dwordx4 v[80:83], v29, {S(SRD_WS)}, s73 offen sc1")
        a("s_waitcnt vmcnt(0)")
        a(f"v_xor_b32 v30, s{S_TAG}, v65")
        for r in [67, 69, 71, 73, 75, 77, 79, 81, 83]:
            a(f"v_xor_b32 v31, s{S_TAG}, v{r}")
            a("v_or_b32 v30, v30, v31")
        a("v_cmp_ne_u32 vcc, 0, v30")
        a("s_cbranch_vccz L_S_got")
        self.spin_guard("L_S_poll", "L_S_got")
        a.label("L_S_got")
        self.stamp(7)
        a("v_mov_b32 v30, v80")
        allreduce64(a, 30, 31, "v_max_f32")
        a("v_sub_f32 v80, v80, v30")
        a("v_exp_f32 v80, v80")
        a("v_mul_f32 v82, v80, v82")
        allreduce64(a, 82, 31, "v_add_f32")
        a("v_rcp_f32 v82, v82")
        a("v_add_f32 v80, v80, v80")
        a("v_mul_f32 v80, v80, v82")
        a("v_lshrrev_b32 v30, 5, v0")
        a(f"s_lshl_b32 s{S_T0}, s{S_WAVE}, 3")
        a(f"v_add_u32 v30, s{S_T0}, v30")
        a("v_lshlrev_b32 v30, 2, v30")
        for u in range(4):
            if u: a("v_add_u32 v30, 8, v30")
            a(f"ds_bpermute_b32 v{84+u}, v30, v80")
        a("s_waitcnt lgkmcnt(0)")
        a("v_mul_f32 v88, v84, v64"); a("v_mul_f32 v89, v84, v66")
        for u in range(1, 4):
            a(f"v_fma_f32 v88, v{84+u}, v{64+4*u}, v88")
            a(f"v_fma_f32 v89, v{84+u}, v{66+4*u}, v89")
        a("v_mov_b32 v90, v88"); a("v_mov_b32 v91, v89")
        a("v_permlane32_swap_b32 v88, v90"); a("v_permlane32_swap_b32 v89, v91")
        a("v_add_f32 v88, v88, v90"); a("v_add_f32 v89, v89, v91")
        a("v_and_b32 v30, 31, v0"); a("v_lshlrev_b32 v30, 3, v30")
        a(f"s_lshl_b32 s{S_T0}, s{S_WAVE}, 8")
        a(f"v_add_u32 v30, s{S_T0}, v30")
        a(f"ds_write_b64 v30, v[88:89] offset:{L_G}")
        a("s_waitcnt lgkmcnt(0)")
        if self.spin and self.spin.startswith("S"):
            k = int(self.spin[1:])
            a(f"s_lshl_b32 s{S_T0}, s{S_WAVE}, 2"); a(f"s_add_u32 s{S_T0}, s{S_T0}, {L_RS+16}")
            a(f"v_mov_b32 v30, s{S_T0}"); a(f"v_mov_b32 v31, s{S_TS+2*k}")
            a("ds_write_b32 v30, v31"); a("s_waitcnt lgkmcnt(0)")
        a("s_barrier")
        self.stamp(8)
        if self.dbg:
            if self.atlat:
                a("s_waitcnt lgkmcnt(0)"); a(f"s_mov_b32 s{S_TS+12}, s100"); a(f"s_mov_b32 s{S_TS+13}, s101")
            if self.dyn:
                a("s_waitcnt lgkmcnt(0)"); a(f"s_mov_b32 s{S_TS+12}, s100"); a(f"s_mov_b32 s{S_TS+13}, 0")
            a(f"s_getreg_b32 s{S_TS+18}, hwreg(HW_REG_XCC_ID)"); a(f"s_mov_b32 s{S_TS+19}, 0")
            self.dump_stamps(10, 0)
        self.hdump([(3, 2, "max"), (4, 3, "max"), (4, 4, "min"), (5, 5, "max"), (7, 6, "max"), (2, 15, "max")])
        a("s_branch L_end")

    def gemv_loads(self, srd_, reg, step, n=16):
        a = self.a
        a(f"s_mov_b32 s{S_OFF}, 0")
        for i in range(n):
            a(f"buffer_load_dwordx4 {V4(reg+4*i)}, v1, {S(srd_)}, s{S_OFF} offen {self.wflag}")
            if i < n-1: a(f"s_add_u32 s{S_OFF}, s{S_OFF}, {step}")

    def gemv_compute(self, reg, tb, acc, wait_first, outA, outB, rors, n=16):
        a = self.a
        for k in range(8): a(f"v_mov_b32 v{acc+k}, 0")
        for i in range(n):
            if wait_first is not None:
                a(f"s_waitcnt vmcnt({wait_first + n - 1 - i})")
            for k in range(4):
                a(f"v_dot2c_f32_bf16 v{acc+2*k}, v{reg+4*i+k}, v{tb+2*i}")
                a(f"v_dot2c_f32_bf16 v{acc+2*k+1}, v{reg+4*i+k}, v{tb+2*i+1}")
        for k in range(4):
            a(f"v_permlane32_swap_b32 v{acc+k}, v{acc+4+k}")
        for k in range(4):
            a(f"v_add_f32 v{acc+k}, v{acc+k}, v{acc+4+k}")
        a(f"v_permlane16_swap_b32 v{acc}, v{acc+2}")
        a(f"v_permlane16_swap_b32 v{acc+1}, v{acc+3}")
        a(f"v_add_f32 v{outA}, v{acc}, v{acc+2}")
        a(f"v_add_f32 v{outB}, v{acc+1}, v{acc+3}")
        for rr in rors:
            a(f"v_add_f32_dpp v{outA}, v{outA}, v{outA} row_ror:{rr} row_mask:0xf bank_mask:0xf")
            a(f"v_add_f32_dpp v{outB}, v{outB}, v{outB} row_ror:{rr} row_mask:0xf bank_mask:0xf")

    def read_T(self, tb, shift, stride, n=16):
        a = self.a
        for i in range(n):
            a(f"ds_read_b64 {V2(tb+2*i)}, v2 offset:{L_T+stride*i}")

    def layernorm(self):
        a = self.a
        for k in range(4):
            a(f"v_lshlrev_b32 v{16+2*k}, 16, v{4+k}")
            a(f"v_and_b32 v{17+2*k}, s{S_HI}, v{4+k}")
        a("v_pk_add_f32 v[24:25], v[16:17], v[18:19]")
        a("v_pk_add_f32 v[26:27], v[20:21], v[22:23]")
        a("v_pk_add_f32 v[24:25], v[24:25], v[26:27]")
        a("v_add_f32 v24, v24, v25")
        allreduce64(a, 24, 25, "v_add_f32")
        a("v_mul_f32 v24, 0x3b000000, v24")
        for k in range(8): a(f"v_sub_f32 v{28+k}, v{16+k}, v24")
        a("v_mul_f32 v26, v28, v28")
        for k in range(1, 8): a(f"v_fma_f32 v26, v{28+k}, v{28+k}, v26")
        allreduce64(a, 26, 25, "v_add_f32")
        a("v_mul_f32 v26, 0x3b000000, v26")
        rnd(a, 24); rnd(a, 26)
        a("v_add_f32 v26, 0x3727c5ac, v26"); rnd(a, 26)
        a("v_sqrt_f32 v26, v26"); rnd(a, 26)
        a("v_rcp_f32 v26, v26")
        for k in range(8): a(f"v_sub_f32 v{16+k}, v{16+k}, v24")
        for k in range(4): a(f"v_cvt_pk_bf16_f32 v{28+k}, v{16+2*k}, v{17+2*k}")
        for k in range(4):
            a(f"v_lshlrev_b32 v{16+2*k}, 16, v{28+k}")
            a(f"v_and_b32 v{17+2*k}, s{S_HI}, v{28+k}")
        for k in range(8): a(f"v_mul_f32 v{16+k}, v{16+k}, v26")
        for k in range(4): a(f"v_cvt_pk_bf16_f32 v{12+k}, v{16+2*k}, v{17+2*k}")
        a("v_lshlrev_b32 v2, 6, v0")
        for k in range(4):
            a(f"v_and_b32 v28, 0xffff, v{12+k}")
            a(f"v_lshlrev_b32 v29, 16, v{12+k}")
            a(f"v_lshrrev_b32 v30, 16, v{12+k}")
            a(f"v_and_b32 v31, s{S_HI}, v{12+k}")
            a(f"ds_write_b128 v2, v[28:31] offset:{L_T+16*k}")
            if k < 3:
                a("s_nop 1")
        a("s_waitcnt lgkmcnt(0)")

    def tab_init(self):
        if not self.dyn: return
        a = self.a
        a(f"s_lshl_b32 s{S_T0}, s{S_SP}, 19")
        a("v_lshlrev_b32 v15, 15, v0"); a(f"v_add_u32 v15, s{S_T0}, v15")
        a("v_mov_b32 v16, -1")
        a(f"v_cmp_gt_u32 vcc, {self.dyn}, v0"); a("v_cndmask_b32 v16, v16, v15, vcc")
        a("v_mov_b32 v15, 0x1000000")
        a(f"v_cmp_eq_u32 vcc, {NTAB-1}, v0"); a("v_cndmask_b32 v16, v16, v15, vcc")
        a("v_lshlrev_b32 v17, 2, v0")
        a(f"s_mov_b64 exec, {(1 << NTAB) - 1:#x}") if NTAB <= 32 else (a(f"s_mov_b32 exec_lo, -1"), a(f"s_mov_b32 exec_hi, {(1 << (NTAB-32)) - 1:#x}"))
        a(f"ds_write_b32 v17, v16 offset:{L_TAB}")
        a("s_mov_b64 exec, -1")

    def server(self):
        if not self.dyn: return
        a = self.a
        R = self.dyn; NP = (16 - R) * 32
        J = S_T0 + 4
        srd(a, SRD_C, 30, size=256)
        a(f"s_lshl_b32 s{S_T0}, s{S_G}, 5")
        a(f"v_mov_b32 v2, s{S_T0}"); a("v_mov_b32 v4, 0")
        a(f"s_mov_b32 s{J}, {R}")
        a("s_mov_b64 exec, 1")
        a.label("L_srv")
        a(f"s_cmp_ge_u32 s{J}, {NTAB-1}"); a("s_cbranch_scc1 L_srv_end")
        a(f"ds_read_b32 v5, v4 offset:{L_CNT}")
        a("s_waitcnt lgkmcnt(0)")
        a(f"v_readfirstlane_b32 s{S_T0}, v5")
        a(f"s_lshr_b32 s{S_T0}, s{S_T0}, 2"); a(f"s_add_u32 s{S_T0}, s{S_T0}, {self.dlook}")
        a(f"s_cmp_ge_u32 s{S_T0}, s{J}"); a("s_cbranch_scc1 L_srv_get")
        a(f"s_sleep {self.dsleep}")
        a("s_branch L_srv")
        a.label("L_srv_get")
        a("v_mov_b32 v3, 1")
        a(f"buffer_atomic_add v3, v2, {S(SRD_C)}, 0 offen sc0 sc1")
        a("s_waitcnt vmcnt(0)")
        a(f"v_readfirstlane_b32 s{S_T0}, v3")
        a(f"s_cmp_ge_u32 s{S_T0}, {NP}"); a("s_cbranch_scc1 L_srv_out")
        a(f"s_and_b32 s{S_T0+1}, s{S_T0}, 31"); a(f"s_lshl_b32 s{S_T0+1}, s{S_T0+1}, 19")
        a(f"s_lshr_b32 s{S_T0}, s{S_T0}, 5"); a(f"s_add_u32 s{S_T0}, s{S_T0}, {R}"); a(f"s_lshl_b32 s{S_T0}, s{S_T0}, 15")
        a(f"s_add_u32 s{S_T0}, s{S_T0}, s{S_T0+1}")
        a(f"s_lshl_b32 s{S_T0+1}, s{J}, 2")
        a(f"v_mov_b32 v6, s{S_T0}"); a(f"v_mov_b32 v7, s{S_T0+1}")
        a(f"ds_write_b32 v7, v6 offset:{L_TAB}")
        a(f"s_add_u32 s{J}, s{J}, 1")
        a("s_branch L_srv")
        a.label("L_srv_out")
        a("s_mov_b64 exec, -1")
        a(f"v_cmp_le_u32 vcc, s{J}, v0"); a(f"v_cmp_gt_u32 s[{S_T0}:{S_T0+1}], {NTAB}, v0")
        a(f"s_and_b64 exec, vcc, s[{S_T0}:{S_T0+1}]")
        a("v_lshlrev_b32 v7, 2, v0"); a("v_mov_b32 v6, 0x1000000")
        a(f"ds_write_b32 v7, v6 offset:{L_TAB}")
        a.label("L_srv_end")
        a("s_mov_b64 exec, -1")
        a("s_waitcnt lgkmcnt(0)")
        if self.dbg:
            a(f"s_mov_b32 s{S_TS+12}, s{J}"); a(f"s_mov_b32 s{S_TS+13}, 0")

    def front(self):
        a = self.a
        NQ = self.qf
        cols = 128 // NQ; lpr = cols // 8; rpl = 64 // lpr; nld = 256 // rpl; sh = {2: 1, 4: 2, 8: 3}[lpr]
        L_FLG = L_SAME + 4; L_QP = L_O
        a.label("L_F")
        a(f"s_setprio {self.qprio}")
        srd(a, SRD_A, S_X, size=1024)
        srd(a, SRD_B, S_WR, size=1024)
        a("v_lshlrev_b32 v3, 4, v0")
        a(f"buffer_load_dwordx4 v[4:7], v3, {S(SRD_A)}, 0 offen")
        a(f"buffer_load_dwordx4 v[8:11], v3, {S(SRD_B)}, 0 offen")
        a(f"s_cmp_lt_u32 s{S_G}, {NQ}"); a("s_cbranch_scc0 L_F_nold")
        a(f"s_lshl_b32 s38, s{S_G}, 5"); a(f"s_add_u32 s38, s38, s{S_SP}")
        a(f"s_sub_u32 s39, s{S_WAVE}, 4")
        a(f"s_mul_i32 s{S_T0}, s38, {cols*2}")
        a(f"s_lshl_b32 s{S_T0+1}, s39, 21"); a(f"s_add_u32 s{S_T0}, s{S_T0}, s{S_T0+1}")
        a(f"s_add_u32 s{SRD_C}, s{S_WQ}, s{S_T0}"); a(f"s_addc_u32 s{SRD_C+1}, s{S_WQ+1}, 0")
        a(f"s_sub_u32 s{SRD_C+2}, {512*8192}, s{S_T0}"); a(f"s_mov_b32 s{SRD_C+3}, 0x00020000")
        a(f"v_lshrrev_b32 v1, {sh}, v0"); a("v_lshlrev_b32 v1, 13, v1")
        a(f"v_and_b32 v2, {lpr-1}, v0"); a("v_lshlrev_b32 v2, 4, v2"); a("v_add_u32 v1, v1, v2")
        self.gemv_loads(SRD_C, 64, rpl*8192, n=nld)
        a.label("L_F_nold")
        a(f"v_mov_b32 v12, {L_CNT}"); a(f"v_mov_b32 v13, 12"); a("v_mov_b32 v14, 0")
        a("ds_write_b32 v12, v13")
        a(f"ds_write_b32 v12, v14 offset:{L_FLG-L_CNT}")
        self.tab_init()
        a("s_waitcnt lgkmcnt(0)")
        self.stamp(5)
        a("s_barrier")
        a(f"s_add_u32 s{S_TAG}, s{S_TAG}, 1")
        a(f"s_cmp_lt_u32 s{S_G}, {NQ}"); a("s_cbranch_scc1 L_F_q")
        a(f"s_cmp_eq_u32 s{S_WAVE}, 5"); a("s_cbranch_scc1 L_W")
        a("s_waitcnt vmcnt(0)")
        a("s_branch L_F_ln")
        a.label("L_F_q")
        a(f"s_waitcnt vmcnt({nld+1})")
        a.label("L_F_ln")
        self.layernorm()
        a(f"s_cmp_lt_u32 s{S_G}, {NQ}"); a("s_cbranch_scc0 L_F_done")
        TB = 192
        a(f"v_lshrrev_b32 v2, {sh}, v0"); a("v_lshlrev_b32 v2, 3, v2")
        a(f"s_lshl_b32 s{S_T0}, s39, 11"); a(f"v_add_u32 v2, s{S_T0}, v2")
        self.read_T(TB, sh, 8*rpl, n=nld)
        a("s_waitcnt lgkmcnt(0)")
        self.stamp(1)
        self.gemv_compute(64, TB, 16, 0, 24, 25, {2: (2, 4, 8), 4: (4, 8), 8: (8,)}[lpr], n=nld)
        a("v_lshlrev_b32 v2, 3, v0"); a(f"v_mov_b32 v3, {L_FLG}")
        a(f"s_cmp_eq_u32 s{S_WAVE}, 5"); a("s_cbranch_scc0 L_F_comb")
        a(f"ds_write_b64 v2, v[24:25] offset:{L_QP}")
        a("v_mov_b32 v26, 1")
        a("s_waitcnt lgkmcnt(0)")
        a("ds_write_b32 v3, v26")
        a("s_waitcnt lgkmcnt(0)")
        a("s_branch L_W")
        a.label("L_F_comb")
        a("ds_read_b32 v26, v3")
        a("s_waitcnt lgkmcnt(0)")
        a("v_cmp_eq_u32 vcc, 0, v26")
        a("s_cbranch_vccz L_F_cgot")
        self.spin_guard("L_F_comb", "L_F_cgot", sleep=0)
        a.label("L_F_cgot")
        a(f"ds_read_b64 v[26:27], v2 offset:{L_QP}")
        a("s_waitcnt lgkmcnt(0)")
        a("v_add_f32 v24, v24, v26"); a("v_add_f32 v25, v25, v27")
        a("v_cvt_pk_bf16_f32 v26, v24, v25")
        a(f"v_mov_b32 v27, s{S_TAG}")
        a(f"v_and_b32 v2, {lpr-1}, v0"); a("v_lshlrev_b32 v2, 5, v2")
        a("v_lshrrev_b32 v3, 4, v0"); a("v_lshlrev_b32 v3, 3, v3"); a("v_add_u32 v2, v2, v3")
        a(f"s_mul_i32 s{S_T0+1}, s38, {cols*4}"); a(f"s_add_u32 s{S_T0+1}, s{S_T0+1}, {WS_QG}")
        mk = ((1 << lpr) - 1) * 0x00010001
        a(f"s_mov_b32 exec_lo, {mk:#x}"); a(f"s_mov_b32 exec_hi, {mk:#x}")
        a(f"buffer_store_dwordx2 v[26:27], v2, {S(SRD_WS)}, s{S_T0+1} offen sc1")
        a("s_mov_b64 exec, -1")
        a(f"s_mov_b32 s{S_SPIN}, {SPIN_LIMIT}")
        a.label("L_F_done")
        a(f"s_lshl_b32 s{S_T0}, s{S_G}, 11"); a(f"s_add_u32 s{S_T0}, s{S_T0}, {WS_QG}")
        self.stamp(2)

    def qwave(self):
        a = self.a
        if self.qf:
            assert not self.pool and not self.noa0 and not self.nob and self.early == 3
            self.front()
            self.qwave_rest()
            return
        a.label("L_Q")
        a(f"s_setprio {self.qprio}")
        srd(a, SRD_A, S_X, size=1024)
        srd(a, SRD_B, S_WR, size=1024)
        a(f"s_lshl_b32 s{S_T0}, s{S_G}, 10"); a(f"s_lshl_b32 s{S_T0+1}, s{S_SP}, 5")
        a(f"s_add_u32 s{S_T0}, s{S_T0}, s{S_T0+1}")
        a(f"s_add_u32 s{SRD_C}, s{S_WQ}, s{S_T0}"); a(f"s_addc_u32 s{SRD_C+1}, s{S_WQ+1}, 0")
        a(f"s_sub_u32 s{SRD_C+2}, {512*8192}, s{S_T0}"); a(f"s_mov_b32 s{SRD_C+3}, 0x00020000")
        a("v_lshlrev_b32 v3, 4, v0")
        a(f"buffer_load_dwordx4 v[4:7], v3, {S(SRD_A)}, 0 offen")
        a(f"buffer_load_dwordx4 v[8:11], v3, {S(SRD_B)}, 0 offen")
        a("v_lshrrev_b32 v1, 1, v0"); a("v_lshlrev_b32 v1, 13, v1")
        a("v_and_b32 v2, 1, v0"); a("v_lshlrev_b32 v2, 4, v2"); a("v_add_u32 v1, v1, v2")
        self.gemv_loads(SRD_C, 64, 32*8192)
        a(f"v_mov_b32 v12, {L_CNT}"); a(f"v_mov_b32 v13, {4 if self.pool else 12}")
        a("ds_write_b32 v12, v13")
        self.tab_init()
        a("s_waitcnt lgkmcnt(0)")
        self.stamp(5)
        if not self.noa0: a("s_barrier")
        if self.nob: a("s_barrier")
        if self.pool:
            a(f"s_cmp_lg_u32 s{S_SP}, 0"); a("s_cbranch_scc1 L_Q_nz")
            a(f"s_lshl_b32 s{S_T0}, s{S_G}, 12"); a(f"s_add_u32 s{S_T0}, s{S_T0}, {WS_CNT}")
            a(f"s_add_u32 s{S_CB}, s{S_WS}, s{S_T0}"); a(f"s_addc_u32 s{S_CB+1}, s{S_WS+1}, 0")
            if self.pmap == "w4":
                for k in range(4):
                    a(f"s_mov_b32 s{S_T0+2+k}, 128")
                    a(f"s_atomic_swap s{S_T0+2+k}, s[{S_CB}:{S_CB+1}], {1024*k} glc")
            else:
                a(f"s_mov_b32 s3, {512 if self.pmap == 't4' else 128}")
                a(f"s_atomic_swap s3, s[{S_CB}:{S_CB+1}], 0 glc")
            a.label("L_Q_nz")
        a("s_waitcnt vmcnt(17)")
        self.layernorm()
        a("v_lshrrev_b32 v2, 1, v0"); a("v_lshlrev_b32 v2, 3, v2")
        self.read_T(128, 1, 256)
        a("s_waitcnt lgkmcnt(0)")
        self.stamp(1)
        self.gemv_compute(64, 128, 16, 0, 24, 25, (2, 4, 8))
        self.get_tag()
        a("v_cvt_pk_bf16_f32 v26, v24, v25")
        a(f"v_mov_b32 v27, s{S_TAG}")
        a("v_and_b32 v2, 1, v0"); a("v_lshlrev_b32 v2, 5, v2")
        a("v_lshrrev_b32 v3, 4, v0"); a("v_lshlrev_b32 v3, 3, v3"); a("v_add_u32 v2, v2, v3")
        a(f"s_lshl_b32 s{S_T0}, s{S_G}, 11"); a(f"s_add_u32 s{S_T0}, s{S_T0}, {WS_QG}")
        a(f"s_lshl_b32 s{S_T0+1}, s{S_SP}, 6"); a(f"s_add_u32 s{S_T0+1}, s{S_T0+1}, s{S_T0}")
        a("s_mov_b32 exec_lo, 0x00030003"); a("s_mov_b32 exec_hi, 0x00030003")
        a(f"buffer_store_dwordx2 v[26:27], v2, {S(SRD_WS)}, s{S_T0+1} offen sc1")
        a("s_mov_b64 exec, -1")
        self.stamp(2)
        self.qwave_rest()

    def qwave_rest(self):
        a = self.a
        a("v_mov_b32 v28, 0")
        for k in range(4): a(f"v_dot2c_f32_bf16 v28, v{12+k}, v{8+k}")
        allreduce64(a, 28, 29, "v_add_f32")
        rnd(a, 28)
        a(f"v_mul_f32 v28, s{S_LOG2E}, v28")
        a("v_sub_f32 v28, 0, v28")
        a("v_exp_f32 v28, v28")
        a("v_add_f32 v28, 1.0, v28")
        a("v_rcp_f32 v28, v28")
        rnd(a, 28)
        a(f"v_mov_b32 v29, {L_RS}")
        a("ds_write_b32 v29, v28")
        a("v_lshlrev_b32 v2, 4, v0")
        a("v_lshlrev_b32 v3, 3, v0")
        first = True
        if self.pool:
            a(f"s_lshl_b32 s{S_T0+8}, s{S_G}, 8"); a(f"s_add_u32 s{S_T0+8}, s{S_T0+8}, {WS_XT}")
            a("v_and_b32 v4, 31, v0"); a("v_lshlrev_b32 v4, 3, v4")
        def qloads():
            a(f"buffer_load_dwordx4 v[32:35], v2, {S(SRD_WS)}, s{S_T0} offen sc1")
            a(f"buffer_load_dwordx4 v[36:39], v2, {S(SRD_WS)}, s{S_T0} offen offset:1024 sc1")
            if self.pool: a(f"buffer_load_dwordx2 v[40:41], v4, {S(SRD_WS)}, s{S_T0+8} offen sc1")
        qloads()
        if self.early < 3: a("s_barrier")
        a("s_branch L_Q_chk")
        a.label("L_Q_poll")
        qloads()
        a.label("L_Q_chk")
        a("s_waitcnt vmcnt(0)")
        a(f"v_xor_b32 v30, s{S_TAG}, v33")
        for r in ((35, 37, 39, 41) if self.pool else (35, 37, 39)):
            a(f"v_xor_b32 v31, s{S_TAG}, v{r}"); a("v_or_b32 v30, v30, v31")
        a("v_cmp_ne_u32 vcc, 0, v30")
        a("s_cbranch_vccz L_Q_got")
        self.spin_guard("L_Q_poll", "L_Q_got")
        a.label("L_Q_got")
        a(f"v_add_u32 v3, {L_Q}, v3")
        a("ds_write2_b32 v3, v32, v34 offset0:0 offset1:1")
        a("ds_write2_b32 v3, v36, v38 offset0:128 offset1:129")
        if self.pool:
            a(f"s_getreg_b32 s{S_T0+9}, hwreg(HW_REG_XCC_ID)")
            a(f"v_cmp_ne_u32 vcc, s{S_T0+9}, v40")
            a("s_cmp_eq_u64 vcc, 0")
            a(f"s_cselect_b32 s{S_T0+9}, {0 if self.forceslow else 1}, 0")
            a(f"v_mov_b32 v26, s{S_T0+9}"); a(f"v_mov_b32 v27, {L_SAME}")
            a("ds_write_b32 v27, v26")
        a("s_waitcnt lgkmcnt(0)")
        self.stamp(3)
        if not self.nob: a("s_barrier")
        a(f"s_cmp_ge_u32 s{S_SP}, 28")
        a("s_cbranch_scc1 L_Q_end")
        U, MM, CBK, KC = S_T0+4, S_T0+5, S_T0+6, S_T0+7
        a(f"s_mul_i32 s{U}, s{S_G}, 28"); a(f"s_add_u32 s{U}, s{U}, s{S_SP}")
        a(f"s_cmp_ge_u32 s{U}, 112"); a(f"s_cselect_b32 s{MM}, 1, 0")
        a(f"s_mul_i32 s{S_T0}, s{MM}, 112"); a(f"s_sub_u32 s{U}, s{U}, s{S_T0}")
        a(f"s_lshr_b32 s{CBK}, s{U}, 2"); a(f"s_and_b32 s{KC}, s{U}, 3")
        a(f"s_mul_i32 s{S_T0}, s{KC}, {128*3584}"); a(f"s_lshl_b32 s{S_T0+1}, s{CBK}, 7")
        a(f"s_add_u32 s{S_T0}, s{S_T0}, s{S_T0+1}")
        a(f"s_cmp_eq_u32 s{MM}, 0"); a("s_cbranch_scc0 L_Q_up")
        a(f"s_add_u32 s{SRD_C}, s{S_WG}, s{S_T0}"); a(f"s_addc_u32 s{SRD_C+1}, s{S_WG+1}, 0")
        a("s_branch L_Q_srd")
        a.label("L_Q_up")
        a(f"s_add_u32 s{SRD_C}, s{S_WU}, s{S_T0}"); a(f"s_addc_u32 s{SRD_C+1}, s{S_WU+1}, 0")
        a.label("L_Q_srd")
        a(f"s_sub_u32 s{SRD_C+2}, {512*3584}, s{S_T0}"); a(f"s_mov_b32 s{SRD_C+3}, 0x00020000")
        a("v_lshrrev_b32 v1, 3, v0"); a(f"s_mov_b32 s{S_T0+2}, 3584"); a(f"v_mul_lo_u32 v1, v1, s{S_T0+2}")
        a("v_and_b32 v2, 7, v0"); a("v_lshlrev_b32 v2, 4, v2"); a("v_add_u32 v1, v1, v2")
        self.gemv_loads(SRD_C, 64, 8*3584)
        a("v_lshrrev_b32 v2, 3, v0"); a("v_lshlrev_b32 v2, 3, v2")
        a(f"s_lshl_b32 s{S_T0}, s{KC}, 10"); a(f"v_add_u32 v2, s{S_T0}, v2")
        self.read_T(128, 3, 64)
        a("s_waitcnt lgkmcnt(0)")
        self.gemv_compute(64, 128, 16, 0, 24, 26, (8,))
        a(f"v_mov_b32 v25, s{S_TAG}"); a(f"v_mov_b32 v27, s{S_TAG}")
        a(f"s_lshl_b32 s{S_T0}, s{MM}, 2"); a(f"s_add_u32 s{S_T0}, s{S_T0}, s{KC}")
        a(f"s_mul_i32 s{S_T0}, s{S_T0}, {1792*8}"); a(f"s_lshl_b32 s{S_T0+1}, s{CBK}, 9")
        a(f"s_add_u32 s{S_T0}, s{S_T0}, s{S_T0+1}"); a(f"s_add_u32 s{S_T0}, s{S_T0}, {WS_GU}")
        a("v_and_b32 v2, 7, v0"); a("v_lshlrev_b32 v2, 6, v2")
        a("v_lshrrev_b32 v3, 4, v0"); a("v_lshlrev_b32 v3, 4, v3"); a("v_add_u32 v2, v2, v3")
        a("s_mov_b32 exec_lo, 0x00ff00ff"); a("s_mov_b32 exec_hi, 0x00ff00ff")
        a(f"buffer_store_dwordx4 v[24:27], v2, {S(SRD_WS)}, s{S_T0} offen sc1")
        a("s_mov_b64 exec, -1")
        a.label("L_Q_end")
        self.stamp(4)
        self.server()
        if self.spin and self.spin.startswith("Q"):
            k = int(self.spin[1:])
            a("s_waitcnt lgkmcnt(0)")
            a(f"v_mov_b32 v30, {L_RS+16}")
            for r in range(4): a(f"v_mov_b32 v{32+r}, s{S_TS+2*k}")
            a("ds_write_b128 v30, v[32:35]"); a("s_waitcnt lgkmcnt(0)")
        self.dump_stamps(7 if self.dyn else 6, 1)
        self.hdump([(2, 7, "max"), (3, 8, "max"), (1, 14, "max"), (4, 9, "max")], nsleep=0)
        a("s_waitcnt vmcnt(0)")
        a("s_branch L_end")

    def masked_gemv(self, pv, wb0, n, PB=32, D0=56, D1=60):
        a = self.a
        for i0 in range(0, n, 4):
            m = min(4, n - i0)
            for r in range(m):
                a(f"v_and_b32 v{PB+4*r+2}, v{pv+i0+r}, v5")
                a(f"v_and_b32 v{PB+4*r+3}, v{pv+i0+r}, v7")
            for r in range(m):
                wb = wb0 + 4*(i0+r)
                a(f"v_mfma_f32_16x16x32_bf16 {V4(D0)}, {V4(PB+4*r+2)}, {V4(wb)}, {V4(D0)}")
                a(f"v_mfma_f32_16x16x32_bf16 {V4(D1)}, {V4(PB+4*r)}, {V4(wb)}, {V4(D1)}")

    def wwave(self):
        a = self.a
        a.label("L_W")
        RB, CB, PART = S_T0+10, S_T0+11, S_T0+12
        a(f"s_lshr_b32 s{RB}, s{S_SP}, 2"); a(f"s_and_b32 s{CB}, s{S_SP}, 3")
        a(f"s_lshl_b32 s{PART}, s{S_G}, 3"); a(f"s_add_u32 s{PART}, s{PART}, s{RB}")
        a(f"s_lshl_b32 s{S_T0}, s{PART}, 16")
        a(f"s_lshl_b32 s{S_T0+1}, s{CB}, 8"); a(f"s_add_u32 s{S_T0}, s{S_T0}, s{S_T0+1}")
        srd(a, SRD_A, S_WO, S_T0, size=65536)
        a(f"s_sub_u32 s{SRD_A+2}, 65536, s{S_T0+1}")
        a(f"s_mul_i32 s{S_T0}, s{PART}, {28*1024}"); a(f"s_add_u32 s{S_T0}, s{S_T0}, s{S_T0+1}")
        srd(a, SRD_D, S_WD, S_T0, size=28*1024)
        a(f"s_sub_u32 s{SRD_D+2}, {28*1024}, s{S_T0+1}")
        srd(a, SRD_B, S_X, size=1024)
        srd(a, SRD_C, S_OUT, size=1024)
        a("v_lshrrev_b32 v1, 4, v0"); a("v_lshlrev_b32 v1, 10, v1")
        a("v_and_b32 v2, 15, v0"); a("v_lshlrev_b32 v2, 4, v2"); a("v_add_u32 v1, v1, v2")
        if self.fasta0 and not self.noa0 and not self.qf:
            self.stamp(6)
            a("s_barrier")
        if not self.qf: self.get_tag()
        a(f"s_getreg_b32 s{S_T0+9}, hwreg(HW_REG_XCC_ID)")
        a(f"s_lshl_b32 s{S_T0+8}, s{S_G}, 8"); a(f"s_add_u32 s{S_T0+8}, s{S_T0+8}, {WS_XT}")
        a(f"s_lshl_b32 s{S_T0}, s{S_SP}, 3")
        a(f"v_mov_b32 v16, s{S_T0+9}"); a(f"v_mov_b32 v17, s{S_TAG}"); a(f"v_mov_b32 v18, s{S_T0}")
        a("s_mov_b64 exec, 1")
        a(f"buffer_store_dwordx2 v[16:17], v18, {S(SRD_WS)}, s{S_T0+8} offen sc1")
        a("s_mov_b64 exec, -1")
        if not self.fasta0 and not self.noa0 and not self.qf:
            self.stamp(6)
            a("s_barrier")
        if self.early < 3: a("s_barrier")
        a("s_barrier")
        a(f"s_setprio {self.auxprio}")
        WO = 64; WD = 128
        a(f"s_mov_b32 s{S_OFF}, 0")
        for i in range(16):
            a(f"buffer_load_dwordx4 {V4(WO+4*i)}, v1, {S(SRD_A)}, s{S_OFF} offen {self.wflag}")
            if i < 15: a(f"s_add_u32 s{S_OFF}, s{S_OFF}, 4096")
        a(f"s_mov_b32 s{S_OFF}, 0")
        for i in range(7):
            a(f"buffer_load_dwordx4 {V4(WD+4*i)}, v1, {S(SRD_D)}, s{S_OFF} offen {self.wflag}")
            if i < 6: a(f"s_add_u32 s{S_OFF}, s{S_OFF}, 4096")
        a(f"s_lshl_b32 s{S_T0+2}, s{S_G}, 7"); a(f"s_lshl_b32 s{S_T0+3}, s{S_SP}, 2")
        a(f"s_add_u32 s{S_T0+2}, s{S_T0+2}, s{S_T0+3}")
        a(f"v_mov_b32 v2, s{S_T0+2}")
        a(f"buffer_load_dword v8, v2, {S(SRD_B)}, 0 offen")
        a(f"s_lshl_b32 s{S_T0+3}, s{S_T0+2}, 2")
        a(f"v_mov_b32 v3, s{S_T0+3}")
        a(f"ds_read_b128 v[12:15], v3 offset:{L_T}")
        a(f"v_mov_b32 v3, {L_RS}")
        a("ds_read_b32 v9, v3")
        self.masksXY(5, 7, 28)
        for k in range(5):
            a(f"v_mov_b32 v{32+4*k}, 0"); a(f"v_mov_b32 v{33+4*k}, 0")
        for k in range(8): a(f"v_mov_b32 v{56+k}, 0")
        a(f"s_mov_b32 s{S_M1}, 0xffff0000"); a(f"s_mov_b32 s{S_M1+1}, 0xffff0000")
        a(f"s_mov_b32 s{S_M2}, 0"); a(f"s_mov_b32 s{S_M2+1}, -1")
        a(f"s_mul_i32 s{S_T0+4}, s{PART}, {28*8}"); a(f"s_add_u32 s{S_T0+4}, s{S_T0+4}, {WS_GU}")
        a(f"s_add_u32 s{S_T0+5}, s{S_T0+4}, {4*1792*8}")
        a("v_lshrrev_b32 v10, 4, v0"); a(f"s_mov_b32 s{S_T0}, {1792*8}"); a(f"v_mul_lo_u32 v10, v10, s{S_T0}")
        a("v_and_b32 v11, 15, v0"); a("v_min_u32 v11, 13, v11"); a("v_lshlrev_b32 v11, 4, v11")
        a("v_add_u32 v10, v10, v11")
        a("v_and_b32 v11, 31, v0"); a("v_lshlrev_b32 v11, 3, v11")
        a.label("L_W_ypoll")
        a(f"buffer_load_dwordx4 v[16:19], v10, {S(SRD_WS)}, s{S_T0+4} offen sc1")
        a(f"buffer_load_dwordx4 v[20:23], v10, {S(SRD_WS)}, s{S_T0+5} offen sc1")
        a(f"buffer_load_dwordx2 v[24:25], v11, {S(SRD_WS)}, s{S_T0+8} offen sc1")
        a("s_waitcnt vmcnt(0)")
        a(f"v_xor_b32 v30, s{S_TAG}, v17")
        for r in (19, 21, 23, 25):
            a(f"v_xor_b32 v31, s{S_TAG}, v{r}"); a("v_or_b32 v30, v30, v31")
        a("v_cmp_ne_u32 vcc, 0, v30")
        a("s_cbranch_vccz L_W_ygot")
        self.spin_guard("L_W_ypoll", "L_W_ygot", sleep=32)
        a.label("L_W_ygot")
        a(f"v_cmp_ne_u32 vcc, s{S_T0+9}, v24")
        a("s_cmp_eq_u64 vcc, 0")
        a(f"s_cselect_b32 s{S_T0}, {0 if self.forceslow else 1}, 0")
        a(f"v_mov_b32 v26, s{S_T0}"); a(f"v_mov_b32 v27, {L_SAME}")
        a("ds_write_b32 v27, v26")
        for v in (16, 18, 20, 22): rows_reduce(a, v, 30, "v_add_f32")
        for v in (16, 18, 20, 22): rnd(a, v)
        for v in (16, 18):
            a(f"v_mul_f32 v28, s{S_LOG2E}, v{v}")
            a("v_sub_f32 v28, 0, v28")
            a("v_exp_f32 v28, v28")
            a("v_add_f32 v28, 1.0, v28")
            a("v_rcp_f32 v28, v28")
            a(f"v_mul_f32 v{v}, v{v}, v28")
            rnd(a, v)
        a("v_mul_f32 v16, v16, v20"); a("v_mul_f32 v18, v18, v22")
        a("v_cvt_pk_bf16_f32 v16, v16, v16"); a("v_cvt_pk_bf16_f32 v18, v18, v18")
        a("v_and_b32 v20, 1, v0"); a("v_lshlrev_b32 v20, 7, v20")
        a("v_bfe_u32 v21, v0, 1, 3"); a("v_lshlrev_b32 v21, 2, v21"); a("v_add_u32 v20, v20, v21")
        a("s_mov_b64 exec, 0x3fff")
        a(f"ds_write_b32 v20, v16 offset:{L_HP}")
        a(f"ds_write_b32 v20, v18 offset:{L_HP+64}")
        a("s_mov_b64 exec, -1")
        a("v_lshrrev_b32 v24, 4, v0"); a("v_lshlrev_b32 v24, 6, v24")
        a("s_waitcnt lgkmcnt(0)")
        HV = 160
        for k in range(2):
            a(f"ds_read_b128 {V4(HV+4*k)}, v24 offset:{L_HP+16*k}")
        a("s_waitcnt lgkmcnt(0)")
        self.masked_gemv(HV, WD, 7)
        for k in range(8): a(f"v_mul_f32 v{56+k}, v{56+k}, v9")
        a("v_lshlrev_b32 v12, 16, v8"); a(f"v_and_b32 v14, s{S_HI}, v8")
        a("v_add_f32 v12, v12, v13"); a("v_add_f32 v14, v14, v15")
        a(f"s_lshl_b32 s{S_T0+6}, s{PART}, 12")
        a(f"s_lshl_b32 s{S_T0+7}, s{CB}, 10"); a(f"s_add_u32 s{S_T0+6}, s{S_T0+6}, s{S_T0+7}")
        a(f"s_add_u32 s{S_T0+6}, s{S_T0+6}, {WS_AP}")
        a("v_and_b32 v20, 15, v0"); a("v_lshlrev_b32 v20, 6, v20")
        a("v_lshrrev_b32 v21, 4, v0"); a("v_lshlrev_b32 v21, 4, v21"); a("v_add_u32 v20, v20, v21")
        a(f"s_lshl_b32 s{S_T0+7}, s{S_T0+2}, 2"); a(f"s_add_u32 s{S_T0+7}, s{S_T0+7}, {WS_AP}")
        a("v_lshlrev_b32 v10, 12, v0")
        a("v_lshlrev_b32 v22, 2, v0")
        a("v_and_b32 v23, 3, v0"); a("v_lshlrev_b32 v23, 6, v23")
        a("v_lshrrev_b32 v25, 2, v0"); a("v_lshlrev_b32 v25, 2, v25"); a("v_add_u32 v23, v23, v25")
        a(f"v_mov_b32 v29, s{S_TAG}"); a(f"v_mov_b32 v31, s{S_TAG}")
        a(f"s_mov_b32 s{S_SPIN}, {SPIN_LIMIT}")
        a("s_waitcnt lgkmcnt(0)")
        self.stamp(1)
        a("s_barrier")
        a("s_barrier")
        self.stamp(2)
        for k in range(4):
            a(f"ds_read_b32 v{16+k}, v22 offset:{L_G+256*k}")
        a("s_waitcnt lgkmcnt(0)")
        a("v_add_f32 v16, v16, v17"); a("v_add_f32 v18, v18, v19"); a("v_add_f32 v26, v16, v18")
        a("v_cvt_pk_bf16_f32 v26, v26, v26")
        a(f"ds_write_b32 v23, v26 offset:{L_PP}")
        a("s_waitcnt lgkmcnt(0)")
        PPV = 168
        for k in range(4):
            a(f"ds_read_b128 {V4(PPV+4*k)}, v24 offset:{L_PP+16*k}")
        a("s_waitcnt lgkmcnt(0)")
        D0 = 56; D1 = 60
        self.masked_gemv(PPV, 64, 16)
        m1 = f"s[{S_M1}:{S_M1+1}]"; m2 = f"s[{S_M2}:{S_M2+1}]"
        a(f"v_cndmask_b32 v26, v{D0}, v{D0+2}, {m1}")
        a(f"v_cndmask_b32 v27, v{D1}, v{D1+2}, {m1}")
        a(f"v_cndmask_b32 v28, v26, v27, {m2}")
        a(f"v_cndmask_b32 v26, v{D0+1}, v{D0+3}, {m1}")
        a(f"v_cndmask_b32 v27, v{D1+1}, v{D1+3}, {m1}")
        a(f"v_cndmask_b32 v30, v26, v27, {m2}")
        a(f"buffer_store_dwordx4 v[28:31], v20, {S(SRD_WS)}, s{S_T0+6} offen sc1")
        self.stamp(3)
        a.label("L_W_apoll")
        a(f"buffer_load_dwordx4 v[24:27], v10, {S(SRD_WS)}, s{S_T0+7} offen sc1")
        a("s_waitcnt vmcnt(0)")
        a(f"v_xor_b32 v16, s{S_TAG}, v25")
        a(f"v_xor_b32 v17, s{S_TAG}, v27"); a("v_or_b32 v16, v16, v17")
        a("v_cmp_ne_u32 vcc, 0, v16")
        a("s_cbranch_vccz L_W_agot")
        self.spin_guard("L_W_apoll", "L_W_agot")
        a.label("L_W_agot")
        self.stamp(4)
        allreduce64(a, 24, 16, "v_add_f32"); allreduce64(a, 26, 17, "v_add_f32")
        a("v_add_f32 v24, v24, v12"); a("v_add_f32 v26, v26, v14")
        if self.perturb:
            import struct
            bits = struct.unpack("<I", struct.pack("<f", float(self.perturb)))[0]
            a(f"v_add_f32 v24, {bits:#x}, v24"); a(f"v_add_f32 v26, {bits:#x}, v26")
        a("v_cvt_pk_bf16_f32 v24, v24, v26")
        a("s_mov_b64 exec, 1")
        a(f"buffer_store_dword v24, v2, {S(SRD_C)}, 0 offen")
        a("s_cmp_lg_u32 s2, 0")
        a("s_cbranch_scc1 L_W_noep")
        a(f"v_mov_b32 v25, s{S_TAG}"); a("v_mov_b32 v26, 0")
        a(f"buffer_store_dword v25, v26, {S(SRD_WS)}, 0 offen sc1")
        a.label("L_W_noep")
        a("s_mov_b64 exec, -1")
        self.stamp(5)
        if self.spin:
            if self.spin[0] in "SQ":
                a(f"v_mov_b32 v3, {L_RS+16}"); a("ds_read_b128 v[4:7], v3"); a("s_waitcnt lgkmcnt(0)")
                a("v_max_u32 v4, v4, v5"); a("v_max_u32 v6, v6, v7"); a("v_max_u32 v4, v4, v6")
                a(f"v_readfirstlane_b32 s{S_T0}, v4")
            else:
                k = int(self.spin[1:])
                a("s_waitcnt lgkmcnt(0)")
                a(f"s_mov_b32 s{S_T0}, s{S_TS+2*k}")
            a(f"s_add_u32 s{S_T0}, s{S_T0}, 10000")
            a.label("L_spin")
            a(f"s_memrealtime s[{S_T0+2}:{S_T0+3}]"); a("s_waitcnt lgkmcnt(0)")
            a(f"s_sub_u32 s{S_T0+4}, s{S_T0+2}, s{S_T0}")
            a(f"s_cmp_lt_i32 s{S_T0+4}, 0")
            a("s_cbranch_scc1 L_spin")
        self.dump_stamps(7, 3)
        self.hdump([(0, 0, "min"), (5, 1, "max"), (1, 10, "max"), (3, 11, "max"), (4, 12, "max"), (0, 13, "max")])
        a("s_waitcnt vmcnt(0)")

    def build(self):
        self.prologue()
        self.swave()
        self.qwave()
        self.wwave()
        self.a.label("L_end")
        self.a("s_endpgm")
        body = self.a.text()
        stub = open("parallel_sum__gqa_block_cached__moe_arch_mod__decode.s.ref").read()
        head = stub[:stub.index("; @launch")]
        txt = head + f"; @launch grid=(256,1,1) block=(384,1,1) lds={LDS_BYTES}\n"
        txt += f""".amdgcn_target "amdgcn-amd-amdhsa--gfx950"
.text
.globl {KNAME}
.p2align 8
.type {KNAME},@function
{KNAME}:
{body}
.section .rodata,"a"
.p2align 6
.amdhsa_kernel {KNAME}
  .amdhsa_next_free_vgpr 256
  .amdhsa_next_free_sgpr 102
  .amdhsa_accum_offset 256
  .amdhsa_group_segment_fixed_size 0
  .amdhsa_kernarg_size 104
  .amdhsa_user_sgpr_count 2
  .amdhsa_user_sgpr_kernarg_segment_ptr 1
  .amdhsa_system_sgpr_workgroup_id_x 1
.end_amdhsa_kernel
"""
        return txt

if __name__ == "__main__":
    import argparse
    p = argparse.ArgumentParser()
    p.add_argument("--dbg", action="store_true")
    p.add_argument("--wflag", default="nt")
    p.add_argument("--hdbg", action="store_true")
    p.add_argument("--spin", default=None)
    p.add_argument("--perturb", default=None)
    p.add_argument("--forceslow", action="store_true")
    p.add_argument("--nofast", action="store_true")
    p.add_argument("--auxprio", type=int, default=3)
    p.add_argument("--qprio", type=int, default=3)
    p.add_argument("--early", type=int, default=3)
    p.add_argument("--nob", action="store_true")
    p.add_argument("--ilv", action="store_true")
    p.add_argument("--series", action="store_true")
    p.add_argument("--nodrain", action="store_true")
    p.add_argument("--fasta0", action="store_true")
    p.add_argument("--noa0", action="store_true")
    p.add_argument("--ppoll", type=int, default=0)
    p.add_argument("--pool", action="store_true")
    p.add_argument("--pmap", default="blk")
    p.add_argument("--nstat", type=int, default=16)
    p.add_argument("--rot", type=int, default=0)
    p.add_argument("--atlat", action="store_true")
    p.add_argument("--vrot", type=int, default=0)
    p.add_argument("--grot", type=int, default=0)
    p.add_argument("--qf", type=int, default=0)
    p.add_argument("--dyn", type=int, default=0)
    p.add_argument("--dlook", type=int, default=2)
    p.add_argument("--dsleep", type=int, default=4)
    p.add_argument("-o", default="parallel_sum__gqa_block_cached__moe_arch_mod__decode.s")
    args = p.parse_args()
    g = Gen(dbg=args.dbg, wflag=args.wflag, hdbg=args.hdbg, spin=args.spin, perturb=args.perturb,
            forceslow=args.forceslow, auxprio=args.auxprio, qprio=args.qprio, nofast=args.nofast, early=args.early, nob=args.nob, ilv=args.ilv, series=args.series, drain=not args.nodrain, fasta0=args.fasta0, ppoll=args.ppoll, noa0=args.noa0, pool=args.pool, pmap=args.pmap, nstat=args.nstat, rot=args.rot, atlat=args.atlat, vrot=args.vrot, grot=args.grot, qf=args.qf, dyn=args.dyn, dlook=args.dlook, dsleep=args.dsleep)
    t = g.build()
    open(args.o, "w").write(t)
    print("wrote", args.o, len(t), "bytes")
```

```python
import sys
from asmlib import Asm

KNAME = "parallel_sum__gqa_block_cached__moe_arch_mod__decode_kernel"
WS_QG = 0x1000
WS_XT = 0x6000
WS_ST = 0x8000
WS_AP = 0x10000
WS_GU = 0x60000
WS_OP = 0x100000
WS_CNT = 0xA0000
WS_QP = 0x80000
WS_DBG = 0x200000
WS_SIZE = 0x300000
L_T = 0; L_Q = 4096; L_O = 5120; L_ST = 13312; L_G = 13568; L_PP = 14592; L_RS = 14848
L_CNT = 14852; L_SAME = 14856; L_HP = 14912; L_TAB = 15168; NTAB = 40
LDS_BYTES = 15360
SPIN_LIMIT = 40000

S_X, S_K, S_V, S_WQ, S_WO, S_WR, S_WG, S_WU, S_WD, S_OUT, S_WS = 8, 10, 12, 14, 16, 20, 22, 24, 26, 28, 32
S_G, S_SP, S_WAVE, S_TAG = 34, 35, 36, 37
SRD_WS = 40
SRD_A = 44
SRD_B = 48
SRD_C = 52
SRD_D = 4
S_OFF = 56
S_SO = 3
S_OFFS = (76, 77, 78)
S_SPIN = 57
S_HI = 58
S_LOG2E = 59
S_SCALE = 60
S_M1 = 62
S_M2 = 64
S_T0 = 66
S_TS = 80
S_DR = 74
S_CB = 38
S_TK = 79
S_RND = 75

def srd(a, d, base, off_sgpr=None, off_imm=0, size=0):
    if off_sgpr is not None:
        a(f"s_add_u32 s{d}, s{base}, s{off_sgpr}")
        a(f"s_addc_u32 s{d+1}, s{base+1}, 0")
    else:
        a(f"s_mov_b32 s{d}, s{base}")
        a(f"s_mov_b32 s{d+1}, s{base+1}")
    a(f"s_mov_b32 s{d+2}, {size:#x}")
    a(f"s_mov_b32 s{d+3}, 0x00020000")

def S(d): return f"s[{d}:{d+3}]"
def V4(r): return f"v[{r}:{r+3}]"
def V2(r): return f"v[{r}:{r+1}]"

def allreduce64(a, v, t, op):
    a(f"{op}_dpp v{v}, v{v}, v{v} quad_perm:[1,0,3,2] row_mask:0xf bank_mask:0xf")
    a(f"{op}_dpp v{v}, v{v}, v{v} quad_perm:[2,3,0,1] row_mask:0xf bank_mask:0xf")
    a(f"{op}_dpp v{v}, v{v}, v{v} row_half_mirror row_mask:0xf bank_mask:0xf")
    a(f"{op}_dpp v{v}, v{v}, v{v} row_mirror row_mask:0xf bank_mask:0xf")
    rows_reduce(a, v, t, op)

def rows_reduce(a, v, t, op):
    a(f"v_mov_b32 v{t}, v{v}")
    a(f"v_permlane16_swap_b32 v{v}, v{t}")
    a(f"{op} v{v}, v{v}, v{t}")
    a(f"v_mov_b32 v{t}, v{v}")
    a(f"v_permlane32_swap_b32 v{v}, v{t}")
    a(f"{op} v{v}, v{v}, v{t}")

def rnd(a, v):
    a(f"v_cvt_pk_bf16_f32 v{v}, v{v}, v{v}")
    a(f"v_and_b32 v{v}, s{S_HI}, v{v}")

class Gen:
    def __init__(self, dbg=False, wflag="nt", hdbg=False, spin=None, perturb=None, forceslow=False, auxprio=3, qprio=3, nofast=False, early=3, nob=False, ilv=False, series=False, drain=True, fasta0=False, ppoll=0, noa0=False, pool=False, pmap='blk', nstat=16, rot=0, atlat=False, vrot=0, grot=0, qf=0, dyn=0, dlook=2, dsleep=4, ltag=False, pre=0, st2=False, hold=False, qt=0, qown=False, solo=False):
        self.hdbg = hdbg; self.spin = spin; self.perturb = perturb
        if hdbg: dbg = False
        self.dbg = dbg; self.wflag = wflag; self.forceslow = forceslow; self.auxprio = auxprio; self.qprio = qprio
        self.nofast = nofast; self.early = early; self.nob = nob; self.ilv = ilv; self.series = series; self.drain = drain; self.fasta0 = fasta0; self.ppoll = ppoll; self.noa0 = noa0; self.pool = pool; self.pmap = pmap; self.nstat = nstat; self.rot = rot; self.atlat = atlat; self.vrot = vrot; self.grot = grot; self.qf = qf; self.dyn = dyn; self.dlook = dlook; self.dsleep = dsleep; self.ltag = ltag; self.pre = pre; self.st2 = st2; self.hold = hold; self.qt = qt; self.qown = qown; self.solo = solo
        if qt: self.qf = qt
        self.a = Asm()

    def hdump(self, items, nsleep=5):
        if not self.hdbg: return
        a = self.a
        a("s_waitcnt lgkmcnt(0) vmcnt(0)")
        a("s_setprio 0")
        for _ in range(nsleep): a("s_sleep 127")
        srd(a, SRD_C, 30, size=256)
        a("s_mov_b64 exec, 1")
        for (st, w, mode) in items:
            if mode == "min":
                a(f"s_not_b32 s{S_T0}, s{S_TS+2*st}")
                a(f"v_mov_b32 v2, s{S_T0}")
            else:
                a(f"v_mov_b32 v2, s{S_TS+2*st}")
            a(f"v_mov_b32 v3, {4*w}")
            a(f"buffer_atomic_umax v2, v3, {S(SRD_C)}, 0 offen sc1")
            a("s_waitcnt vmcnt(0)")
        a("s_mov_b64 exec, -1")

    def stamp(self, idx):
        if self.dbg or self.hdbg or self.spin:
            self.a(f"s_memrealtime s[{S_TS+2*idx}:{S_TS+2*idx+1}]")

    def dump_stamps(self, n, slot, vt=2):
        if not self.dbg: return
        a = self.a
        a("s_waitcnt lgkmcnt(0) vmcnt(0)")
        a(f"s_lshl_b32 s{S_T0}, s2, 10")
        a(f"s_lshl_b32 s{S_T0+1}, s{S_WAVE}, 7")
        a(f"s_add_u32 s{S_T0}, s{S_T0}, s{S_T0+1}")
        a(f"s_add_u32 s{S_T0}, s{S_T0}, {WS_DBG}")
        a("s_mov_b64 exec, 1")
        a(f"v_mov_b32 v{vt+2}, s{S_T0}")
        for i in range(n):
            a(f"v_mov_b32 v{vt}, s{S_TS+2*i}")
            a(f"v_mov_b32 v{vt+1}, s{S_TS+2*i+1}")
            a(f"buffer_store_dwordx2 {V2(vt)}, v{vt+2}, {S(SRD_WS)}, 0 offen offset:{8*i}")
            a("s_waitcnt vmcnt(0)")
        a("s_mov_b64 exec, -1")

    def spin_guard(self, lab_retry, lab_done, sleep=1):
        a = self.a
        a(f"s_sub_u32 s{S_SPIN}, s{S_SPIN}, 1")
        a(f"s_cmp_eq_u32 s{S_SPIN}, 0")
        a(f"s_cbranch_scc1 {lab_done}")
        if sleep: a(f"s_sleep {sleep}")
        a(f"s_branch {lab_retry}")

    def prologue(self):
        a = self.a
        a("s_cmp_ge_u32 s2, 256")
        a("s_cbranch_scc1 L_end")
        self.stamp(0)
        a("s_load_dwordx16 s[8:23], s[0:1], 0")
        a("s_load_dwordx8 s[24:31], s[0:1], 64")
        a(f"s_load_dwordx2 s[{S_WS}:{S_WS+1}], s[0:1], 96")
        a("v_lshrrev_b32 v1, 6, v0")
        a("v_and_b32 v0, 63, v0")
        a(f"s_and_b32 s{S_G}, s2, 7")
        a(f"s_lshr_b32 s{S_SP}, s2, 3")
        a(f"v_readfirstlane_b32 s{S_WAVE}, v1")
        a(f"s_mov_b32 s{S_HI}, 0xffff0000")
        a(f"s_mov_b32 s{S_LOG2E}, 0x3fb8aa3b")
        a(f"s_mov_b32 s{S_SPIN}, {SPIN_LIMIT}")
        a("s_waitcnt lgkmcnt(0)")
        if self.st2: self.stamp(6)
        if not self.ltag: a(f"s_load_dword s{S_TAG}, s[{S_WS}:{S_WS+1}], 0")
        srd(a, SRD_WS, S_WS, size=WS_SIZE)
        a(f"s_cmp_lt_u32 s{S_WAVE}, 4")
        a("s_cbranch_scc1 L_S")
        if self.solo:
            a(f"s_cmp_eq_u32 s{S_WAVE}, 4")
            a("s_cbranch_scc1 L_F")
            a("s_branch L_W")
        elif self.qf:
            a("s_branch L_F")
        else:
            a(f"s_cmp_eq_u32 s{S_WAVE}, 4")
            a("s_cbranch_scc1 L_Q")
            a("s_branch L_W")

    def get_tag(self):
        a = self.a
        a("s_waitcnt lgkmcnt(0)")
        a(f"s_add_u32 s{S_TAG}, s{S_TAG}, 1")

    RING = 64
    def issueK(self, slot):
        a = self.a; b = self.RING + 64*slot
        for t in range(2):
            for c in range(4):
                r = b + 16*t + 4*c
                a(f"buffer_load_dwordx4 {V4(r)}, v{1+t}, {S(SRD_A)}, s{S_OFFS[slot]} offen offset:{64*c} nt")
    def issueV(self, slot):
        a = self.a; b = self.RING + 64*slot + 32
        for r8 in range(8):
            r = b + 4*r8
            a(f"buffer_load_dwordx4 {V4(r)}, v{3+(r8>>2)}, {S(SRD_B)}, s{S_OFFS[slot]} offen offset:{1024*(r8&3)} nt")

    def tk2off(self, slot):
        a = self.a
        NS = self.nstat
        if self.pmap == "blk":
            a(f"s_and_b32 s{S_T0}, s{S_TK}, 31"); a(f"s_lshl_b32 s{S_T0}, s{S_T0}, 19")
            a(f"s_lshr_b32 s{S_OFFS[slot]}, s{S_TK}, 5"); a(f"s_add_u32 s{S_OFFS[slot]}, s{S_OFFS[slot]}, {NS-4}")
            a(f"s_lshl_b32 s{S_OFFS[slot]}, s{S_OFFS[slot]}, 13")
            a(f"s_add_u32 s{S_OFFS[slot]}, s{S_OFFS[slot]}, s{S_T0}")
        elif self.pmap == "t4":
            a(f"s_and_b32 s{S_T0}, s{S_TK}, 3"); a(f"s_lshl_b32 s{S_T0}, s{S_T0}, 13")
            a(f"s_bfe_u32 s100, s{S_TK}, 0x50002"); a("s_lshl_b32 s100, s100, 19")
            a(f"s_add_u32 s{S_T0}, s{S_T0}, s100")
            a(f"s_lshr_b32 s{S_OFFS[slot]}, s{S_TK}, 7")
            a(f"s_lshl_b32 s{S_OFFS[slot]}, s{S_OFFS[slot]}, 15")
            a(f"s_add_u32 s{S_OFFS[slot]}, s{S_OFFS[slot]}, s{S_T0}")
            a(f"s_cmp_ge_u32 s{S_TK}, 2048")
            return
        elif self.pmap == "w4":
            a(f"s_and_b32 s{S_T0}, s{S_TK}, 31"); a(f"s_lshl_b32 s{S_T0}, s{S_T0}, 19")
            a(f"s_add_u32 s{S_T0}, s{S_T0}, s75")
            a(f"s_lshr_b32 s{S_OFFS[slot]}, s{S_TK}, 5")
            if self.vrot or self.grot:
                a(f"s_and_b32 s100, s{S_TK}, 31"); a(f"s_mul_i32 s100, s100, {self.vrot}")
                a(f"s_add_u32 s{S_OFFS[slot]}, s{S_OFFS[slot]}, s100")
                a(f"s_add_u32 s{S_OFFS[slot]}, s{S_OFFS[slot]}, s101")
                a(f"s_and_b32 s{S_OFFS[slot]}, s{S_OFFS[slot]}, 15")
            a(f"s_lshl_b32 s{S_OFFS[slot]}, s{S_OFFS[slot]}, 15")
            a(f"s_add_u32 s{S_OFFS[slot]}, s{S_OFFS[slot]}, s{S_T0}")
            a(f"s_cmp_ge_u32 s{S_TK}, 512")
            return
        else:
            raise NotImplementedError
        a(f"s_cmp_ge_u32 s{S_TK}, {32*(64-NS+4)}")

    def fetch_ticket(self, mode):
        a = self.a
        if mode == "pool" and self.pmap in ("w4", "t4"):
            st = a.uniq("L_st"); c2 = a.uniq("L_c2")
            a(f"s_cmp_eq_u32 s3, 0"); a(f"s_cbranch_scc1 {st}")
            a(f"s_mov_b32 s{S_TK}, 1")
            a(f"s_atomic_add s{S_TK}, s[{S_CB}:{S_CB+1}], 0 glc")
            a(f"s_branch {c2}")
            a.label(st)
            if self.rot:
                a(f"s_add_u32 s{S_T0}, s{S_TK}, {self.rot}"); a(f"s_and_b32 s{S_T0}, s{S_T0}, 31")
                a(f"s_add_u32 s{S_TK}, s{S_TK}, 32"); a(f"s_andn2_b32 s{S_TK}, s{S_TK}, 31")
                a(f"s_or_b32 s{S_TK}, s{S_TK}, s{S_T0}")
            else:
                a(f"s_add_u32 s{S_TK}, s{S_TK}, {32 if self.pmap == 'w4' else 128}")
            a.label(c2)
        elif mode == "pool":
            a(f"s_mov_b32 s{S_TK}, 1")
            a(f"s_atomic_add s{S_TK}, s[{S_CB}:{S_CB+1}], 0 glc")
        else:
            a("s_mov_b64 exec, 1")
            a(f"ds_inc_rtn_u32 v0, v10, v5 offset:{L_CNT}")
            a("s_mov_b64 exec, -1")

    def group(self, slot, kwait=40, vwait=40, reissue=True, mode=None):
        a = self.a
        if mode is not None:
            return self.group_p(slot, mode)
        b = self.RING + 64*slot
        SC = 32; PB = 10; D0 = 40; D1 = 44; Q = 48
        vM, vMC, vL, vMX, vMY = 6, 8, 9, 5, 7
        a(f"s_cmp_ge_u32 s{S_OFFS[slot]}, {0x1000000 if (self.ilv or self.dyn) else 0x80000:#x}")
        a("s_cbranch_scc1 L_S_done")
        a("s_mov_b64 exec, 1")
        a(f"ds_inc_rtn_u32 v28, v10, v5 offset:{L_CNT}")
        a("s_mov_b64 exec, -1")
        if self.drain: self.ladder([40, 24, 8])
        else: a(f"s_waitcnt vmcnt({kwait})")
        if self.dyn:
            a("s_mov_b64 exec, 1")
            a("s_waitcnt lgkmcnt(0)")
            a("v_and_b32 v29, -4, v28"); a(f"v_min_u32 v29, {4*(NTAB-1)}, v29")
            a(f"ds_read_b32 v30, v29 offset:{L_TAB}")
            a("s_mov_b64 exec, -1")
        for c in range(4):
            for t in range(2):
                cc = "0" if c == 0 else V4(SC+4*t)
                a(f"v_mfma_f32_16x16x32_bf16 {V4(SC+4*t)}, {V4(b+16*t+4*c)}, {V4(Q+4*c)}, {cc}")
        if self.series: a("s_memrealtime s[96:97]")
        a("s_waitcnt lgkmcnt(0)")
        if self.series:
            a("s_mov_b32 m0, s95"); a("s_nop 4"); a("v_writelane_b32 v0, s96, m0"); a("s_add_u32 s95, s95, 1")
        a(f"v_readfirstlane_b32 s{S_T0}, v28")
        if self.dyn:
            rt = a.uniq("L_rt"); rdy = a.uniq("L_rdy")
            a("v_readfirstlane_b32 s3, v30")
            a("s_cmp_eq_u32 s3, -1"); a(f"s_cbranch_scc0 {rdy}")
            a.label(rt)
            a("s_mov_b64 exec, 1")
            a(f"ds_read_b32 v30, v29 offset:{L_TAB}")
            a("s_mov_b64 exec, -1")
            a("s_waitcnt lgkmcnt(0)")
            a("v_readfirstlane_b32 s3, v30")
            if self.dbg: a("s_add_u32 s94, s94, 1")
            a("s_cmp_eq_u32 s3, -1"); a(f"s_cbranch_scc0 {rdy}")
            self.spin_guard(rt, rdy, sleep=1)
            a.label(rdy)
            a(f"s_and_b32 s{S_T0}, s{S_T0}, 3"); a(f"s_lshl_b32 s{S_T0}, s{S_T0}, 13")
            a(f"s_min_u32 s3, s3, 0x1000000")
            a(f"s_add_u32 s{S_OFFS[slot]}, s3, s{S_T0}")
        elif self.ilv:
            a(f"s_lshl_b32 s{S_T0}, s{S_T0}, 18")
            a(f"s_add_u32 s{S_OFFS[slot]}, s{S_T0}, s79")
        elif self.vrot or self.grot:
            a(f"s_add_u32 s3, s{S_T0}, s75"); a("s_and_b32 s3, s3, 63"); a("s_lshl_b32 s3, s3, 13")
            a(f"s_cmp_ge_u32 s{S_T0}, 64"); a(f"s_cselect_b32 s{S_OFFS[slot]}, 0x80000, s3")
        else:
            a(f"s_lshl_b32 s{S_OFFS[slot]}, s{S_T0}, 13")
        if self.drain:
            inv = a.uniq("L_inv"); cont = a.uniq("L_cont")
            a(f"s_cmp_ge_u32 s{S_OFFS[slot]}, {0x1000000 if (self.ilv or self.dyn) else 0x80000:#x}")
            a(f"s_cbranch_scc0 {cont}")
            a(f"s_add_u32 s{S_DR}, s{S_DR}, 1")
            a(f"s_branch {inv}")
            a.label(cont)
            self.issueK(slot)
            a.label(inv)
        else:
            self.issueK(slot)
        for k in range(4):
            s0 = SC+2*k; t = 28+k
            a(f"v_cvt_pk_bf16_f32 v{t}, v{s0}, v{s0+1}")
        for k in range(4):
            s0 = SC+2*k; t = 28+k
            a(f"v_lshlrev_b32 v{s0}, 16, v{t}")
            a(f"v_and_b32 v{s0+1}, s{S_HI}, v{t}")
        for k in range(4):
            s0 = SC+2*k
            a(f"v_pk_mul_f32 {V2(s0)}, {V2(s0)}, s[{S_SCALE}:{S_SCALE+1}]")
        for k in range(4):
            s0 = SC+2*k; t = 28+k
            a(f"v_cvt_pk_bf16_f32 v{t}, v{s0}, v{s0+1}")
        for k in range(4):
            s0 = SC+2*k; t = 28+k
            a(f"v_lshlrev_b32 v{s0}, 16, v{t}")
            a(f"v_and_b32 v{s0+1}, s{S_HI}, v{t}")
        a(f"v_max3_f32 v28, v{SC}, v{SC+1}, v{SC+2}")
        a(f"v_max3_f32 v29, v{SC+3}, v{SC+4}, v{SC+5}")
        a(f"v_max3_f32 v28, v28, v{SC+6}, v{SC+7}")
        a(f"v_max_f32 v28, v28, v29")
        a(f"v_cmp_gt_f32 vcc, v28, v{vM}")
        skip = a.uniq("L_skip")
        a(f"s_cbranch_vccz {skip}")
        rows_reduce(a, 28, 29, "v_max_f32")
        a(f"v_max_f32 v28, v28, v{vM}")
        a(f"v_mul_f32 v29, s{S_LOG2E}, v28")
        a(f"v_sub_f32 v30, v{vMC}, v29")
        a(f"v_exp_f32 v30, v30")
        a(f"v_mov_b32 v{vM}, v28")
        a(f"v_mov_b32 v{vMC}, v29")
        a(f"v_mul_f32 v{vL}, v{vL}, v30")
        for h in range(4):
            a(f"v_mov_b32_dpp v31, v30 row_newbcast:{4*h} row_mask:{1<<h:#x} bank_mask:0xf")
        for k in range(8):
            a(f"v_mul_f32 v{D0+k}, v{D0+k}, v31")
        a.label(skip)
        for k in range(8):
            a(f"v_fma_f32 v{SC+k}, v{SC+k}, s{S_LOG2E}, -v{vMC}")
        for k in range(8):
            a(f"v_exp_f32 v{SC+k}, v{SC+k}")
        for t in range(2):
            for r in range(4):
                a(f"v_cvt_pk_bf16_f32 v{28+r}, v{SC+4*t+r}, v{SC+4*t+r}")
            for r in range(4):
                a(f"v_and_b32 v{PB+4*r+2}, v{28+r}, v{vMX}")
                a(f"v_and_b32 v{PB+4*r+3}, v{28+r}, v{vMY}")
            if t == 0:
                if self.drain: self.ladder([40, 32, 16, 0])
                else: a(f"s_waitcnt vmcnt({vwait})")
            for r in range(4):
                vb = b + 32 + 4*(4*t+r)
                a(f"v_mfma_f32_16x16x32_bf16 {V4(D0)}, {V4(PB+4*r+2)}, {V4(vb)}, {V4(D0)}")
                a(f"v_mfma_f32_16x16x32_bf16 {V4(D1)}, {V4(PB+4*r)}, {V4(vb)}, {V4(D1)}")
        if self.drain:
            skv = a.uniq("L_skv")
            a(f"s_cmp_lg_u32 s{S_DR}, 0"); a(f"s_cbranch_scc1 {skv}")
            self.issueV(slot)
            a.label(skv)
        else:
            self.issueV(slot)
        a(f"v_pk_add_f32 v[28:29], {V2(SC)}, {V2(SC+2)}")
        a(f"v_pk_add_f32 v[30:31], {V2(SC+4)}, {V2(SC+6)}")
        a(f"v_pk_add_f32 v[28:29], v[28:29], v[30:31]")
        a(f"v_add_f32 v28, v28, v29")
        a(f"v_add_f32 v{vL}, v{vL}, v28")

    def group_p(self, slot, mode):
        a = self.a
        b = self.RING + 64*slot
        SC = 32; PB = 10; D0 = 40; D1 = 44; Q = 48
        vM, vMC, vL, vMX, vMY = 6, 8, 9, 5, 7
        LIM = 0x1000000
        a(f"s_cmp_ge_u32 s{S_OFFS[slot]}, {LIM:#x}")
        a("s_cbranch_scc1 L_S_done")
        self.ladder([40, 24, 8])
        for c in range(4):
            for t in range(2):
                cc = "0" if c == 0 else V4(SC+4*t)
                a(f"v_mfma_f32_16x16x32_bf16 {V4(SC+4*t)}, {V4(b+16*t+4*c)}, {V4(Q+4*c)}, {cc}")
        ser = self.series and mode == "pool"
        if ser: a("s_memrealtime s[96:97]")
        inv = a.uniq("L_inv"); cont = a.uniq("L_cont")
        if self.atlat: a("s_memrealtime s[96:97]")
        a("s_waitcnt lgkmcnt(0)")
        if self.atlat:
            a("s_memrealtime s[98:99]"); a("s_waitcnt lgkmcnt(0)")
            a("s_sub_u32 s96, s98, s96"); a("s_add_u32 s94, s94, s96"); a("s_max_u32 s95, s95, s96")
        if ser:
            a("s_mov_b32 m0, s95"); a("s_nop 4"); a("v_writelane_b32 v0, s96, m0"); a("s_add_u32 s95, s95, 1")
        a(f"s_cmp_lg_u32 s{S_DR}, 0")
        a(f"s_cbranch_scc1 {inv}")
        if mode == "lds":
            a(f"v_readfirstlane_b32 s{S_TK}, v0")
            a(f"s_lshl_b32 s{S_TK}, s{S_TK}, 5"); a(f"s_add_u32 s{S_TK}, s{S_TK}, s{S_SP}")
        self.tk2off(slot)
        a(f"s_cbranch_scc1 {inv}")
        self.fetch_ticket(mode)
        self.issueK(slot)
        a(f"s_branch {cont}")
        a.label(inv)
        a(f"s_mov_b32 s{S_OFFS[slot]}, {LIM:#x}")
        a(f"s_add_u32 s{S_DR}, s{S_DR}, 1")
        a.label(cont)
        for k in range(4):
            s0 = SC+2*k; t = 28+k
            a(f"v_cvt_pk_bf16_f32 v{t}, v{s0}, v{s0+1}")
        for k in range(4):
            s0 = SC+2*k; t = 28+k
            a(f"v_lshlrev_b32 v{s0}, 16, v{t}")
            a(f"v_and_b32 v{s0+1}, s{S_HI}, v{t}")
        for k in range(4):
            s0 = SC+2*k
            a(f"v_pk_mul_f32 {V2(s0)}, {V2(s0)}, s[{S_SCALE}:{S_SCALE+1}]")
        for k in range(4):
            s0 = SC+2*k; t = 28+k
            a(f"v_cvt_pk_bf16_f32 v{t}, v{s0}, v{s0+1}")
        for k in range(4):
            s0 = SC+2*k; t = 28+k
            a(f"v_lshlrev_b32 v{s0}, 16, v{t}")
            a(f"v_and_b32 v{s0+1}, s{S_HI}, v{t}")
        a(f"v_max3_f32 v28, v{SC}, v{SC+1}, v{SC+2}")
        a(f"v_max3_f32 v29, v{SC+3}, v{SC+4}, v{SC+5}")
        a(f"v_max3_f32 v28, v28, v{SC+6}, v{SC+7}")
        a(f"v_max_f32 v28, v28, v29")
        a(f"v_cmp_gt_f32 vcc, v28, v{vM}")
        skip = a.uniq("L_skip")
        a(f"s_cbranch_vccz {skip}")
        rows_reduce(a, 28, 29, "v_max_f32")
        a(f"v_max_f32 v28, v28, v{vM}")
        a(f"v_mul_f32 v29, s{S_LOG2E}, v28")
        a(f"v_sub_f32 v30, v{vMC}, v29")
        a(f"v_exp_f32 v30, v30")
        a(f"v_mov_b32 v{vM}, v28")
        a(f"v_mov_b32 v{vMC}, v29")
        a(f"v_mul_f32 v{vL}, v{vL}, v30")
        for h in range(4):
            a(f"v_mov_b32_dpp v31, v30 row_newbcast:{4*h} row_mask:{1<<h:#x} bank_mask:0xf")
        for k in range(8):
            a(f"v_mul_f32 v{D0+k}, v{D0+k}, v31")
        a.label(skip)
        for k in range(8):
            a(f"v_fma_f32 v{SC+k}, v{SC+k}, s{S_LOG2E}, -v{vMC}")
        for k in range(8):
            a(f"v_exp_f32 v{SC+k}, v{SC+k}")
        for t in range(2):
            for r in range(4):
                a(f"v_cvt_pk_bf16_f32 v{28+r}, v{SC+4*t+r}, v{SC+4*t+r}")
            for r in range(4):
                a(f"v_and_b32 v{PB+4*r+2}, v{28+r}, v{vMX}")
                a(f"v_and_b32 v{PB+4*r+3}, v{28+r}, v{vMY}")
            if t == 0:
                self.ladder([40, 32, 16, 0])
            for r in range(4):
                vb = b + 32 + 4*(4*t+r)
                a(f"v_mfma_f32_16x16x32_bf16 {V4(D0)}, {V4(PB+4*r+2)}, {V4(vb)}, {V4(D0)}")
                a(f"v_mfma_f32_16x16x32_bf16 {V4(D1)}, {V4(PB+4*r)}, {V4(vb)}, {V4(D1)}")
        skv = a.uniq("L_skv")
        a(f"s_cmp_lg_u32 s{S_DR}, 0"); a(f"s_cbranch_scc1 {skv}")
        self.issueV(slot)
        a.label(skv)
        a(f"v_pk_add_f32 v[28:29], {V2(SC)}, {V2(SC+2)}")
        a(f"v_pk_add_f32 v[30:31], {V2(SC+4)}, {V2(SC+6)}")
        a(f"v_pk_add_f32 v[28:29], v[28:29], v[30:31]")
        a(f"v_add_f32 v28, v28, v29")
        a(f"v_add_f32 v{vL}, v{vL}, v28")

    def ladder(self, waits):
        a = self.a
        labs = [a.uniq("L_lad") for _ in waits]
        for i in range(len(waits)-1):
            a(f"s_cmp_eq_u32 s{S_DR}, {i}"); a(f"s_cbranch_scc1 {labs[i]}")
        for i in range(len(waits)-1, -1, -1):
            if i < len(waits)-1: a.label(labs[i])
            a(f"s_waitcnt vmcnt({waits[i]})")

    def masksXY(self, vX, vY, t):
        a = self.a
        a(f"v_and_b32 v{t}, 3, v0")
        a(f"v_mov_b32 v{vX}, 0"); a(f"v_mov_b32 v{vY}, 0")
        a(f"v_mov_b32 v{t+1}, 0xffff")
        a(f"v_mov_b32 v{t+2}, s{S_HI}")
        a(f"v_cmp_eq_u32 vcc, 0, v{t}"); a(f"v_cndmask_b32 v{vX}, v{vX}, v{t+1}, vcc")
        a(f"v_cmp_eq_u32 vcc, 1, v{t}"); a(f"v_cndmask_b32 v{vX}, v{vX}, v{t+2}, vcc")
        a(f"v_cmp_eq_u32 vcc, 2, v{t}"); a(f"v_cndmask_b32 v{vY}, v{vY}, v{t+1}, vcc")
        a(f"v_cmp_eq_u32 vcc, 3, v{t}"); a(f"v_cndmask_b32 v{vY}, v{vY}, v{t+2}, vcc")

    def swave(self):
        a = self.a
        a.label("L_S")
        if self.ltag: a(f"s_load_dword s{S_TAG}, s[{S_WS}:{S_WS+1}], 0")
        a(f"s_lshl_b32 s{S_T0}, s{S_G}, 24")
        wide = self.ilv or self.pool or self.dyn
        if not wide:
            a(f"s_lshl_b32 s{S_T0+1}, s{S_SP}, 19")
            a(f"s_add_u32 s{S_T0}, s{S_T0}, s{S_T0+1}")
        srd(a, SRD_A, S_K, S_T0, size=0x1000000 if wide else 0x80000)
        srd(a, SRD_B, S_V, S_T0, size=0x1000000 if wide else 0x80000)
        a(f"s_lshl_b32 s79, s{S_SP}, 13")
        a("v_and_b32 v1, 3, v0"); a("v_lshlrev_b32 v1, 10, v1")
        a("v_bfe_u32 v2, v0, 2, 2"); a("v_lshlrev_b32 v2, 8, v2"); a("v_add_u32 v1, v1, v2")
        a("v_lshrrev_b32 v2, 4, v0"); a("v_lshlrev_b32 v2, 4, v2"); a("v_add_u32 v1, v1, v2")
        a("v_add_u32 v2, 0x1000, v1")
        a("v_lshlrev_b32 v3, 4, v0"); a("v_add_u32 v4, 0x1000, v3")
        for k in range(3):
            if self.ilv:
                a(f"s_lshl_b32 s{S_OFFS[k]}, s{S_WAVE}, 18")
                a(f"s_add_u32 s{S_OFFS[k]}, s{S_OFFS[k]}, s79")
                if k: a(f"s_add_u32 s{S_OFFS[k]}, s{S_OFFS[k]}, {(4<<18)*k}")
            elif (self.vrot or self.grot):
                if k == 0:
                    a(f"s_mul_i32 s92, s{S_SP}, {self.vrot}"); a(f"s_mul_i32 s93, s{S_G}, {self.grot}")
                    a("s_add_u32 s92, s92, s93"); a("s_and_b32 s92, s92, 15")
                a(f"s_add_u32 s{S_OFFS[k]}, s92, {k}"); a(f"s_and_b32 s{S_OFFS[k]}, s{S_OFFS[k]}, 15")
                a(f"s_lshl_b32 s{S_OFFS[k]}, s{S_OFFS[k]}, 15")
                a(f"s_lshl_b32 s93, s{S_WAVE}, 13"); a(f"s_add_u32 s{S_OFFS[k]}, s{S_OFFS[k]}, s93")
                if self.pool:
                    if k == 0: a(f"s_lshl_b32 s79, s{S_SP}, 19")
                    a(f"s_add_u32 s{S_OFFS[k]}, s{S_OFFS[k]}, s79")
            else:
                a(f"s_lshl_b32 s{S_OFFS[k]}, s{S_WAVE}, 13")
                if k: a(f"s_add_u32 s{S_OFFS[k]}, s{S_OFFS[k]}, {32768*k}")
                if self.pool or self.dyn:
                    if k == 0: a(f"s_lshl_b32 s79, s{S_SP}, 19")
                    a(f"s_add_u32 s{S_OFFS[k]}, s{S_OFFS[k]}, s79")
        if self.pre == 1:
            b0 = self.RING
            a(f"buffer_load_dwordx4 {V4(b0)}, v1, {S(SRD_A)}, s{S_OFFS[0]} offen offset:0 nt")
            a(f"buffer_load_dwordx4 {V4(b0+32)}, v3, {S(SRD_B)}, s{S_OFFS[0]} offen offset:0 nt")
        if self.pre == 2:
            self.issueK(0)
        if not self.noa0: a("s_barrier")
        self.stamp(1)
        if self.pre == 9:
            b0 = self.RING
            a(f"buffer_load_dwordx4 {V4(b0)}, v1, {S(SRD_A)}, s{S_OFFS[0]} offen offset:0 nt")
            a("s_waitcnt vmcnt(0)"); a("s_memrealtime s[92:93]")
            a(f"buffer_load_dwordx4 {V4(b0+32)}, v3, {S(SRD_B)}, s{S_OFFS[0]} offen offset:0 nt")
            a("s_waitcnt vmcnt(0)"); a("s_memrealtime s[98:99]"); a("s_waitcnt lgkmcnt(0)")
            a("s_mov_b32 s100, s92"); a("s_mov_b32 s101, s98")
        if self.hold: a("s_barrier")
        for slot in range(3):
            if slot == self.early: a("s_barrier")
            if self.pre == 2 and slot == 0: self.issueV(slot)
            else: self.issueK(slot); self.issueV(slot)
        self.masksXY(5, 7, 28)
        for k in range(5):
            a(f"v_mov_b32 v{10+4*k}, 0"); a(f"v_mov_b32 v{11+4*k}, 0")
        for k in range(8): a(f"v_mov_b32 v{40+k}, 0")
        a("v_mov_b32 v6, 0xff800000"); a("v_mov_b32 v8, 0xff800000"); a("v_mov_b32 v9, 0")
        a(f"s_mov_b32 s{S_SCALE}, 0x3db504f3"); a(f"s_mov_b32 s{S_SCALE+1}, 0x3db504f3")
        a("v_bfe_u32 v28, v0, 2, 2"); a("v_lshlrev_b32 v28, 8, v28")
        a("v_lshrrev_b32 v29, 4, v0"); a("v_lshlrev_b32 v29, 4, v29"); a("v_add_u32 v28, v28, v29")
        a(f"s_lshl_b32 s{S_T0}, s{S_G}, 5"); a(f"s_add_u32 s{S_T0}, s{S_T0}, s{S_SP}")
        a(f"s_lshl_b32 s{S_T0}, s{S_T0}, 12")
        a(f"s_lshl_b32 s67, s{S_WAVE}, 10")
        a(f"s_add_u32 s67, s{S_T0}, s67"); a(f"s_add_u32 s67, s67, {WS_OP}")
        a(f"s_lshl_b32 s68, s{S_G}, 2"); a(f"s_add_u32 s68, s68, s{S_WAVE}")
        a(f"s_lshl_b32 s68, s68, 5"); a(f"s_add_u32 s68, s68, s{S_SP}")
        a(f"s_lshl_b32 s68, s68, 4"); a(f"s_add_u32 s68, s68, {WS_ST}")
        a(f"s_lshr_b32 s74, s{S_SP}, 3"); a(f"s_bfe_u32 s75, s{S_SP}, 0x10002")
        a(f"s_lshl_b32 s{S_T0}, s{S_G}, 5"); a(f"s_lshl_b32 s69, s{S_WAVE}, 3")
        a(f"s_add_u32 s{S_T0}, s{S_T0}, s69"); a(f"s_lshl_b32 s{S_T0}, s{S_T0}, 12")
        a(f"s_lshl_b32 s69, s74, 10"); a(f"s_add_u32 s{S_T0}, s{S_T0}, s69")
        a(f"s_lshl_b32 s69, s75, 9"); a(f"s_add_u32 s{S_T0}, s{S_T0}, s69")
        a(f"s_add_u32 s69, s{S_T0}, {WS_OP}")
        for u in range(1, 4):
            a(f"s_add_u32 s{69+u}, s69, {8192*u}")
        a(f"s_lshl_b32 s73, s{S_G}, 2"); a(f"s_add_u32 s73, s73, s74")
        a(f"s_lshl_b32 s73, s73, 9"); a(f"s_add_u32 s73, s73, {WS_ST}")
        a(f"s_mov_b32 s{S_DR}, 0")
        if self.dyn and self.dbg: a("s_mov_b32 s94, 0")
        if (self.vrot or self.grot) and not self.pool:
            a(f"s_mul_i32 s75, s{S_SP}, {self.vrot}"); a(f"s_mul_i32 s3, s{S_G}, {self.grot}")
            a("s_add_u32 s75, s75, s3"); a("s_and_b32 s75, s75, 15"); a("s_lshl_b32 s75, s75, 2")
        if self.pool:
            assert self.nstat == 16
            a(f"s_lshl_b32 s{S_T0}, s{S_G}, 12"); a(f"s_add_u32 s{S_T0}, s{S_T0}, {WS_CNT}")
            a(f"s_add_u32 s{S_CB}, s{S_WS}, s{S_T0}"); a(f"s_addc_u32 s{S_CB+1}, s{S_WS+1}, 0")
            if self.pmap == "t4":
                a(f"s_lshl_b32 s{S_TK}, s{S_SP}, 2"); a(f"s_add_u32 s{S_TK}, s{S_TK}, s{S_WAVE}")
                a(f"s_add_u32 s{S_TK}, s{S_TK}, {3 << 7}")
            elif self.pmap == "w4":
                a(f"s_lshl_b32 s{S_T0}, s{S_WAVE}, 10")
                a(f"s_add_u32 s{S_CB}, s{S_CB}, s{S_T0}"); a(f"s_addc_u32 s{S_CB+1}, s{S_CB+1}, 0")
                a(f"s_add_u32 s{S_TK}, s{S_SP}, 96")
                a(f"s_lshl_b32 s75, s{S_WAVE}, 13")
                a(f"s_mul_i32 s101, s{S_G}, {self.grot}")
            else:
                a(f"s_lshl_b32 s{S_TK}, s{S_WAVE}, 5"); a(f"s_add_u32 s{S_TK}, s{S_TK}, s{S_SP}")
        self.get_tag()
        self.stamp(2)
        if not self.hold: a("s_barrier")
        self.stamp(3)
        for c in range(4):
            a(f"ds_read_b128 {V4(48+4*c)}, v28 offset:{L_Q+64*c}")
        if self.pool: a(f"ds_read_b32 v29, v10 offset:{L_SAME}")
        a("s_waitcnt lgkmcnt(0)")
        if self.pool:
            a(f"v_readfirstlane_b32 s3, v29")
            if self.pmap not in ("w4", "t4"):
                a(f"s_cmp_eq_u32 s3, 0")
                a("s_cbranch_scc1 L_S_lds")
            if self.series: a("s_mov_b32 s95, 0"); a("v_mov_b32 v0, 0")
            if self.atlat: a("s_mov_b32 s94, 0"); a("s_mov_b32 s95, 0")
            a.label("L_S_loop")
            for slot in range(3):
                self.group(slot, mode="pool")
            a("s_branch L_S_loop")
            if self.pmap not in ("w4", "t4"):
                a.label("L_S_lds")
                a(f"v_mov_b32 v0, s{S_WAVE}")
                a.label("L_S_loop2")
                for slot in range(3):
                    self.group(slot, mode="lds")
                a("s_branch L_S_loop2")
        else:
            if self.series: a("s_mov_b32 s95, 0"); a("v_mov_b32 v0, 0")
            a.label("L_S_loop")
            for slot in range(3):
                self.group(slot)
            a("s_branch L_S_loop")
        a.label("L_S_done")
        if self.atlat: a("s_mov_b32 s100, s94"); a("s_mov_b32 s101, s95")
        if self.dyn and self.dbg: a("s_mov_b32 s100, s94")
        a("s_waitcnt vmcnt(0)")
        self.stamp(4)
        if self.pool and not self.series:
            a("v_mbcnt_lo_u32_b32 v0, -1, 0"); a("v_mbcnt_hi_u32_b32 v0, -1, v0")
        if self.series:
            a("v_mbcnt_lo_u32_b32 v28, -1, 0"); a("v_mbcnt_hi_u32_b32 v28, -1, v28")
            a("v_lshlrev_b32 v29, 2, v28")
            a(f"s_lshl_b32 s94, s2, 2"); a(f"s_add_u32 s94, s94, s{S_WAVE}"); a("s_lshl_b32 s94, s94, 8"); a(f"s_add_u32 s94, s94, {WS_DBG+0x40000}")
            a(f"buffer_store_dword v0, v29, {S(SRD_WS)}, s94 offen")
            a("s_waitcnt vmcnt(0)")
            a("v_mov_b32 v0, v28")
        rows_reduce(a, 9, 28, "v_add_f32")
        a("v_lshlrev_b32 v28, 5, v0")
        a(f"s_lshl_b32 s{S_T0}, s{S_WAVE}, 11")
        a(f"v_add_u32 v28, s{S_T0}, v28")
        a(f"ds_write_b128 v28, {V4(40)} offset:{L_O}")
        a(f"ds_write_b128 v28, {V4(44)} offset:{L_O+16}")
        a("v_lshlrev_b32 v29, 3, v0")
        a(f"s_lshl_b32 s{S_T0}, s{S_WAVE}, 3")
        a(f"v_add_u32 v29, s{S_T0}, v29")
        a("s_mov_b64 exec, 0x1111")
        a(f"ds_write_b64 v29, v[8:9] offset:{L_ST}")
        a("s_mov_b64 exec, -1")
        a("s_waitcnt lgkmcnt(0)")
        a("s_barrier")
        self.stamp(5)
        a(f"s_lshl_b32 s{S_T0}, s{S_WAVE}, 5")
        a(f"v_mov_b32 v28, s{S_T0}")
        a(f"ds_read_b128 v[64:67], v28 offset:{L_ST}")
        a(f"ds_read_b128 v[68:71], v28 offset:{L_ST+16}")
        a(f"ds_read_b32 v90, v10 offset:{L_SAME}")
        a(f"s_lshl_b32 s{S_T0}, s{S_WAVE}, 9")
        a("v_lshlrev_b32 v29, 3, v0")
        a(f"v_add_u32 v29, s{S_T0}, v29")
        for k in range(4):
            a(f"ds_read_b64 {V2(72+2*k)}, v29 offset:{L_O+2048*k}")
        a(f"v_mov_b32 v85, s{S_TAG}"); a(f"v_mov_b32 v87, s{S_TAG}")
        a(f"v_mov_b32 v81, s{S_TAG}"); a(f"v_mov_b32 v83, s{S_TAG}")
        a("v_lshlrev_b32 v28, 4, v0")
        a("s_waitcnt lgkmcnt(4)")
        a(f"v_readfirstlane_b32 s{S_T0}, v90")
        a("v_max3_f32 v80, v64, v66, v68")
        a("v_max_f32 v80, v80, v70")
        for k in range(4):
            a(f"v_sub_f32 v{64+2*k}, v{64+2*k}, v80")
        for k in range(4):
            a(f"v_exp_f32 v{64+2*k}, v{64+2*k}")
        a("v_mul_f32 v82, v64, v65")
        a("v_fma_f32 v82, v66, v67, v82")
        a("v_fma_f32 v82, v68, v69, v82")
        a("v_fma_f32 v82, v70, v71, v82")
        a("s_waitcnt lgkmcnt(0)")
        a("v_mul_f32 v84, v64, v72"); a("v_mul_f32 v86, v64, v73")
        for k in range(1, 4):
            a(f"v_fma_f32 v84, v{64+2*k}, v{72+2*k}, v84")
            a(f"v_fma_f32 v86, v{64+2*k}, v{73+2*k}, v86")
        paths = [("sc1",)] if self.nofast else [("",), ("sc1",)]
        if not self.nofast:
            a(f"s_cmp_eq_u32 s{S_T0}, 0")
            a("s_cbranch_scc1 L_S_pubslow")
        for pi_, (fl,) in enumerate(paths):
            if pi_ == 1: a.label("L_S_pubslow")
            a(f"buffer_store_dwordx4 v[84:87], v28, {S(SRD_WS)}, s67 offen {fl}")
            a("s_mov_b64 exec, 1")
            a(f"buffer_store_dwordx4 v[80:83], v10, {S(SRD_WS)}, s68 offen {fl}")
            a("s_mov_b64 exec, -1")
            if pi_ == 0 and not self.nofast: a("s_branch L_S_pubdone")
        a.label("L_S_pubdone")
        self.stamp(6)
        a("v_lshrrev_b32 v28, 5, v0"); a("v_lshlrev_b32 v28, 12, v28")
        a("v_and_b32 v29, 31, v0"); a("v_lshlrev_b32 v29, 4, v29"); a("v_add_u32 v28, v28, v29")
        a.label("L_S_poll")
        for u in range(4):
            a(f"buffer_load_dwordx4 {V4(64+4*u)}, v28, {S(SRD_WS)}, s{69+u} offen sc1")
        a(f"buffer_load_dwordx4 v[80:83], v29, {S(SRD_WS)}, s73 offen sc1")
        a("s_waitcnt vmcnt(0)")
        a(f"v_xor_b32 v30, s{S_TAG}, v65")
        for r in [67, 69, 71, 73, 75, 77, 79, 81, 83]:
            a(f"v_xor_b32 v31, s{S_TAG}, v{r}")
            a("v_or_b32 v30, v30, v31")
        a("v_cmp_ne_u32 vcc, 0, v30")
        a("s_cbranch_vccz L_S_got")
        self.spin_guard("L_S_poll", "L_S_got")
        a.label("L_S_got")
        self.stamp(7)
        a("v_mov_b32 v30, v80")
        allreduce64(a, 30, 31, "v_max_f32")
        a("v_sub_f32 v80, v80, v30")
        a("v_exp_f32 v80, v80")
        a("v_mul_f32 v82, v80, v82")
        allreduce64(a, 82, 31, "v_add_f32")
        a("v_rcp_f32 v82, v82")
        a("v_add_f32 v80, v80, v80")
        a("v_mul_f32 v80, v80, v82")
        a("v_lshrrev_b32 v30, 5, v0")
        a(f"s_lshl_b32 s{S_T0}, s{S_WAVE}, 3")
        a(f"v_add_u32 v30, s{S_T0}, v30")
        a("v_lshlrev_b32 v30, 2, v30")
        for u in range(4):
            if u: a("v_add_u32 v30, 8, v30")
            a(f"ds_bpermute_b32 v{84+u}, v30, v80")
        a("s_waitcnt lgkmcnt(0)")
        a("v_mul_f32 v88, v84, v64"); a("v_mul_f32 v89, v84, v66")
        for u in range(1, 4):
            a(f"v_fma_f32 v88, v{84+u}, v{64+4*u}, v88")
            a(f"v_fma_f32 v89, v{84+u}, v{66+4*u}, v89")
        a("v_mov_b32 v90, v88"); a("v_mov_b32 v91, v89")
        a("v_permlane32_swap_b32 v88, v90"); a("v_permlane32_swap_b32 v89, v91")
        a("v_add_f32 v88, v88, v90"); a("v_add_f32 v89, v89, v91")
        a("v_and_b32 v30, 31, v0"); a("v_lshlrev_b32 v30, 3, v30")
        a(f"s_lshl_b32 s{S_T0}, s{S_WAVE}, 8")
        a(f"v_add_u32 v30, s{S_T0}, v30")
        a(f"ds_write_b64 v30, v[88:89] offset:{L_G}")
        a("s_waitcnt lgkmcnt(0)")
        if self.spin and self.spin.startswith("S"):
            k = int(self.spin[1:])
            a(f"s_lshl_b32 s{S_T0}, s{S_WAVE}, 2"); a(f"s_add_u32 s{S_T0}, s{S_T0}, {L_RS+16}")
            a(f"v_mov_b32 v30, s{S_T0}"); a(f"v_mov_b32 v31, s{S_TS+2*k}")
            a("ds_write_b32 v30, v31"); a("s_waitcnt lgkmcnt(0)")
        a("s_barrier")
        self.stamp(8)
        if self.dbg:
            if self.atlat:
                a("s_waitcnt lgkmcnt(0)"); a(f"s_mov_b32 s{S_TS+12}, s100"); a(f"s_mov_b32 s{S_TS+13}, s101")
            if self.dyn:
                a("s_waitcnt lgkmcnt(0)"); a(f"s_mov_b32 s{S_TS+12}, s100"); a(f"s_mov_b32 s{S_TS+13}, 0")
            if self.pre == 9:
                a("s_waitcnt lgkmcnt(0)"); a(f"s_mov_b32 s{S_TS+12}, s100"); a(f"s_mov_b32 s{S_TS+13}, s101")
            a(f"s_getreg_b32 s{S_TS+18}, hwreg(HW_REG_XCC_ID)"); a(f"s_mov_b32 s{S_TS+19}, 0")
            self.dump_stamps(10, 0)
        self.hdump([(3, 2, "max"), (4, 3, "max"), (4, 4, "min"), (5, 5, "max"), (7, 6, "max"), (2, 15, "max")])
        a("s_branch L_end")

    def gemv_loads(self, srd_, reg, step, n=16):
        a = self.a
        a(f"s_mov_b32 s{S_OFF}, 0")
        for i in range(n):
            a(f"buffer_load_dwordx4 {V4(reg+4*i)}, v1, {S(srd_)}, s{S_OFF} offen {self.wflag}")
            if i < n-1: a(f"s_add_u32 s{S_OFF}, s{S_OFF}, {step}")

    def gemv_compute(self, reg, tb, acc, wait_first, outA, outB, rors, n=16):
        a = self.a
        for k in range(8): a(f"v_mov_b32 v{acc+k}, 0")
        for i in range(n):
            if wait_first is not None:
                a(f"s_waitcnt vmcnt({wait_first + n - 1 - i})")
            for k in range(4):
                a(f"v_dot2c_f32_bf16 v{acc+2*k}, v{reg+4*i+k}, v{tb+2*i}")
                a(f"v_dot2c_f32_bf16 v{acc+2*k+1}, v{reg+4*i+k}, v{tb+2*i+1}")
        for k in range(4):
            a(f"v_permlane32_swap_b32 v{acc+k}, v{acc+4+k}")
        for k in range(4):
            a(f"v_add_f32 v{acc+k}, v{acc+k}, v{acc+4+k}")
        a(f"v_permlane16_swap_b32 v{acc}, v{acc+2}")
        a(f"v_permlane16_swap_b32 v{acc+1}, v{acc+3}")
        a(f"v_add_f32 v{outA}, v{acc}, v{acc+2}")
        a(f"v_add_f32 v{outB}, v{acc+1}, v{acc+3}")
        for rr in rors:
            a(f"v_add_f32_dpp v{outA}, v{outA}, v{outA} row_ror:{rr} row_mask:0xf bank_mask:0xf")
            a(f"v_add_f32_dpp v{outB}, v{outB}, v{outB} row_ror:{rr} row_mask:0xf bank_mask:0xf")

    def read_T(self, tb, shift, stride, n=16):
        a = self.a
        for i in range(n):
            a(f"ds_read_b64 {V2(tb+2*i)}, v2 offset:{L_T+stride*i}")

    def layernorm(self):
        a = self.a
        for k in range(4):
            a(f"v_lshlrev_b32 v{16+2*k}, 16, v{4+k}")
            a(f"v_and_b32 v{17+2*k}, s{S_HI}, v{4+k}")
        a("v_pk_add_f32 v[24:25], v[16:17], v[18:19]")
        a("v_pk_add_f32 v[26:27], v[20:21], v[22:23]")
        a("v_pk_add_f32 v[24:25], v[24:25], v[26:27]")
        a("v_add_f32 v24, v24, v25")
        allreduce64(a, 24, 25, "v_add_f32")
        a("v_mul_f32 v24, 0x3b000000, v24")
        for k in range(8): a(f"v_sub_f32 v{28+k}, v{16+k}, v24")
        a("v_mul_f32 v26, v28, v28")
        for k in range(1, 8): a(f"v_fma_f32 v26, v{28+k}, v{28+k}, v26")
        allreduce64(a, 26, 25, "v_add_f32")
        a("v_mul_f32 v26, 0x3b000000, v26")
        rnd(a, 24); rnd(a, 26)
        a("v_add_f32 v26, 0x3727c5ac, v26"); rnd(a, 26)
        a("v_sqrt_f32 v26, v26"); rnd(a, 26)
        a("v_rcp_f32 v26, v26")
        for k in range(8): a(f"v_sub_f32 v{16+k}, v{16+k}, v24")
        for k in range(4): a(f"v_cvt_pk_bf16_f32 v{28+k}, v{16+2*k}, v{17+2*k}")
        for k in range(4):
            a(f"v_lshlrev_b32 v{16+2*k}, 16, v{28+k}")
            a(f"v_and_b32 v{17+2*k}, s{S_HI}, v{28+k}")
        for k in range(8): a(f"v_mul_f32 v{16+k}, v{16+k}, v26")
        for k in range(4): a(f"v_cvt_pk_bf16_f32 v{12+k}, v{16+2*k}, v{17+2*k}")
        a("v_lshlrev_b32 v2, 6, v0")
        for k in range(4):
            a(f"v_and_b32 v28, 0xffff, v{12+k}")
            a(f"v_lshlrev_b32 v29, 16, v{12+k}")
            a(f"v_lshrrev_b32 v30, 16, v{12+k}")
            a(f"v_and_b32 v31, s{S_HI}, v{12+k}")
            a(f"ds_write_b128 v2, v[28:31] offset:{L_T+16*k}")
            if k < 3:
                a("s_nop 1")
        a("s_waitcnt lgkmcnt(0)")

    def tab_init(self):
        if not self.dyn: return
        a = self.a
        a(f"s_lshl_b32 s{S_T0}, s{S_SP}, 19")
        a("v_lshlrev_b32 v15, 15, v0"); a(f"v_add_u32 v15, s{S_T0}, v15")
        a("v_mov_b32 v16, -1")
        a(f"v_cmp_gt_u32 vcc, {self.dyn}, v0"); a("v_cndmask_b32 v16, v16, v15, vcc")
        a("v_mov_b32 v15, 0x1000000")
        a(f"v_cmp_eq_u32 vcc, {NTAB-1}, v0"); a("v_cndmask_b32 v16, v16, v15, vcc")
        a("v_lshlrev_b32 v17, 2, v0")
        a(f"s_mov_b64 exec, {(1 << NTAB) - 1:#x}") if NTAB <= 32 else (a(f"s_mov_b32 exec_lo, -1"), a(f"s_mov_b32 exec_hi, {(1 << (NTAB-32)) - 1:#x}"))
        a(f"ds_write_b32 v17, v16 offset:{L_TAB}")
        a("s_mov_b64 exec, -1")

    def server(self):
        if not self.dyn: return
        a = self.a
        R = self.dyn; NP = (16 - R) * 32
        J = S_T0 + 4
        srd(a, SRD_C, 30, size=256)
        a(f"s_lshl_b32 s{S_T0}, s{S_G}, 5")
        a(f"v_mov_b32 v2, s{S_T0}"); a("v_mov_b32 v4, 0")
        a(f"s_mov_b32 s{J}, {R}")
        a("s_mov_b64 exec, 1")
        a.label("L_srv")
        a(f"s_cmp_ge_u32 s{J}, {NTAB-1}"); a("s_cbranch_scc1 L_srv_end")
        a(f"ds_read_b32 v5, v4 offset:{L_CNT}")
        a("s_waitcnt lgkmcnt(0)")
        a(f"v_readfirstlane_b32 s{S_T0}, v5")
        a(f"s_lshr_b32 s{S_T0}, s{S_T0}, 2"); a(f"s_add_u32 s{S_T0}, s{S_T0}, {self.dlook}")
        a(f"s_cmp_ge_u32 s{S_T0}, s{J}"); a("s_cbranch_scc1 L_srv_get")
        a(f"s_sleep {self.dsleep}")
        a("s_branch L_srv")
        a.label("L_srv_get")
        a("v_mov_b32 v3, 1")
        a(f"buffer_atomic_add v3, v2, {S(SRD_C)}, 0 offen sc0 sc1")
        a("s_waitcnt vmcnt(0)")
        a(f"v_readfirstlane_b32 s{S_T0}, v3")
        a(f"s_cmp_ge_u32 s{S_T0}, {NP}"); a("s_cbranch_scc1 L_srv_out")
        a(f"s_and_b32 s{S_T0+1}, s{S_T0}, 31"); a(f"s_lshl_b32 s{S_T0+1}, s{S_T0+1}, 19")
        a(f"s_lshr_b32 s{S_T0}, s{S_T0}, 5"); a(f"s_add_u32 s{S_T0}, s{S_T0}, {R}"); a(f"s_lshl_b32 s{S_T0}, s{S_T0}, 15")
        a(f"s_add_u32 s{S_T0}, s{S_T0}, s{S_T0+1}")
        a(f"s_lshl_b32 s{S_T0+1}, s{J}, 2")
        a(f"v_mov_b32 v6, s{S_T0}"); a(f"v_mov_b32 v7, s{S_T0+1}")
        a(f"ds_write_b32 v7, v6 offset:{L_TAB}")
        a(f"s_add_u32 s{J}, s{J}, 1")
        a("s_branch L_srv")
        a.label("L_srv_out")
        a("s_mov_b64 exec, -1")
        a(f"v_cmp_le_u32 vcc, s{J}, v0"); a(f"v_cmp_gt_u32 s[{S_T0}:{S_T0+1}], {NTAB}, v0")
        a(f"s_and_b64 exec, vcc, s[{S_T0}:{S_T0+1}]")
        a("v_lshlrev_b32 v7, 2, v0"); a("v_mov_b32 v6, 0x1000000")
        a(f"ds_write_b32 v7, v6 offset:{L_TAB}")
        a.label("L_srv_end")
        a("s_mov_b64 exec, -1")
        a("s_waitcnt lgkmcnt(0)")
        if self.dbg:
            a(f"s_mov_b32 s{S_TS+12}, s{J}"); a(f"s_mov_b32 s{S_TS+13}, 0")

    def front(self):
        a = self.a
        NQ = self.qf
        cols = 128 // NQ; lpr = cols // 8; rpl = 64 // lpr; nld = 256 // rpl; sh = {2: 1, 4: 2, 8: 3}[lpr]
        if self.qt:
            KS = NQ // 2; RW = 512 // KS
            cols = 64; lpr = 8; rpl = 8; nld = RW // 2 // 8; sh = 3
            if self.solo: nld = RW // 8
        L_FLG = L_SAME + 4; L_QP = L_O
        a.label("L_F")
        if self.st2: self.stamp(7)
        a(f"s_setprio {self.qprio}")
        srd(a, SRD_A, S_X, size=1024)
        srd(a, SRD_B, S_WR, size=1024)
        a("v_lshlrev_b32 v3, 4, v0")
        a(f"buffer_load_dwordx4 v[4:7], v3, {S(SRD_A)}, 0 offen")
        a(f"buffer_load_dwordx4 v[8:11], v3, {S(SRD_B)}, 0 offen")
        a(f"s_cmp_lt_u32 s{S_G}, {NQ}"); a("s_cbranch_scc0 L_F_nold")
        a(f"s_lshl_b32 s38, s{S_G}, 5"); a(f"s_add_u32 s38, s38, s{S_SP}")
        a(f"s_sub_u32 s39, s{S_WAVE}, 4")
        if self.qt:
            if self.qown:
                assert NQ == 8
                a(f"s_and_b32 s100, s{S_SP}, 7"); a(f"s_lshl_b32 s101, s{S_G}, 3"); a("s_add_u32 s100, s100, s101")
                a(f"s_lshr_b32 s101, s{S_SP}, 3")
            else:
                a("s_and_b32 s100, s38, 63"); a("s_lshr_b32 s101, s38, 6")
            if self.solo: a(f"s_mul_i32 s39, s101, {RW}")
            else: a(f"s_mul_i32 s39, s39, {RW//2}"); a(f"s_mul_i32 s{S_T0}, s101, {RW}"); a(f"s_add_u32 s39, s39, s{S_T0}")
            a(f"s_lshl_b32 s{S_T0}, s100, 7"); a(f"s_lshl_b32 s{S_T0+1}, s39, 13"); a(f"s_add_u32 s{S_T0}, s{S_T0}, s{S_T0+1}")
        else:
            a(f"s_mul_i32 s{S_T0}, s38, {cols*2}")
            a(f"s_lshl_b32 s{S_T0+1}, s39, 21"); a(f"s_add_u32 s{S_T0}, s{S_T0}, s{S_T0+1}")
        a(f"s_add_u32 s{SRD_C}, s{S_WQ}, s{S_T0}"); a(f"s_addc_u32 s{SRD_C+1}, s{S_WQ+1}, 0")
        a(f"s_sub_u32 s{SRD_C+2}, {512*8192}, s{S_T0}"); a(f"s_mov_b32 s{SRD_C+3}, 0x00020000")
        a(f"v_lshrrev_b32 v1, {sh}, v0"); a("v_lshlrev_b32 v1, 13, v1")
        a(f"v_and_b32 v2, {lpr-1}, v0"); a("v_lshlrev_b32 v2, 4, v2"); a("v_add_u32 v1, v1, v2")
        self.gemv_loads(SRD_C, 64, rpl*8192, n=nld)
        a.label("L_F_nold")
        if self.st2: self.stamp(8)
        a(f"v_mov_b32 v12, {L_CNT}"); a(f"v_mov_b32 v13, 12"); a("v_mov_b32 v14, 0")
        a("ds_write_b32 v12, v13")
        a(f"ds_write_b32 v12, v14 offset:{L_FLG-L_CNT}")
        self.tab_init()
        a("s_waitcnt lgkmcnt(0)")
        self.stamp(5)
        if not self.noa0: a("s_barrier")
        if self.ltag: a(f"s_load_dword s{S_TAG}, s[{S_WS}:{S_WS+1}], 0")
        else: a(f"s_add_u32 s{S_TAG}, s{S_TAG}, 1")
        a(f"s_cmp_lt_u32 s{S_G}, {NQ}"); a("s_cbranch_scc1 L_F_q")
        if not self.solo: a(f"s_cmp_eq_u32 s{S_WAVE}, 5"); a("s_cbranch_scc1 L_W")
        a("s_waitcnt vmcnt(0)")
        a("s_branch L_F_ln")
        a.label("L_F_q")
        a(f"s_waitcnt vmcnt({nld+1})")
        a.label("L_F_ln")
        self.layernorm()
        if self.ltag:
            a(f"s_cmp_eq_u32 s{S_WAVE}, 4"); a(f"s_cselect_b32 s{S_T0}, 1, 0"); a(f"s_add_u32 s{S_TAG}, s{S_TAG}, s{S_T0}")
        a(f"s_cmp_lt_u32 s{S_G}, {NQ}"); a("s_cbranch_scc0 L_F_done")
        TB = 192
        a(f"v_lshrrev_b32 v2, {sh}, v0"); a("v_lshlrev_b32 v2, 3, v2")
        a(f"s_lshl_b32 s{S_T0}, s39, {3 if self.qt else 11}"); a(f"v_add_u32 v2, s{S_T0}, v2")
        self.read_T(TB, sh, 8*rpl, n=nld)
        a("s_waitcnt lgkmcnt(0)")
        self.stamp(1)
        self.gemv_compute(64, TB, 16, 0, 24, 25, {2: (2, 4, 8), 4: (4, 8), 8: (8,)}[lpr], n=nld)
        if not self.solo:
            a("v_lshlrev_b32 v2, 3, v0"); a(f"v_mov_b32 v3, {L_FLG}")
            a(f"s_cmp_eq_u32 s{S_WAVE}, 5"); a("s_cbranch_scc0 L_F_comb")
            a(f"ds_write_b64 v2, v[24:25] offset:{L_QP}")
            a("v_mov_b32 v26, 1")
            a("s_waitcnt lgkmcnt(0)")
            a("ds_write_b32 v3, v26")
            a("s_waitcnt lgkmcnt(0)")
            a("s_branch L_W")
            a.label("L_F_comb")
            a("ds_read_b32 v26, v3")
            a("s_waitcnt lgkmcnt(0)")
            a("v_cmp_eq_u32 vcc, 0, v26")
            a("s_cbranch_vccz L_F_cgot")
            self.spin_guard("L_F_comb", "L_F_cgot", sleep=0)
            a.label("L_F_cgot")
            a(f"ds_read_b64 v[26:27], v2 offset:{L_QP}")
            a("s_waitcnt lgkmcnt(0)")
            a("v_add_f32 v24, v24, v26"); a("v_add_f32 v25, v25, v27")
        if self.qt:
            a("v_mov_b32 v26, v25"); a(f"v_mov_b32 v25, s{S_TAG}"); a(f"v_mov_b32 v27, s{S_TAG}")
            a("v_and_b32 v2, 7, v0"); a("v_lshlrev_b32 v2, 6, v2")
            a("v_lshrrev_b32 v3, 4, v0"); a("v_lshlrev_b32 v3, 4, v3"); a("v_add_u32 v2, v2, v3")
            a(f"s_lshl_b32 s{S_T0+1}, s101, 15"); a(f"s_lshl_b32 s{S_T0}, s100, 9"); a(f"s_add_u32 s{S_T0+1}, s{S_T0+1}, s{S_T0}")
            a(f"s_add_u32 s{S_T0+1}, s{S_T0+1}, {WS_QP}")
            a("s_mov_b32 exec_lo, 0x00ff00ff"); a("s_mov_b32 exec_hi, 0x00ff00ff")
            a(f"buffer_store_dwordx4 v[24:27], v2, {S(SRD_WS)}, s{S_T0+1} offen sc1")
            a("s_mov_b64 exec, -1")
        else:
            a("v_cvt_pk_bf16_f32 v26, v24, v25")
            a(f"v_mov_b32 v27, s{S_TAG}")
            a(f"v_and_b32 v2, {lpr-1}, v0"); a("v_lshlrev_b32 v2, 5, v2")
            a("v_lshrrev_b32 v3, 4, v0"); a("v_lshlrev_b32 v3, 3, v3"); a("v_add_u32 v2, v2, v3")
            a(f"s_mul_i32 s{S_T0+1}, s38, {cols*4}"); a(f"s_add_u32 s{S_T0+1}, s{S_T0+1}, {WS_QG}")
            mk = ((1 << lpr) - 1) * 0x00010001
            a(f"s_mov_b32 exec_lo, {mk:#x}"); a(f"s_mov_b32 exec_hi, {mk:#x}")
            a(f"buffer_store_dwordx2 v[26:27], v2, {S(SRD_WS)}, s{S_T0+1} offen sc1")
            a("s_mov_b64 exec, -1")
        a(f"s_mov_b32 s{S_SPIN}, {SPIN_LIMIT}")
        a.label("L_F_done")
        a(f"s_lshl_b32 s{S_T0}, s{S_G}, 11"); a(f"s_add_u32 s{S_T0}, s{S_T0}, {WS_QG}")
        self.stamp(2)

    def qwave(self):
        a = self.a
        if self.qf:
            assert not self.pool and (self.solo or not self.noa0) and not self.nob and self.early == 3
            self.front()
            self.qwave_rest()
            return
        a.label("L_Q")
        a(f"s_setprio {self.qprio}")
        srd(a, SRD_A, S_X, size=1024)
        srd(a, SRD_B, S_WR, size=1024)
        a(f"s_lshl_b32 s{S_T0}, s{S_G}, 10"); a(f"s_lshl_b32 s{S_T0+1}, s{S_SP}, 5")
        a(f"s_add_u32 s{S_T0}, s{S_T0}, s{S_T0+1}")
        a(f"s_add_u32 s{SRD_C}, s{S_WQ}, s{S_T0}"); a(f"s_addc_u32 s{SRD_C+1}, s{S_WQ+1}, 0")
        a(f"s_sub_u32 s{SRD_C+2}, {512*8192}, s{S_T0}"); a(f"s_mov_b32 s{SRD_C+3}, 0x00020000")
        a("v_lshlrev_b32 v3, 4, v0")
        a(f"buffer_load_dwordx4 v[4:7], v3, {S(SRD_A)}, 0 offen")
        a(f"buffer_load_dwordx4 v[8:11], v3, {S(SRD_B)}, 0 offen")
        a("v_lshrrev_b32 v1, 1, v0"); a("v_lshlrev_b32 v1, 13, v1")
        a("v_and_b32 v2, 1, v0"); a("v_lshlrev_b32 v2, 4, v2"); a("v_add_u32 v1, v1, v2")
        self.gemv_loads(SRD_C, 64, 32*8192)
        a(f"v_mov_b32 v12, {L_CNT}"); a(f"v_mov_b32 v13, {4 if self.pool else 12}")
        a("ds_write_b32 v12, v13")
        self.tab_init()
        a("s_waitcnt lgkmcnt(0)")
        self.stamp(5)
        if not self.noa0: a("s_barrier")
        if self.nob: a("s_barrier")
        if self.pool:
            a(f"s_cmp_lg_u32 s{S_SP}, 0"); a("s_cbranch_scc1 L_Q_nz")
            a(f"s_lshl_b32 s{S_T0}, s{S_G}, 12"); a(f"s_add_u32 s{S_T0}, s{S_T0}, {WS_CNT}")
            a(f"s_add_u32 s{S_CB}, s{S_WS}, s{S_T0}"); a(f"s_addc_u32 s{S_CB+1}, s{S_WS+1}, 0")
            if self.pmap == "w4":
                for k in range(4):
                    a(f"s_mov_b32 s{S_T0+2+k}, 128")
                    a(f"s_atomic_swap s{S_T0+2+k}, s[{S_CB}:{S_CB+1}], {1024*k} glc")
            else:
                a(f"s_mov_b32 s3, {512 if self.pmap == 't4' else 128}")
                a(f"s_atomic_swap s3, s[{S_CB}:{S_CB+1}], 0 glc")
            a.label("L_Q_nz")
        a("s_waitcnt vmcnt(17)")
        self.layernorm()
        a("v_lshrrev_b32 v2, 1, v0"); a("v_lshlrev_b32 v2, 3, v2")
        self.read_T(128, 1, 256)
        a("s_waitcnt lgkmcnt(0)")
        self.stamp(1)
        self.gemv_compute(64, 128, 16, 0, 24, 25, (2, 4, 8))
        self.get_tag()
        a("v_cvt_pk_bf16_f32 v26, v24, v25")
        a(f"v_mov_b32 v27, s{S_TAG}")
        a("v_and_b32 v2, 1, v0"); a("v_lshlrev_b32 v2, 5, v2")
        a("v_lshrrev_b32 v3, 4, v0"); a("v_lshlrev_b32 v3, 3, v3"); a("v_add_u32 v2, v2, v3")
        a(f"s_lshl_b32 s{S_T0}, s{S_G}, 11"); a(f"s_add_u32 s{S_T0}, s{S_T0}, {WS_QG}")
        a(f"s_lshl_b32 s{S_T0+1}, s{S_SP}, 6"); a(f"s_add_u32 s{S_T0+1}, s{S_T0+1}, s{S_T0}")
        a("s_mov_b32 exec_lo, 0x00030003"); a("s_mov_b32 exec_hi, 0x00030003")
        a(f"buffer_store_dwordx2 v[26:27], v2, {S(SRD_WS)}, s{S_T0+1} offen sc1")
        a("s_mov_b64 exec, -1")
        self.stamp(2)
        self.qwave_rest()

    def qwave_rest(self):
        a = self.a
        a("v_mov_b32 v28, 0")
        for k in range(4): a(f"v_dot2c_f32_bf16 v28, v{12+k}, v{8+k}")
        allreduce64(a, 28, 29, "v_add_f32")
        rnd(a, 28)
        a(f"v_mul_f32 v28, s{S_LOG2E}, v28")
        a("v_sub_f32 v28, 0, v28")
        a("v_exp_f32 v28, v28")
        a("v_add_f32 v28, 1.0, v28")
        a("v_rcp_f32 v28, v28")
        rnd(a, 28)
        a(f"v_mov_b32 v29, {L_RS}")
        a("ds_write_b32 v29, v28")
        if self.qt:
            self.gather_t()
            return self.qwave_rest2()
        a("v_lshlrev_b32 v2, 4, v0")
        a("v_lshlrev_b32 v3, 3, v0")
        first = True
        if self.pool:
            a(f"s_lshl_b32 s{S_T0+8}, s{S_G}, 8"); a(f"s_add_u32 s{S_T0+8}, s{S_T0+8}, {WS_XT}")
            a("v_and_b32 v4, 31, v0"); a("v_lshlrev_b32 v4, 3, v4")
        def qloads():
            a(f"buffer_load_dwordx4 v[32:35], v2, {S(SRD_WS)}, s{S_T0} offen sc1")
            a(f"buffer_load_dwordx4 v[36:39], v2, {S(SRD_WS)}, s{S_T0} offen offset:1024 sc1")
            if self.pool: a(f"buffer_load_dwordx2 v[40:41], v4, {S(SRD_WS)}, s{S_T0+8} offen sc1")
        qloads()
        if self.early < 3: a("s_barrier")
        a("s_branch L_Q_chk")
        a.label("L_Q_poll")
        qloads()
        a.label("L_Q_chk")
        a("s_waitcnt vmcnt(0)")
        a(f"v_xor_b32 v30, s{S_TAG}, v33")
        for r in ((35, 37, 39, 41) if self.pool else (35, 37, 39)):
            a(f"v_xor_b32 v31, s{S_TAG}, v{r}"); a("v_or_b32 v30, v30, v31")
        a("v_cmp_ne_u32 vcc, 0, v30")
        a("s_cbranch_vccz L_Q_got")
        self.spin_guard("L_Q_poll", "L_Q_got")
        a.label("L_Q_got")
        a(f"v_add_u32 v3, {L_Q}, v3")
        a("ds_write2_b32 v3, v32, v34 offset0:0 offset1:1")
        a("ds_write2_b32 v3, v36, v38 offset0:128 offset1:129")
        if self.pool:
            a(f"s_getreg_b32 s{S_T0+9}, hwreg(HW_REG_XCC_ID)")
            a(f"v_cmp_ne_u32 vcc, s{S_T0+9}, v40")
            a("s_cmp_eq_u64 vcc, 0")
            a(f"s_cselect_b32 s{S_T0+9}, {0 if self.forceslow else 1}, 0")
            a(f"v_mov_b32 v26, s{S_T0+9}"); a(f"v_mov_b32 v27, {L_SAME}")
            a("ds_write_b32 v27, v26")
        self.qwave_rest2()

    def gather_t(self):
        a = self.a
        KS = self.qt // 2; N = 4 * KS; GB = 64
        a("v_lshlrev_b32 v2, 4, v0")
        a("v_lshlrev_b32 v3, 2, v0")
        for ks in range(KS):
            a(f"s_lshl_b32 s{S_T0+ks}, s{S_G}, 12"); a(f"s_add_u32 s{S_T0+ks}, s{S_T0+ks}, {WS_QP + 32768*ks}")
        def ld(k):
            a(f"buffer_load_dwordx4 {V4(GB+4*k)}, v2, {S(SRD_WS)}, s{S_T0+(k>>2)} offen offset:{1024*(k&3)} sc1")
        for k in range(N): ld(k)
        a.label("L_Q_chk")
        a("s_waitcnt vmcnt(0)")
        a(f"s_mov_b32 s{S_T0+4}, 0")
        for k in range(N):
            ok = a.uniq("L_ok")
            a(f"v_xor_b32 v30, s{S_TAG}, v{GB+4*k+1}"); a(f"v_xor_b32 v31, s{S_TAG}, v{GB+4*k+3}")
            a("v_or_b32 v30, v30, v31"); a("v_cmp_ne_u32 vcc, 0, v30")
            a(f"s_cbranch_vccz {ok}")
            ld(k)
            a(f"s_mov_b32 s{S_T0+4}, 1")
            a.label(ok)
        a(f"s_cmp_eq_u32 s{S_T0+4}, 0"); a("s_cbranch_scc1 L_Q_got")
        self.spin_guard("L_Q_chk", "L_Q_got")
        a.label("L_Q_got")
        a("s_waitcnt vmcnt(0)")
        a(f"v_add_u32 v3, {L_Q}, v3")
        for i in range(4):
            for ks in range(1, KS):
                a(f"v_add_f32 v{GB+4*i}, v{GB+4*i}, v{GB+4*(4*ks+i)}")
                a(f"v_add_f32 v{GB+4*i+2}, v{GB+4*i+2}, v{GB+4*(4*ks+i)+2}")
            a(f"v_cvt_pk_bf16_f32 v{32+i}, v{GB+4*i}, v{GB+4*i+2}")
            a(f"ds_write_b32 v3, v{32+i} offset:{256*i}")

    def qwave_rest2(self):
        a = self.a
        a("s_waitcnt lgkmcnt(0)")
        self.stamp(3)
        if not self.nob: a("s_barrier")
        a(f"s_cmp_ge_u32 s{S_SP}, 28")
        a("s_cbranch_scc1 L_Q_end")
        U, MM, CBK, KC = S_T0+4, S_T0+5, S_T0+6, S_T0+7
        a(f"s_mul_i32 s{U}, s{S_G}, 28"); a(f"s_add_u32 s{U}, s{U}, s{S_SP}")
        a(f"s_cmp_ge_u32 s{U}, 112"); a(f"s_cselect_b32 s{MM}, 1, 0")
        a(f"s_mul_i32 s{S_T0}, s{MM}, 112"); a(f"s_sub_u32 s{U}, s{U}, s{S_T0}")
        a(f"s_lshr_b32 s{CBK}, s{U}, 2"); a(f"s_and_b32 s{KC}, s{U}, 3")
        a(f"s_mul_i32 s{S_T0}, s{KC}, {128*3584}"); a(f"s_lshl_b32 s{S_T0+1}, s{CBK}, 7")
        a(f"s_add_u32 s{S_T0}, s{S_T0}, s{S_T0+1}")
        a(f"s_cmp_eq_u32 s{MM}, 0"); a("s_cbranch_scc0 L_Q_up")
        a(f"s_add_u32 s{SRD_C}, s{S_WG}, s{S_T0}"); a(f"s_addc_u32 s{SRD_C+1}, s{S_WG+1}, 0")
        a("s_branch L_Q_srd")
        a.label("L_Q_up")
        a(f"s_add_u32 s{SRD_C}, s{S_WU}, s{S_T0}"); a(f"s_addc_u32 s{SRD_C+1}, s{S_WU+1}, 0")
        a.label("L_Q_srd")
        a(f"s_sub_u32 s{SRD_C+2}, {512*3584}, s{S_T0}"); a(f"s_mov_b32 s{SRD_C+3}, 0x00020000")
        a("v_lshrrev_b32 v1, 3, v0"); a(f"s_mov_b32 s{S_T0+2}, 3584"); a(f"v_mul_lo_u32 v1, v1, s{S_T0+2}")
        a("v_and_b32 v2, 7, v0"); a("v_lshlrev_b32 v2, 4, v2"); a("v_add_u32 v1, v1, v2")
        self.gemv_loads(SRD_C, 64, 8*3584)
        a("v_lshrrev_b32 v2, 3, v0"); a("v_lshlrev_b32 v2, 3, v2")
        a(f"s_lshl_b32 s{S_T0}, s{KC}, 10"); a(f"v_add_u32 v2, s{S_T0}, v2")
        self.read_T(128, 3, 64)
        a("s_waitcnt lgkmcnt(0)")
        self.gemv_compute(64, 128, 16, 0, 24, 26, (8,))
        a(f"v_mov_b32 v25, s{S_TAG}"); a(f"v_mov_b32 v27, s{S_TAG}")
        a(f"s_lshl_b32 s{S_T0}, s{MM}, 2"); a(f"s_add_u32 s{S_T0}, s{S_T0}, s{KC}")
        a(f"s_mul_i32 s{S_T0}, s{S_T0}, {1792*8}"); a(f"s_lshl_b32 s{S_T0+1}, s{CBK}, 9")
        a(f"s_add_u32 s{S_T0}, s{S_T0}, s{S_T0+1}"); a(f"s_add_u32 s{S_T0}, s{S_T0}, {WS_GU}")
        a("v_and_b32 v2, 7, v0"); a("v_lshlrev_b32 v2, 6, v2")
        a("v_lshrrev_b32 v3, 4, v0"); a("v_lshlrev_b32 v3, 4, v3"); a("v_add_u32 v2, v2, v3")
        a("s_mov_b32 exec_lo, 0x00ff00ff"); a("s_mov_b32 exec_hi, 0x00ff00ff")
        a(f"buffer_store_dwordx4 v[24:27], v2, {S(SRD_WS)}, s{S_T0} offen sc1")
        a("s_mov_b64 exec, -1")
        a.label("L_Q_end")
        self.stamp(4)
        self.server()
        if self.spin and self.spin.startswith("Q"):
            k = int(self.spin[1:])
            a("s_waitcnt lgkmcnt(0)")
            a(f"v_mov_b32 v30, {L_RS+16}")
            for r in range(4): a(f"v_mov_b32 v{32+r}, s{S_TS+2*k}")
            a("ds_write_b128 v30, v[32:35]"); a("s_waitcnt lgkmcnt(0)")
        self.dump_stamps(9 if self.st2 else (7 if self.dyn else 6), 1)
        self.hdump([(2, 7, "max"), (3, 8, "max"), (1, 14, "max"), (4, 9, "max")], nsleep=0)
        a("s_waitcnt vmcnt(0)")
        a("s_branch L_end")

    def masked_gemv(self, pv, wb0, n, PB=32, D0=56, D1=60):
        a = self.a
        for i0 in range(0, n, 4):
            m = min(4, n - i0)
            for r in range(m):
                a(f"v_and_b32 v{PB+4*r+2}, v{pv+i0+r}, v5")
                a(f"v_and_b32 v{PB+4*r+3}, v{pv+i0+r}, v7")
            for r in range(m):
                wb = wb0 + 4*(i0+r)
                a(f"v_mfma_f32_16x16x32_bf16 {V4(D0)}, {V4(PB+4*r+2)}, {V4(wb)}, {V4(D0)}")
                a(f"v_mfma_f32_16x16x32_bf16 {V4(D1)}, {V4(PB+4*r)}, {V4(wb)}, {V4(D1)}")

    def wwave(self):
        a = self.a
        a.label("L_W")
        RB, CB, PART = S_T0+10, S_T0+11, S_T0+12
        a(f"s_lshr_b32 s{RB}, s{S_SP}, 2"); a(f"s_and_b32 s{CB}, s{S_SP}, 3")
        a(f"s_lshl_b32 s{PART}, s{S_G}, 3"); a(f"s_add_u32 s{PART}, s{PART}, s{RB}")
        a(f"s_lshl_b32 s{S_T0}, s{PART}, 16")
        a(f"s_lshl_b32 s{S_T0+1}, s{CB}, 8"); a(f"s_add_u32 s{S_T0}, s{S_T0}, s{S_T0+1}")
        srd(a, SRD_A, S_WO, S_T0, size=65536)
        a(f"s_sub_u32 s{SRD_A+2}, 65536, s{S_T0+1}")
        a(f"s_mul_i32 s{S_T0}, s{PART}, {28*1024}"); a(f"s_add_u32 s{S_T0}, s{S_T0}, s{S_T0+1}")
        srd(a, SRD_D, S_WD, S_T0, size=28*1024)
        a(f"s_sub_u32 s{SRD_D+2}, {28*1024}, s{S_T0+1}")
        srd(a, SRD_B, S_X, size=1024)
        srd(a, SRD_C, S_OUT, size=1024)
        a("v_lshrrev_b32 v1, 4, v0"); a("v_lshlrev_b32 v1, 10, v1")
        a("v_and_b32 v2, 15, v0"); a("v_lshlrev_b32 v2, 4, v2"); a("v_add_u32 v1, v1, v2")
        wfront = self.qf and not self.solo
        if self.fasta0 and not self.noa0 and not wfront:
            self.stamp(6)
            a("s_barrier")
        if self.solo and self.ltag: a(f"s_load_dword s{S_TAG}, s[{S_WS}:{S_WS+1}], 0")
        if not wfront or self.ltag: self.get_tag()
        a(f"s_getreg_b32 s{S_T0+9}, hwreg(HW_REG_XCC_ID)")
        a(f"s_lshl_b32 s{S_T0+8}, s{S_G}, 8"); a(f"s_add_u32 s{S_T0+8}, s{S_T0+8}, {WS_XT}")
        a(f"s_lshl_b32 s{S_T0}, s{S_SP}, 3")
        a(f"v_mov_b32 v16, s{S_T0+9}"); a(f"v_mov_b32 v17, s{S_TAG}"); a(f"v_mov_b32 v18, s{S_T0}")
        a("s_mov_b64 exec, 1")
        a(f"buffer_store_dwordx2 v[16:17], v18, {S(SRD_WS)}, s{S_T0+8} offen sc1")
        a("s_mov_b64 exec, -1")
        if not self.fasta0 and not self.noa0 and not wfront:
            self.stamp(6)
            a("s_barrier")
        if self.early < 3: a("s_barrier")
        a("s_barrier")
        a(f"s_setprio {self.auxprio}")
        WO = 64; WD = 128
        a(f"s_mov_b32 s{S_OFF}, 0")
        for i in range(16):
            a(f"buffer_load_dwordx4 {V4(WO+4*i)}, v1, {S(SRD_A)}, s{S_OFF} offen {self.wflag}")
            if i < 15: a(f"s_add_u32 s{S_OFF}, s{S_OFF}, 4096")
        a(f"s_mov_b32 s{S_OFF}, 0")
        for i in range(7):
            a(f"buffer_load_dwordx4 {V4(WD+4*i)}, v1, {S(SRD_D)}, s{S_OFF} offen {self.wflag}")
            if i < 6: a(f"s_add_u32 s{S_OFF}, s{S_OFF}, 4096")
        a(f"s_lshl_b32 s{S_T0+2}, s{S_G}, 7"); a(f"s_lshl_b32 s{S_T0+3}, s{S_SP}, 2")
        a(f"s_add_u32 s{S_T0+2}, s{S_T0+2}, s{S_T0+3}")
        a(f"v_mov_b32 v2, s{S_T0+2}")
        a(f"buffer_load_dword v8, v2, {S(SRD_B)}, 0 offen")
        a(f"s_lshl_b32 s{S_T0+3}, s{S_T0+2}, 2")
        a(f"v_mov_b32 v3, s{S_T0+3}")
        a(f"ds_read_b128 v[12:15], v3 offset:{L_T}")
        a(f"v_mov_b32 v3, {L_RS}")
        a("ds_read_b32 v9, v3")
        self.masksXY(5, 7, 28)
        for k in range(5):
            a(f"v_mov_b32 v{32+4*k}, 0"); a(f"v_mov_b32 v{33+4*k}, 0")
        for k in range(8): a(f"v_mov_b32 v{56+k}, 0")
        a(f"s_mov_b32 s{S_M1}, 0xffff0000"); a(f"s_mov_b32 s{S_M1+1}, 0xffff0000")
        a(f"s_mov_b32 s{S_M2}, 0"); a(f"s_mov_b32 s{S_M2+1}, -1")
        a(f"s_mul_i32 s{S_T0+4}, s{PART}, {28*8}"); a(f"s_add_u32 s{S_T0+4}, s{S_T0+4}, {WS_GU}")
        a(f"s_add_u32 s{S_T0+5}, s{S_T0+4}, {4*1792*8}")
        a("v_lshrrev_b32 v10, 4, v0"); a(f"s_mov_b32 s{S_T0}, {1792*8}"); a(f"v_mul_lo_u32 v10, v10, s{S_T0}")
        a("v_and_b32 v11, 15, v0"); a("v_min_u32 v11, 13, v11"); a("v_lshlrev_b32 v11, 4, v11")
        a("v_add_u32 v10, v10, v11")
        a("v_and_b32 v11, 31, v0"); a("v_lshlrev_b32 v11, 3, v11")
        a.label("L_W_ypoll")
        a(f"buffer_load_dwordx4 v[16:19], v10, {S(SRD_WS)}, s{S_T0+4} offen sc1")
        a(f"buffer_load_dwordx4 v[20:23], v10, {S(SRD_WS)}, s{S_T0+5} offen sc1")
        a(f"buffer_load_dwordx2 v[24:25], v11, {S(SRD_WS)}, s{S_T0+8} offen sc1")
        a("s_waitcnt vmcnt(0)")
        a(f"v_xor_b32 v30, s{S_TAG}, v17")
        for r in (19, 21, 23, 25):
            a(f"v_xor_b32 v31, s{S_TAG}, v{r}"); a("v_or_b32 v30, v30, v31")
        a("v_cmp_ne_u32 vcc, 0, v30")
        a("s_cbranch_vccz L_W_ygot")
        self.spin_guard("L_W_ypoll", "L_W_ygot", sleep=32)
        a.label("L_W_ygot")
        a(f"v_cmp_ne_u32 vcc, s{S_T0+9}, v24")
        a("s_cmp_eq_u64 vcc, 0")
        a(f"s_cselect_b32 s{S_T0}, {0 if self.forceslow else 1}, 0")
        a(f"v_mov_b32 v26, s{S_T0}"); a(f"v_mov_b32 v27, {L_SAME}")
        a("ds_write_b32 v27, v26")
        for v in (16, 18, 20, 22): rows_reduce(a, v, 30, "v_add_f32")
        for v in (16, 18, 20, 22): rnd(a, v)
        for v in (16, 18):
            a(f"v_mul_f32 v28, s{S_LOG2E}, v{v}")
            a("v_sub_f32 v28, 0, v28")
            a("v_exp_f32 v28, v28")
            a("v_add_f32 v28, 1.0, v28")
            a("v_rcp_f32 v28, v28")
            a(f"v_mul_f32 v{v}, v{v}, v28")
            rnd(a, v)
        a("v_mul_f32 v16, v16, v20"); a("v_mul_f32 v18, v18, v22")
        a("v_cvt_pk_bf16_f32 v16, v16, v16"); a("v_cvt_pk_bf16_f32 v18, v18, v18")
        a("v_and_b32 v20, 1, v0"); a("v_lshlrev_b32 v20, 7, v20")
        a("v_bfe_u32 v21, v0, 1, 3"); a("v_lshlrev_b32 v21, 2, v21"); a("v_add_u32 v20, v20, v21")
        a("s_mov_b64 exec, 0x3fff")
        a(f"ds_write_b32 v20, v16 offset:{L_HP}")
        a(f"ds_write_b32 v20, v18 offset:{L_HP+64}")
        a("s_mov_b64 exec, -1")
        a("v_lshrrev_b32 v24, 4, v0"); a("v_lshlrev_b32 v24, 6, v24")
        a("s_waitcnt lgkmcnt(0)")
        HV = 160
        for k in range(2):
            a(f"ds_read_b128 {V4(HV+4*k)}, v24 offset:{L_HP+16*k}")
        a("s_waitcnt lgkmcnt(0)")
        self.masked_gemv(HV, WD, 7)
        for k in range(8): a(f"v_mul_f32 v{56+k}, v{56+k}, v9")
        a("v_lshlrev_b32 v12, 16, v8"); a(f"v_and_b32 v14, s{S_HI}, v8")
        a("v_add_f32 v12, v12, v13"); a("v_add_f32 v14, v14, v15")
        a(f"s_lshl_b32 s{S_T0+6}, s{PART}, 12")
        a(f"s_lshl_b32 s{S_T0+7}, s{CB}, 10"); a(f"s_add_u32 s{S_T0+6}, s{S_T0+6}, s{S_T0+7}")
        a(f"s_add_u32 s{S_T0+6}, s{S_T0+6}, {WS_AP}")
        a("v_and_b32 v20, 15, v0"); a("v_lshlrev_b32 v20, 6, v20")
        a("v_lshrrev_b32 v21, 4, v0"); a("v_lshlrev_b32 v21, 4, v21"); a("v_add_u32 v20, v20, v21")
        a(f"s_lshl_b32 s{S_T0+7}, s{S_T0+2}, 2"); a(f"s_add_u32 s{S_T0+7}, s{S_T0+7}, {WS_AP}")
        a("v_lshlrev_b32 v10, 12, v0")
        a("v_lshlrev_b32 v22, 2, v0")
        a("v_and_b32 v23, 3, v0"); a("v_lshlrev_b32 v23, 6, v23")
        a("v_lshrrev_b32 v25, 2, v0"); a("v_lshlrev_b32 v25, 2, v25"); a("v_add_u32 v23, v23, v25")
        a(f"v_mov_b32 v29, s{S_TAG}"); a(f"v_mov_b32 v31, s{S_TAG}")
        a(f"s_mov_b32 s{S_SPIN}, {SPIN_LIMIT}")
        a("s_waitcnt lgkmcnt(0)")
        self.stamp(1)
        a("s_barrier")
        a("s_barrier")
        self.stamp(2)
        for k in range(4):
            a(f"ds_read_b32 v{16+k}, v22 offset:{L_G+256*k}")
        a("s_waitcnt lgkmcnt(0)")
        a("v_add_f32 v16, v16, v17"); a("v_add_f32 v18, v18, v19"); a("v_add_f32 v26, v16, v18")
        a("v_cvt_pk_bf16_f32 v26, v26, v26")
        a(f"ds_write_b32 v23, v26 offset:{L_PP}")
        a("s_waitcnt lgkmcnt(0)")
        PPV = 168
        for k in range(4):
            a(f"ds_read_b128 {V4(PPV+4*k)}, v24 offset:{L_PP+16*k}")
        a("s_waitcnt lgkmcnt(0)")
        D0 = 56; D1 = 60
        self.masked_gemv(PPV, 64, 16)
        m1 = f"s[{S_M1}:{S_M1+1}]"; m2 = f"s[{S_M2}:{S_M2+1}]"
        a(f"v_cndmask_b32 v26, v{D0}, v{D0+2}, {m1}")
        a(f"v_cndmask_b32 v27, v{D1}, v{D1+2}, {m1}")
        a(f"v_cndmask_b32 v28, v26, v27, {m2}")
        a(f"v_cndmask_b32 v26, v{D0+1}, v{D0+3}, {m1}")
        a(f"v_cndmask_b32 v27, v{D1+1}, v{D1+3}, {m1}")
        a(f"v_cndmask_b32 v30, v26, v27, {m2}")
        a(f"buffer_store_dwordx4 v[28:31], v20, {S(SRD_WS)}, s{S_T0+6} offen sc1")
        self.stamp(3)
        a.label("L_W_apoll")
        a(f"buffer_load_dwordx4 v[24:27], v10, {S(SRD_WS)}, s{S_T0+7} offen sc1")
        a("s_waitcnt vmcnt(0)")
        a(f"v_xor_b32 v16, s{S_TAG}, v25")
        a(f"v_xor_b32 v17, s{S_TAG}, v27"); a("v_or_b32 v16, v16, v17")
        a("v_cmp_ne_u32 vcc, 0, v16")
        a("s_cbranch_vccz L_W_agot")
        self.spin_guard("L_W_apoll", "L_W_agot")
        a.label("L_W_agot")
        self.stamp(4)
        allreduce64(a, 24, 16, "v_add_f32"); allreduce64(a, 26, 17, "v_add_f32")
        a("v_add_f32 v24, v24, v12"); a("v_add_f32 v26, v26, v14")
        if self.perturb:
            import struct
            bits = struct.unpack("<I", struct.pack("<f", float(self.perturb)))[0]
            a(f"v_add_f32 v24, {bits:#x}, v24"); a(f"v_add_f32 v26, {bits:#x}, v26")
        a("v_cvt_pk_bf16_f32 v24, v24, v26")
        a("s_mov_b64 exec, 1")
        a(f"buffer_store_dword v24, v2, {S(SRD_C)}, 0 offen")
        a("s_cmp_lg_u32 s2, 0")
        a("s_cbranch_scc1 L_W_noep")
        a(f"v_mov_b32 v25, s{S_TAG}"); a("v_mov_b32 v26, 0")
        a(f"buffer_store_dword v25, v26, {S(SRD_WS)}, 0 offen sc1")
        a.label("L_W_noep")
        a("s_mov_b64 exec, -1")
        self.stamp(5)
        if self.spin:
            if self.spin[0] in "SQ":
                a(f"v_mov_b32 v3, {L_RS+16}"); a("ds_read_b128 v[4:7], v3"); a("s_waitcnt lgkmcnt(0)")
                a("v_max_u32 v4, v4, v5"); a("v_max_u32 v6, v6, v7"); a("v_max_u32 v4, v4, v6")
                a(f"v_readfirstlane_b32 s{S_T0}, v4")
            else:
                k = int(self.spin[1:])
                a("s_waitcnt lgkmcnt(0)")
                a(f"s_mov_b32 s{S_T0}, s{S_TS+2*k}")
            a(f"s_add_u32 s{S_T0}, s{S_T0}, 10000")
            a.label("L_spin")
            a(f"s_memrealtime s[{S_T0+2}:{S_T0+3}]"); a("s_waitcnt lgkmcnt(0)")
            a(f"s_sub_u32 s{S_T0+4}, s{S_T0+2}, s{S_T0}")
            a(f"s_cmp_lt_i32 s{S_T0+4}, 0")
            a("s_cbranch_scc1 L_spin")
        self.dump_stamps(7, 3)
        self.hdump([(0, 0, "min"), (5, 1, "max"), (1, 10, "max"), (3, 11, "max"), (4, 12, "max"), (0, 13, "max")])
        a("s_waitcnt vmcnt(0)")

    def build(self):
        self.prologue()
        self.swave()
        self.qwave()
        self.wwave()
        self.a.label("L_end")
        self.a("s_endpgm")
        body = self.a.text()
        stub = open("parallel_sum__gqa_block_cached__moe_arch_mod__decode.s.ref").read()
        head = stub[:stub.index("; @launch")]
        txt = head + f"; @launch grid=(256,1,1) block=(384,1,1) lds={LDS_BYTES}\n"
        txt += f""".amdgcn_target "amdgcn-amd-amdhsa--gfx950"
.text
.globl {KNAME}
.p2align 8
.type {KNAME},@function
{KNAME}:
{body}
.section .rodata,"a"
.p2align 6
.amdhsa_kernel {KNAME}
  .amdhsa_next_free_vgpr 256
  .amdhsa_next_free_sgpr 102
  .amdhsa_accum_offset 256
  .amdhsa_group_segment_fixed_size 0
  .amdhsa_kernarg_size 104
  .amdhsa_user_sgpr_count 2
  .amdhsa_user_sgpr_kernarg_segment_ptr 1
  .amdhsa_system_sgpr_workgroup_id_x 1
.end_amdhsa_kernel
"""
        return txt

if __name__ == "__main__":
    import argparse
    p = argparse.ArgumentParser()
    p.add_argument("--dbg", action="store_true")
    p.add_argument("--wflag", default="nt")
    p.add_argument("--hdbg", action="store_true")
    p.add_argument("--spin", default=None)
    p.add_argument("--perturb", default=None)
    p.add_argument("--forceslow", action="store_true")
    p.add_argument("--nofast", action="store_true")
    p.add_argument("--auxprio", type=int, default=3)
    p.add_argument("--qprio", type=int, default=3)
    p.add_argument("--early", type=int, default=3)
    p.add_argument("--nob", action="store_true")
    p.add_argument("--ilv", action="store_true")
    p.add_argument("--series", action="store_true")
    p.add_argument("--nodrain", action="store_true")
    p.add_argument("--fasta0", action="store_true")
    p.add_argument("--noa0", action="store_true")
    p.add_argument("--ppoll", type=int, default=0)
    p.add_argument("--pool", action="store_true")
    p.add_argument("--pmap", default="blk")
    p.add_argument("--nstat", type=int, default=16)
    p.add_argument("--rot", type=int, default=0)
    p.add_argument("--atlat", action="store_true")
    p.add_argument("--vrot", type=int, default=0)
    p.add_argument("--grot", type=int, default=0)
    p.add_argument("--qf", type=int, default=0)
    p.add_argument("--dyn", type=int, default=0)
    p.add_argument("--ltag", action="store_true")
    p.add_argument("--solo", action="store_true")
    p.add_argument("--qown", action="store_true")
    p.add_argument("--qt", type=int, default=0)
    p.add_argument("--hold", action="store_true")
    p.add_argument("--st2", action="store_true")
    p.add_argument("--pre", type=int, default=0)
    p.add_argument("--dlook", type=int, default=2)
    p.add_argument("--dsleep", type=int, default=4)
    p.add_argument("-o", default="parallel_sum__gqa_block_cached__moe_arch_mod__decode.s")
    args = p.parse_args()
    g = Gen(dbg=args.dbg, wflag=args.wflag, hdbg=args.hdbg, spin=args.spin, perturb=args.perturb,
            forceslow=args.forceslow, auxprio=args.auxprio, qprio=args.qprio, nofast=args.nofast, early=args.early, nob=args.nob, ilv=args.ilv, series=args.series, drain=not args.nodrain, fasta0=args.fasta0, ppoll=args.ppoll, noa0=args.noa0, pool=args.pool, pmap=args.pmap, nstat=args.nstat, rot=args.rot, atlat=args.atlat, vrot=args.vrot, grot=args.grot, qf=args.qf, dyn=args.dyn, dlook=args.dlook, dsleep=args.dsleep, ltag=args.ltag, pre=args.pre, st2=args.st2, hold=args.hold, qt=args.qt, qown=args.qown, solo=args.solo)
    t = g.build()
    open(args.o, "w").write(t)
    print("wrote", args.o, len(t), "bytes")
```

```python
import sys
from asmlib import Asm

KNAME = "parallel_sum__gqa_block_cached__moe_arch_mod__decode_kernel"
WS_QG = 0x1000
WS_XT = 0x6000
WS_ST = 0x8000
WS_AP = 0x10000
WS_GU = 0x60000
WS_OP = 0x100000
WS_CNT = 0xA0000
WS_QP = 0x80000
WS_APL = 0xC0000
WS_DBG = 0x200000
WS_SIZE = 0x300000
L_T = 0; L_Q = 4096; L_O = 5120; L_ST = 13312; L_G = 13568; L_PP = 14592; L_RS = 14848
L_CNT = 14852; L_SAME = 14856; L_HP = 14912; L_TAB = 15168; NTAB = 40
L_TK = L_TAB
LDS_BYTES = 15360
SPIN_LIMIT = 40000

S_X, S_K, S_V, S_WQ, S_WO, S_WR, S_WG, S_WU, S_WD, S_OUT, S_WS = 8, 10, 12, 14, 16, 20, 22, 24, 26, 28, 32
S_G, S_SP, S_WAVE, S_TAG = 34, 35, 36, 37
SRD_WS = 40
SRD_A = 44
SRD_B = 48
SRD_C = 52
SRD_D = 4
S_OFF = 56
S_SO = 3
S_OFFS = (76, 77, 78)
S_SPIN = 57
S_HI = 58
S_LOG2E = 59
S_SCALE = 60
S_M1 = 62
S_M2 = 64
S_T0 = 66
S_TS = 80
S_DR = 74
S_CB = 38
S_TK = 79
S_RND = 75

def srd(a, d, base, off_sgpr=None, off_imm=0, size=0):
    if off_sgpr is not None:
        a(f"s_add_u32 s{d}, s{base}, s{off_sgpr}")
        a(f"s_addc_u32 s{d+1}, s{base+1}, 0")
    else:
        a(f"s_mov_b32 s{d}, s{base}")
        a(f"s_mov_b32 s{d+1}, s{base+1}")
    a(f"s_mov_b32 s{d+2}, {size:#x}")
    a(f"s_mov_b32 s{d+3}, 0x00020000")

def S(d): return f"s[{d}:{d+3}]"
def V4(r): return f"v[{r}:{r+3}]"
def V2(r): return f"v[{r}:{r+1}]"

def allreduce64(a, v, t, op):
    a(f"{op}_dpp v{v}, v{v}, v{v} quad_perm:[1,0,3,2] row_mask:0xf bank_mask:0xf")
    a(f"{op}_dpp v{v}, v{v}, v{v} quad_perm:[2,3,0,1] row_mask:0xf bank_mask:0xf")
    a(f"{op}_dpp v{v}, v{v}, v{v} row_half_mirror row_mask:0xf bank_mask:0xf")
    a(f"{op}_dpp v{v}, v{v}, v{v} row_mirror row_mask:0xf bank_mask:0xf")
    rows_reduce(a, v, t, op)

def rows_reduce(a, v, t, op):
    a(f"v_mov_b32 v{t}, v{v}")
    a(f"v_permlane16_swap_b32 v{v}, v{t}")
    a(f"{op} v{v}, v{v}, v{t}")
    a(f"v_mov_b32 v{t}, v{v}")
    a(f"v_permlane32_swap_b32 v{v}, v{t}")
    a(f"{op} v{v}, v{v}, v{t}")

def rnd(a, v):
    a(f"v_cvt_pk_bf16_f32 v{v}, v{v}, v{v}")
    a(f"v_and_b32 v{v}, s{S_HI}, v{v}")

class Gen:
    def __init__(self, dbg=False, wflag="nt", hdbg=False, spin=None, perturb=None, forceslow=False, auxprio=3, qprio=3, nofast=False, early=3, nob=False, ilv=False, series=False, drain=True, fasta0=False, ppoll=0, noa0=False, pool=False, pmap='blk', nstat=16, rot=0, atlat=False, vrot=0, grot=0, qf=0, dyn=0, dlook=2, dsleep=4, ltag=False, pre=0, st2=False, hold=False, qt=0, qown=False, solo=False, lg=0, lgsl=1):
        self.hdbg = hdbg; self.spin = spin; self.perturb = perturb
        if hdbg: dbg = False
        self.dbg = dbg; self.wflag = wflag; self.forceslow = forceslow; self.auxprio = auxprio; self.qprio = qprio
        self.nofast = nofast; self.early = early; self.nob = nob; self.ilv = ilv; self.series = series; self.drain = drain; self.fasta0 = fasta0; self.ppoll = ppoll; self.noa0 = noa0; self.pool = pool; self.pmap = pmap; self.nstat = nstat; self.rot = rot; self.atlat = atlat; self.vrot = vrot; self.grot = grot; self.qf = qf; self.dyn = dyn; self.dlook = dlook; self.dsleep = dsleep; self.ltag = ltag; self.pre = pre; self.st2 = st2; self.hold = hold; self.qt = qt; self.qown = qown; self.solo = solo; self.lg = lg; self.lgsl = lgsl
        if qt: self.qf = qt
        self.a = Asm()

    def hdump(self, items, nsleep=5):
        if not self.hdbg: return
        a = self.a
        a("s_waitcnt lgkmcnt(0) vmcnt(0)")
        a("s_setprio 0")
        for _ in range(nsleep): a("s_sleep 127")
        srd(a, SRD_C, 30, size=256)
        a("s_mov_b64 exec, 1")
        for (st, w, mode) in items:
            if mode == "min":
                a(f"s_not_b32 s{S_T0}, s{S_TS+2*st}")
                a(f"v_mov_b32 v2, s{S_T0}")
            else:
                a(f"v_mov_b32 v2, s{S_TS+2*st}")
            a(f"v_mov_b32 v3, {4*w}")
            a(f"buffer_atomic_umax v2, v3, {S(SRD_C)}, 0 offen sc1")
            a("s_waitcnt vmcnt(0)")
        a("s_mov_b64 exec, -1")

    def stamp(self, idx):
        if self.dbg or self.hdbg or self.spin:
            self.a(f"s_memrealtime s[{S_TS+2*idx}:{S_TS+2*idx+1}]")

    def dump_stamps(self, n, slot, vt=2):
        if not self.dbg: return
        a = self.a
        a("s_waitcnt lgkmcnt(0) vmcnt(0)")
        a(f"s_lshl_b32 s{S_T0}, s2, 10")
        a(f"s_lshl_b32 s{S_T0+1}, s{S_WAVE}, 7")
        a(f"s_add_u32 s{S_T0}, s{S_T0}, s{S_T0+1}")
        a(f"s_add_u32 s{S_T0}, s{S_T0}, {WS_DBG}")
        a("s_mov_b64 exec, 1")
        a(f"v_mov_b32 v{vt+2}, s{S_T0}")
        for i in range(n):
            a(f"v_mov_b32 v{vt}, s{S_TS+2*i}")
            a(f"v_mov_b32 v{vt+1}, s{S_TS+2*i+1}")
            a(f"buffer_store_dwordx2 {V2(vt)}, v{vt+2}, {S(SRD_WS)}, 0 offen offset:{8*i}")
            a("s_waitcnt vmcnt(0)")
        a("s_mov_b64 exec, -1")

    def spin_guard(self, lab_retry, lab_done, sleep=1):
        a = self.a
        a(f"s_sub_u32 s{S_SPIN}, s{S_SPIN}, 1")
        a(f"s_cmp_eq_u32 s{S_SPIN}, 0")
        a(f"s_cbranch_scc1 {lab_done}")
        if sleep: a(f"s_sleep {sleep}")
        a(f"s_branch {lab_retry}")

    def prologue(self):
        a = self.a
        a("s_cmp_ge_u32 s2, 256")
        a("s_cbranch_scc1 L_end")
        self.stamp(0)
        a("s_load_dwordx16 s[8:23], s[0:1], 0")
        a("s_load_dwordx8 s[24:31], s[0:1], 64")
        a(f"s_load_dwordx2 s[{S_WS}:{S_WS+1}], s[0:1], 96")
        a("v_lshrrev_b32 v1, 6, v0")
        a("v_and_b32 v0, 63, v0")
        a(f"s_and_b32 s{S_G}, s2, 7")
        a(f"s_lshr_b32 s{S_SP}, s2, 3")
        a(f"v_readfirstlane_b32 s{S_WAVE}, v1")
        a(f"s_mov_b32 s{S_HI}, 0xffff0000")
        a(f"s_mov_b32 s{S_LOG2E}, 0x3fb8aa3b")
        a(f"s_mov_b32 s{S_SPIN}, {SPIN_LIMIT}")
        a("s_waitcnt lgkmcnt(0)")
        if self.st2: self.stamp(6)
        if not self.ltag: a(f"s_load_dword s{S_TAG}, s[{S_WS}:{S_WS+1}], 0")
        srd(a, SRD_WS, S_WS, size=WS_SIZE)
        a(f"s_cmp_lt_u32 s{S_WAVE}, 4")
        a("s_cbranch_scc1 L_S")
        if self.solo:
            a(f"s_cmp_eq_u32 s{S_WAVE}, 4")
            a("s_cbranch_scc1 L_F")
            a("s_branch L_W")
        elif self.qf:
            a("s_branch L_F")
        else:
            a(f"s_cmp_eq_u32 s{S_WAVE}, 4")
            a("s_cbranch_scc1 L_Q")
            a("s_branch L_W")

    def get_tag(self):
        a = self.a
        a("s_waitcnt lgkmcnt(0)")
        a(f"s_add_u32 s{S_TAG}, s{S_TAG}, 1")

    RING = 64
    def issueK(self, slot):
        a = self.a; b = self.RING + 64*slot
        for t in range(2):
            for c in range(4):
                r = b + 16*t + 4*c
                a(f"buffer_load_dwordx4 {V4(r)}, v{1+t}, {S(SRD_A)}, s{S_OFFS[slot]} offen offset:{64*c} nt")
    def issueV(self, slot):
        a = self.a; b = self.RING + 64*slot + 32
        for r8 in range(8):
            r = b + 4*r8
            a(f"buffer_load_dwordx4 {V4(r)}, v{3+(r8>>2)}, {S(SRD_B)}, s{S_OFFS[slot]} offen offset:{1024*(r8&3)} nt")

    def tk2off(self, slot):
        a = self.a
        NS = self.nstat
        if self.pmap == "blk":
            a(f"s_and_b32 s{S_T0}, s{S_TK}, 31"); a(f"s_lshl_b32 s{S_T0}, s{S_T0}, 19")
            a(f"s_lshr_b32 s{S_OFFS[slot]}, s{S_TK}, 5"); a(f"s_add_u32 s{S_OFFS[slot]}, s{S_OFFS[slot]}, {NS-4}")
            a(f"s_lshl_b32 s{S_OFFS[slot]}, s{S_OFFS[slot]}, 13")
            a(f"s_add_u32 s{S_OFFS[slot]}, s{S_OFFS[slot]}, s{S_T0}")
        elif self.pmap == "t4":
            a(f"s_and_b32 s{S_T0}, s{S_TK}, 3"); a(f"s_lshl_b32 s{S_T0}, s{S_T0}, 13")
            a(f"s_bfe_u32 s100, s{S_TK}, 0x50002"); a("s_lshl_b32 s100, s100, 19")
            a(f"s_add_u32 s{S_T0}, s{S_T0}, s100")
            a(f"s_lshr_b32 s{S_OFFS[slot]}, s{S_TK}, 7")
            a(f"s_lshl_b32 s{S_OFFS[slot]}, s{S_OFFS[slot]}, 15")
            a(f"s_add_u32 s{S_OFFS[slot]}, s{S_OFFS[slot]}, s{S_T0}")
            a(f"s_cmp_ge_u32 s{S_TK}, 2048")
            return
        elif self.pmap == "w4":
            a(f"s_and_b32 s{S_T0}, s{S_TK}, 31"); a(f"s_lshl_b32 s{S_T0}, s{S_T0}, 19")
            a(f"s_add_u32 s{S_T0}, s{S_T0}, s75")
            a(f"s_lshr_b32 s{S_OFFS[slot]}, s{S_TK}, 5")
            if self.vrot or self.grot:
                a(f"s_and_b32 s100, s{S_TK}, 31"); a(f"s_mul_i32 s100, s100, {self.vrot}")
                a(f"s_add_u32 s{S_OFFS[slot]}, s{S_OFFS[slot]}, s100")
                a(f"s_add_u32 s{S_OFFS[slot]}, s{S_OFFS[slot]}, s101")
                a(f"s_and_b32 s{S_OFFS[slot]}, s{S_OFFS[slot]}, 15")
            a(f"s_lshl_b32 s{S_OFFS[slot]}, s{S_OFFS[slot]}, 15")
            a(f"s_add_u32 s{S_OFFS[slot]}, s{S_OFFS[slot]}, s{S_T0}")
            a(f"s_cmp_ge_u32 s{S_TK}, 512")
            return
        else:
            raise NotImplementedError
        a(f"s_cmp_ge_u32 s{S_TK}, {32*(64-NS+4)}")

    def fetch_ticket(self, mode):
        a = self.a
        if mode == "pool" and self.pmap in ("w4", "t4"):
            st = a.uniq("L_st"); c2 = a.uniq("L_c2")
            a(f"s_cmp_eq_u32 s3, 0"); a(f"s_cbranch_scc1 {st}")
            a(f"s_mov_b32 s{S_TK}, 1")
            a(f"s_atomic_add s{S_TK}, s[{S_CB}:{S_CB+1}], 0 glc")
            a(f"s_branch {c2}")
            a.label(st)
            if self.rot:
                a(f"s_add_u32 s{S_T0}, s{S_TK}, {self.rot}"); a(f"s_and_b32 s{S_T0}, s{S_T0}, 31")
                a(f"s_add_u32 s{S_TK}, s{S_TK}, 32"); a(f"s_andn2_b32 s{S_TK}, s{S_TK}, 31")
                a(f"s_or_b32 s{S_TK}, s{S_TK}, s{S_T0}")
            else:
                a(f"s_add_u32 s{S_TK}, s{S_TK}, {32 if self.pmap == 'w4' else 128}")
            a.label(c2)
        elif mode == "pool":
            a(f"s_mov_b32 s{S_TK}, 1")
            a(f"s_atomic_add s{S_TK}, s[{S_CB}:{S_CB+1}], 0 glc")
        else:
            a("s_mov_b64 exec, 1")
            a(f"ds_inc_rtn_u32 v0, v10, v5 offset:{L_CNT}")
            a("s_mov_b64 exec, -1")

    def group(self, slot, kwait=40, vwait=40, reissue=True, mode=None):
        a = self.a
        if mode is not None:
            return self.group_p(slot, mode)
        b = self.RING + 64*slot
        SC = 32; PB = 10; D0 = 40; D1 = 44; Q = 48
        vM, vMC, vL, vMX, vMY = 6, 8, 9, 5, 7
        a(f"s_cmp_ge_u32 s{S_OFFS[slot]}, {0x1000000 if (self.ilv or self.dyn) else 0x80000:#x}")
        a("s_cbranch_scc1 L_S_done")
        a("s_mov_b64 exec, 1")
        a(f"ds_inc_rtn_u32 v28, v10, v5 offset:{L_CNT}")
        a("s_mov_b64 exec, -1")
        if self.drain: self.ladder([40, 24, 8])
        else: a(f"s_waitcnt vmcnt({kwait})")
        if self.dyn:
            a("s_mov_b64 exec, 1")
            a("s_waitcnt lgkmcnt(0)")
            a("v_and_b32 v29, -4, v28"); a(f"v_min_u32 v29, {4*(NTAB-1)}, v29")
            a(f"ds_read_b32 v30, v29 offset:{L_TAB}")
            a("s_mov_b64 exec, -1")
        for c in range(4):
            for t in range(2):
                cc = "0" if c == 0 else V4(SC+4*t)
                a(f"v_mfma_f32_16x16x32_bf16 {V4(SC+4*t)}, {V4(b+16*t+4*c)}, {V4(Q+4*c)}, {cc}")
        if self.series: a("s_memrealtime s[96:97]")
        a("s_waitcnt lgkmcnt(0)")
        if self.series:
            a("s_mov_b32 m0, s95"); a("s_nop 4"); a("v_writelane_b32 v0, s96, m0"); a("s_add_u32 s95, s95, 1")
        a(f"v_readfirstlane_b32 s{S_T0}, v28")
        if self.dyn:
            rt = a.uniq("L_rt"); rdy = a.uniq("L_rdy")
            a("v_readfirstlane_b32 s3, v30")
            a("s_cmp_eq_u32 s3, -1"); a(f"s_cbranch_scc0 {rdy}")
            a.label(rt)
            a("s_mov_b64 exec, 1")
            a(f"ds_read_b32 v30, v29 offset:{L_TAB}")
            a("s_mov_b64 exec, -1")
            a("s_waitcnt lgkmcnt(0)")
            a("v_readfirstlane_b32 s3, v30")
            if self.dbg: a("s_add_u32 s94, s94, 1")
            a("s_cmp_eq_u32 s3, -1"); a(f"s_cbranch_scc0 {rdy}")
            self.spin_guard(rt, rdy, sleep=1)
            a.label(rdy)
            a(f"s_and_b32 s{S_T0}, s{S_T0}, 3"); a(f"s_lshl_b32 s{S_T0}, s{S_T0}, 13")
            a(f"s_min_u32 s3, s3, 0x1000000")
            a(f"s_add_u32 s{S_OFFS[slot]}, s3, s{S_T0}")
        elif self.ilv:
            a(f"s_lshl_b32 s{S_T0}, s{S_T0}, 18")
            a(f"s_add_u32 s{S_OFFS[slot]}, s{S_T0}, s79")
        elif self.vrot or self.grot:
            a(f"s_add_u32 s3, s{S_T0}, s75"); a("s_and_b32 s3, s3, 63"); a("s_lshl_b32 s3, s3, 13")
            a(f"s_cmp_ge_u32 s{S_T0}, 64"); a(f"s_cselect_b32 s{S_OFFS[slot]}, 0x80000, s3")
        else:
            a(f"s_lshl_b32 s{S_OFFS[slot]}, s{S_T0}, 13")
        if self.drain:
            inv = a.uniq("L_inv"); cont = a.uniq("L_cont")
            a(f"s_cmp_ge_u32 s{S_OFFS[slot]}, {0x1000000 if (self.ilv or self.dyn) else 0x80000:#x}")
            a(f"s_cbranch_scc0 {cont}")
            a(f"s_add_u32 s{S_DR}, s{S_DR}, 1")
            a(f"s_branch {inv}")
            a.label(cont)
            self.issueK(slot)
            a.label(inv)
        else:
            self.issueK(slot)
        for k in range(4):
            s0 = SC+2*k; t = 28+k
            a(f"v_cvt_pk_bf16_f32 v{t}, v{s0}, v{s0+1}")
        for k in range(4):
            s0 = SC+2*k; t = 28+k
            a(f"v_lshlrev_b32 v{s0}, 16, v{t}")
            a(f"v_and_b32 v{s0+1}, s{S_HI}, v{t}")
        for k in range(4):
            s0 = SC+2*k
            a(f"v_pk_mul_f32 {V2(s0)}, {V2(s0)}, s[{S_SCALE}:{S_SCALE+1}]")
        for k in range(4):
            s0 = SC+2*k; t = 28+k
            a(f"v_cvt_pk_bf16_f32 v{t}, v{s0}, v{s0+1}")
        for k in range(4):
            s0 = SC+2*k; t = 28+k
            a(f"v_lshlrev_b32 v{s0}, 16, v{t}")
            a(f"v_and_b32 v{s0+1}, s{S_HI}, v{t}")
        a(f"v_max3_f32 v28, v{SC}, v{SC+1}, v{SC+2}")
        a(f"v_max3_f32 v29, v{SC+3}, v{SC+4}, v{SC+5}")
        a(f"v_max3_f32 v28, v28, v{SC+6}, v{SC+7}")
        a(f"v_max_f32 v28, v28, v29")
        a(f"v_cmp_gt_f32 vcc, v28, v{vM}")
        skip = a.uniq("L_skip")
        a(f"s_cbranch_vccz {skip}")
        rows_reduce(a, 28, 29, "v_max_f32")
        a(f"v_max_f32 v28, v28, v{vM}")
        a(f"v_mul_f32 v29, s{S_LOG2E}, v28")
        a(f"v_sub_f32 v30, v{vMC}, v29")
        a(f"v_exp_f32 v30, v30")
        a(f"v_mov_b32 v{vM}, v28")
        a(f"v_mov_b32 v{vMC}, v29")
        a(f"v_mul_f32 v{vL}, v{vL}, v30")
        for h in range(4):
            a(f"v_mov_b32_dpp v31, v30 row_newbcast:{4*h} row_mask:{1<<h:#x} bank_mask:0xf")
        for k in range(8):
            a(f"v_mul_f32 v{D0+k}, v{D0+k}, v31")
        a.label(skip)
        for k in range(8):
            a(f"v_fma_f32 v{SC+k}, v{SC+k}, s{S_LOG2E}, -v{vMC}")
        for k in range(8):
            a(f"v_exp_f32 v{SC+k}, v{SC+k}")
        for t in range(2):
            for r in range(4):
                a(f"v_cvt_pk_bf16_f32 v{28+r}, v{SC+4*t+r}, v{SC+4*t+r}")
            for r in range(4):
                a(f"v_and_b32 v{PB+4*r+2}, v{28+r}, v{vMX}")
                a(f"v_and_b32 v{PB+4*r+3}, v{28+r}, v{vMY}")
            if t == 0:
                if self.drain: self.ladder([40, 32, 16, 0])
                else: a(f"s_waitcnt vmcnt({vwait})")
            for r in range(4):
                vb = b + 32 + 4*(4*t+r)
                a(f"v_mfma_f32_16x16x32_bf16 {V4(D0)}, {V4(PB+4*r+2)}, {V4(vb)}, {V4(D0)}")
                a(f"v_mfma_f32_16x16x32_bf16 {V4(D1)}, {V4(PB+4*r)}, {V4(vb)}, {V4(D1)}")
        if self.drain:
            skv = a.uniq("L_skv")
            a(f"s_cmp_lg_u32 s{S_DR}, 0"); a(f"s_cbranch_scc1 {skv}")
            self.issueV(slot)
            a.label(skv)
        else:
            self.issueV(slot)
        a(f"v_pk_add_f32 v[28:29], {V2(SC)}, {V2(SC+2)}")
        a(f"v_pk_add_f32 v[30:31], {V2(SC+4)}, {V2(SC+6)}")
        a(f"v_pk_add_f32 v[28:29], v[28:29], v[30:31]")
        a(f"v_add_f32 v28, v28, v29")
        a(f"v_add_f32 v{vL}, v{vL}, v28")

    def group_p(self, slot, mode):
        a = self.a
        b = self.RING + 64*slot
        SC = 32; PB = 10; D0 = 40; D1 = 44; Q = 48
        vM, vMC, vL, vMX, vMY = 6, 8, 9, 5, 7
        LIM = 0x1000000
        a(f"s_cmp_ge_u32 s{S_OFFS[slot]}, {LIM:#x}")
        a("s_cbranch_scc1 L_S_done")
        self.ladder([40, 24, 8])
        for c in range(4):
            for t in range(2):
                cc = "0" if c == 0 else V4(SC+4*t)
                a(f"v_mfma_f32_16x16x32_bf16 {V4(SC+4*t)}, {V4(b+16*t+4*c)}, {V4(Q+4*c)}, {cc}")
        ser = self.series and mode == "pool"
        if ser: a("s_memrealtime s[96:97]")
        inv = a.uniq("L_inv"); cont = a.uniq("L_cont")
        if self.atlat: a("s_memrealtime s[96:97]")
        a("s_waitcnt lgkmcnt(0)")
        if self.atlat:
            a("s_memrealtime s[98:99]"); a("s_waitcnt lgkmcnt(0)")
            a("s_sub_u32 s96, s98, s96"); a("s_add_u32 s94, s94, s96"); a("s_max_u32 s95, s95, s96")
        if ser:
            a("s_mov_b32 m0, s95"); a("s_nop 4"); a("v_writelane_b32 v0, s96, m0"); a("s_add_u32 s95, s95, 1")
        a(f"s_cmp_lg_u32 s{S_DR}, 0")
        a(f"s_cbranch_scc1 {inv}")
        if mode == "lds":
            a(f"v_readfirstlane_b32 s{S_TK}, v0")
            a(f"s_lshl_b32 s{S_TK}, s{S_TK}, 5"); a(f"s_add_u32 s{S_TK}, s{S_TK}, s{S_SP}")
        self.tk2off(slot)
        a(f"s_cbranch_scc1 {inv}")
        self.fetch_ticket(mode)
        self.issueK(slot)
        a(f"s_branch {cont}")
        a.label(inv)
        a(f"s_mov_b32 s{S_OFFS[slot]}, {LIM:#x}")
        a(f"s_add_u32 s{S_DR}, s{S_DR}, 1")
        a.label(cont)
        for k in range(4):
            s0 = SC+2*k; t = 28+k
            a(f"v_cvt_pk_bf16_f32 v{t}, v{s0}, v{s0+1}")
        for k in range(4):
            s0 = SC+2*k; t = 28+k
            a(f"v_lshlrev_b32 v{s0}, 16, v{t}")
            a(f"v_and_b32 v{s0+1}, s{S_HI}, v{t}")
        for k in range(4):
            s0 = SC+2*k
            a(f"v_pk_mul_f32 {V2(s0)}, {V2(s0)}, s[{S_SCALE}:{S_SCALE+1}]")
        for k in range(4):
            s0 = SC+2*k; t = 28+k
            a(f"v_cvt_pk_bf16_f32 v{t}, v{s0}, v{s0+1}")
        for k in range(4):
            s0 = SC+2*k; t = 28+k
            a(f"v_lshlrev_b32 v{s0}, 16, v{t}")
            a(f"v_and_b32 v{s0+1}, s{S_HI}, v{t}")
        a(f"v_max3_f32 v28, v{SC}, v{SC+1}, v{SC+2}")
        a(f"v_max3_f32 v29, v{SC+3}, v{SC+4}, v{SC+5}")
        a(f"v_max3_f32 v28, v28, v{SC+6}, v{SC+7}")
        a(f"v_max_f32 v28, v28, v29")
        a(f"v_cmp_gt_f32 vcc, v28, v{vM}")
        skip = a.uniq("L_skip")
        a(f"s_cbranch_vccz {skip}")
        rows_reduce(a, 28, 29, "v_max_f32")
        a(f"v_max_f32 v28, v28, v{vM}")
        a(f"v_mul_f32 v29, s{S_LOG2E}, v28")
        a(f"v_sub_f32 v30, v{vMC}, v29")
        a(f"v_exp_f32 v30, v30")
        a(f"v_mov_b32 v{vM}, v28")
        a(f"v_mov_b32 v{vMC}, v29")
        a(f"v_mul_f32 v{vL}, v{vL}, v30")
        for h in range(4):
            a(f"v_mov_b32_dpp v31, v30 row_newbcast:{4*h} row_mask:{1<<h:#x} bank_mask:0xf")
        for k in range(8):
            a(f"v_mul_f32 v{D0+k}, v{D0+k}, v31")
        a.label(skip)
        for k in range(8):
            a(f"v_fma_f32 v{SC+k}, v{SC+k}, s{S_LOG2E}, -v{vMC}")
        for k in range(8):
            a(f"v_exp_f32 v{SC+k}, v{SC+k}")
        for t in range(2):
            for r in range(4):
                a(f"v_cvt_pk_bf16_f32 v{28+r}, v{SC+4*t+r}, v{SC+4*t+r}")
            for r in range(4):
                a(f"v_and_b32 v{PB+4*r+2}, v{28+r}, v{vMX}")
                a(f"v_and_b32 v{PB+4*r+3}, v{28+r}, v{vMY}")
            if t == 0:
                self.ladder([40, 32, 16, 0])
            for r in range(4):
                vb = b + 32 + 4*(4*t+r)
                a(f"v_mfma_f32_16x16x32_bf16 {V4(D0)}, {V4(PB+4*r+2)}, {V4(vb)}, {V4(D0)}")
                a(f"v_mfma_f32_16x16x32_bf16 {V4(D1)}, {V4(PB+4*r)}, {V4(vb)}, {V4(D1)}")
        skv = a.uniq("L_skv")
        a(f"s_cmp_lg_u32 s{S_DR}, 0"); a(f"s_cbranch_scc1 {skv}")
        self.issueV(slot)
        a.label(skv)
        a(f"v_pk_add_f32 v[28:29], {V2(SC)}, {V2(SC+2)}")
        a(f"v_pk_add_f32 v[30:31], {V2(SC+4)}, {V2(SC+6)}")
        a(f"v_pk_add_f32 v[28:29], v[28:29], v[30:31]")
        a(f"v_add_f32 v28, v28, v29")
        a(f"v_add_f32 v{vL}, v{vL}, v28")

    def ladder(self, waits):
        a = self.a
        labs = [a.uniq("L_lad") for _ in waits]
        for i in range(len(waits)-1):
            a(f"s_cmp_eq_u32 s{S_DR}, {i}"); a(f"s_cbranch_scc1 {labs[i]}")
        for i in range(len(waits)-1, -1, -1):
            if i < len(waits)-1: a.label(labs[i])
            a(f"s_waitcnt vmcnt({waits[i]})")

    def masksXY(self, vX, vY, t):
        a = self.a
        a(f"v_and_b32 v{t}, 3, v0")
        a(f"v_mov_b32 v{vX}, 0"); a(f"v_mov_b32 v{vY}, 0")
        a(f"v_mov_b32 v{t+1}, 0xffff")
        a(f"v_mov_b32 v{t+2}, s{S_HI}")
        a(f"v_cmp_eq_u32 vcc, 0, v{t}"); a(f"v_cndmask_b32 v{vX}, v{vX}, v{t+1}, vcc")
        a(f"v_cmp_eq_u32 vcc, 1, v{t}"); a(f"v_cndmask_b32 v{vX}, v{vX}, v{t+2}, vcc")
        a(f"v_cmp_eq_u32 vcc, 2, v{t}"); a(f"v_cndmask_b32 v{vY}, v{vY}, v{t+1}, vcc")
        a(f"v_cmp_eq_u32 vcc, 3, v{t}"); a(f"v_cndmask_b32 v{vY}, v{vY}, v{t+2}, vcc")

    def swave(self):
        a = self.a
        a.label("L_S")
        if self.ltag: a(f"s_load_dword s{S_TAG}, s[{S_WS}:{S_WS+1}], 0")
        a(f"s_lshl_b32 s{S_T0}, s{S_G}, 24")
        wide = self.ilv or self.pool or self.dyn
        if not wide:
            a(f"s_lshl_b32 s{S_T0+1}, s{S_SP}, 19")
            a(f"s_add_u32 s{S_T0}, s{S_T0}, s{S_T0+1}")
        srd(a, SRD_A, S_K, S_T0, size=0x1000000 if wide else 0x80000)
        srd(a, SRD_B, S_V, S_T0, size=0x1000000 if wide else 0x80000)
        a(f"s_lshl_b32 s79, s{S_SP}, 13")
        a("v_and_b32 v1, 3, v0"); a("v_lshlrev_b32 v1, 10, v1")
        a("v_bfe_u32 v2, v0, 2, 2"); a("v_lshlrev_b32 v2, 8, v2"); a("v_add_u32 v1, v1, v2")
        a("v_lshrrev_b32 v2, 4, v0"); a("v_lshlrev_b32 v2, 4, v2"); a("v_add_u32 v1, v1, v2")
        a("v_add_u32 v2, 0x1000, v1")
        a("v_lshlrev_b32 v3, 4, v0"); a("v_add_u32 v4, 0x1000, v3")
        for k in range(3):
            if self.ilv:
                a(f"s_lshl_b32 s{S_OFFS[k]}, s{S_WAVE}, 18")
                a(f"s_add_u32 s{S_OFFS[k]}, s{S_OFFS[k]}, s79")
                if k: a(f"s_add_u32 s{S_OFFS[k]}, s{S_OFFS[k]}, {(4<<18)*k}")
            elif (self.vrot or self.grot):
                if k == 0:
                    a(f"s_mul_i32 s92, s{S_SP}, {self.vrot}"); a(f"s_mul_i32 s93, s{S_G}, {self.grot}")
                    a("s_add_u32 s92, s92, s93"); a("s_and_b32 s92, s92, 15")
                a(f"s_add_u32 s{S_OFFS[k]}, s92, {k}"); a(f"s_and_b32 s{S_OFFS[k]}, s{S_OFFS[k]}, 15")
                a(f"s_lshl_b32 s{S_OFFS[k]}, s{S_OFFS[k]}, 15")
                a(f"s_lshl_b32 s93, s{S_WAVE}, 13"); a(f"s_add_u32 s{S_OFFS[k]}, s{S_OFFS[k]}, s93")
                if self.pool:
                    if k == 0: a(f"s_lshl_b32 s79, s{S_SP}, 19")
                    a(f"s_add_u32 s{S_OFFS[k]}, s{S_OFFS[k]}, s79")
            else:
                a(f"s_lshl_b32 s{S_OFFS[k]}, s{S_WAVE}, 13")
                if k: a(f"s_add_u32 s{S_OFFS[k]}, s{S_OFFS[k]}, {32768*k}")
                if self.pool or self.dyn:
                    if k == 0: a(f"s_lshl_b32 s79, s{S_SP}, 19")
                    a(f"s_add_u32 s{S_OFFS[k]}, s{S_OFFS[k]}, s79")
        if self.pre == 1:
            b0 = self.RING
            a(f"buffer_load_dwordx4 {V4(b0)}, v1, {S(SRD_A)}, s{S_OFFS[0]} offen offset:0 nt")
            a(f"buffer_load_dwordx4 {V4(b0+32)}, v3, {S(SRD_B)}, s{S_OFFS[0]} offen offset:0 nt")
        if self.pre == 2:
            self.issueK(0)
        if not self.noa0: a("s_barrier")
        self.stamp(1)
        if self.pre == 9:
            b0 = self.RING
            a(f"buffer_load_dwordx4 {V4(b0)}, v1, {S(SRD_A)}, s{S_OFFS[0]} offen offset:0 nt")
            a("s_waitcnt vmcnt(0)"); a("s_memrealtime s[92:93]")
            a(f"buffer_load_dwordx4 {V4(b0+32)}, v3, {S(SRD_B)}, s{S_OFFS[0]} offen offset:0 nt")
            a("s_waitcnt vmcnt(0)"); a("s_memrealtime s[98:99]"); a("s_waitcnt lgkmcnt(0)")
            a("s_mov_b32 s100, s92"); a("s_mov_b32 s101, s98")
        if self.hold: a("s_barrier")
        for slot in range(3):
            if slot == self.early: a("s_barrier")
            if self.pre == 2 and slot == 0: self.issueV(slot)
            else: self.issueK(slot); self.issueV(slot)
        self.masksXY(5, 7, 28)
        for k in range(5):
            a(f"v_mov_b32 v{10+4*k}, 0"); a(f"v_mov_b32 v{11+4*k}, 0")
        for k in range(8): a(f"v_mov_b32 v{40+k}, 0")
        a("v_mov_b32 v6, 0xff800000"); a("v_mov_b32 v8, 0xff800000"); a("v_mov_b32 v9, 0")
        a(f"s_mov_b32 s{S_SCALE}, 0x3db504f3"); a(f"s_mov_b32 s{S_SCALE+1}, 0x3db504f3")
        a("v_bfe_u32 v28, v0, 2, 2"); a("v_lshlrev_b32 v28, 8, v28")
        a("v_lshrrev_b32 v29, 4, v0"); a("v_lshlrev_b32 v29, 4, v29"); a("v_add_u32 v28, v28, v29")
        a(f"s_lshl_b32 s{S_T0}, s{S_G}, 5"); a(f"s_add_u32 s{S_T0}, s{S_T0}, s{S_SP}")
        a(f"s_lshl_b32 s{S_T0}, s{S_T0}, 12")
        a(f"s_lshl_b32 s67, s{S_WAVE}, 10")
        a(f"s_add_u32 s67, s{S_T0}, s67"); a(f"s_add_u32 s67, s67, {WS_OP}")
        a(f"s_lshl_b32 s68, s{S_G}, 2"); a(f"s_add_u32 s68, s68, s{S_WAVE}")
        a(f"s_lshl_b32 s68, s68, 5"); a(f"s_add_u32 s68, s68, s{S_SP}")
        a(f"s_lshl_b32 s68, s68, 4"); a(f"s_add_u32 s68, s68, {WS_ST}")
        a(f"s_lshr_b32 s74, s{S_SP}, 3"); a(f"s_bfe_u32 s75, s{S_SP}, 0x10002")
        a(f"s_lshl_b32 s{S_T0}, s{S_G}, 5"); a(f"s_lshl_b32 s69, s{S_WAVE}, 3")
        a(f"s_add_u32 s{S_T0}, s{S_T0}, s69"); a(f"s_lshl_b32 s{S_T0}, s{S_T0}, 12")
        a(f"s_lshl_b32 s69, s74, 10"); a(f"s_add_u32 s{S_T0}, s{S_T0}, s69")
        a(f"s_lshl_b32 s69, s75, 9"); a(f"s_add_u32 s{S_T0}, s{S_T0}, s69")
        a(f"s_add_u32 s69, s{S_T0}, {WS_OP}")
        for u in range(1, 4):
            a(f"s_add_u32 s{69+u}, s69, {8192*u}")
        a(f"s_lshl_b32 s73, s{S_G}, 2"); a(f"s_add_u32 s73, s73, s74")
        a(f"s_lshl_b32 s73, s73, 9"); a(f"s_add_u32 s73, s73, {WS_ST}")
        a(f"s_mov_b32 s{S_DR}, 0")
        if self.dyn and self.dbg: a("s_mov_b32 s94, 0")
        if (self.vrot or self.grot) and not self.pool:
            a(f"s_mul_i32 s75, s{S_SP}, {self.vrot}"); a(f"s_mul_i32 s3, s{S_G}, {self.grot}")
            a("s_add_u32 s75, s75, s3"); a("s_and_b32 s75, s75, 15"); a("s_lshl_b32 s75, s75, 2")
        if self.pool:
            assert self.nstat == 16
            a(f"s_lshl_b32 s{S_T0}, s{S_G}, 12"); a(f"s_add_u32 s{S_T0}, s{S_T0}, {WS_CNT}")
            a(f"s_add_u32 s{S_CB}, s{S_WS}, s{S_T0}"); a(f"s_addc_u32 s{S_CB+1}, s{S_WS+1}, 0")
            if self.pmap == "t4":
                a(f"s_lshl_b32 s{S_TK}, s{S_SP}, 2"); a(f"s_add_u32 s{S_TK}, s{S_TK}, s{S_WAVE}")
                a(f"s_add_u32 s{S_TK}, s{S_TK}, {3 << 7}")
            elif self.pmap == "w4":
                a(f"s_lshl_b32 s{S_T0}, s{S_WAVE}, 10")
                a(f"s_add_u32 s{S_CB}, s{S_CB}, s{S_T0}"); a(f"s_addc_u32 s{S_CB+1}, s{S_CB+1}, 0")
                a(f"s_add_u32 s{S_TK}, s{S_SP}, 96")
                a(f"s_lshl_b32 s75, s{S_WAVE}, 13")
                a(f"s_mul_i32 s101, s{S_G}, {self.grot}")
            else:
                a(f"s_lshl_b32 s{S_TK}, s{S_WAVE}, 5"); a(f"s_add_u32 s{S_TK}, s{S_TK}, s{S_SP}")
        self.get_tag()
        self.stamp(2)
        if not self.hold: a("s_barrier")
        self.stamp(3)
        for c in range(4):
            a(f"ds_read_b128 {V4(48+4*c)}, v28 offset:{L_Q+64*c}")
        if self.pool: a(f"ds_read_b32 v29, v10 offset:{L_SAME}")
        a("s_waitcnt lgkmcnt(0)")
        if self.pool:
            a(f"v_readfirstlane_b32 s3, v29")
            if self.pmap not in ("w4", "t4"):
                a(f"s_cmp_eq_u32 s3, 0")
                a("s_cbranch_scc1 L_S_lds")
            if self.series: a("s_mov_b32 s95, 0"); a("v_mov_b32 v0, 0")
            if self.atlat: a("s_mov_b32 s94, 0"); a("s_mov_b32 s95, 0")
            a.label("L_S_loop")
            for slot in range(3):
                self.group(slot, mode="pool")
            a("s_branch L_S_loop")
            if self.pmap not in ("w4", "t4"):
                a.label("L_S_lds")
                a(f"v_mov_b32 v0, s{S_WAVE}")
                a.label("L_S_loop2")
                for slot in range(3):
                    self.group(slot, mode="lds")
                a("s_branch L_S_loop2")
        else:
            if self.series: a("s_mov_b32 s95, 0"); a("v_mov_b32 v0, 0")
            a.label("L_S_loop")
            for slot in range(3):
                self.group(slot)
            a("s_branch L_S_loop")
        a.label("L_S_done")
        if self.atlat: a("s_mov_b32 s100, s94"); a("s_mov_b32 s101, s95")
        if self.dyn and self.dbg: a("s_mov_b32 s100, s94")
        a("s_waitcnt vmcnt(0)")
        self.stamp(4)
        if self.pool and not self.series:
            a("v_mbcnt_lo_u32_b32 v0, -1, 0"); a("v_mbcnt_hi_u32_b32 v0, -1, v0")
        if self.series:
            a("v_mbcnt_lo_u32_b32 v28, -1, 0"); a("v_mbcnt_hi_u32_b32 v28, -1, v28")
            a("v_lshlrev_b32 v29, 2, v28")
            a(f"s_lshl_b32 s94, s2, 2"); a(f"s_add_u32 s94, s94, s{S_WAVE}"); a("s_lshl_b32 s94, s94, 8"); a(f"s_add_u32 s94, s94, {WS_DBG+0x40000}")
            a(f"buffer_store_dword v0, v29, {S(SRD_WS)}, s94 offen")
            a("s_waitcnt vmcnt(0)")
            a("v_mov_b32 v0, v28")
        rows_reduce(a, 9, 28, "v_add_f32")
        a("v_lshlrev_b32 v28, 5, v0")
        a(f"s_lshl_b32 s{S_T0}, s{S_WAVE}, 11")
        a(f"v_add_u32 v28, s{S_T0}, v28")
        a(f"ds_write_b128 v28, {V4(40)} offset:{L_O}")
        a(f"ds_write_b128 v28, {V4(44)} offset:{L_O+16}")
        a("v_lshlrev_b32 v29, 3, v0")
        a(f"s_lshl_b32 s{S_T0}, s{S_WAVE}, 3")
        a(f"v_add_u32 v29, s{S_T0}, v29")
        a("s_mov_b64 exec, 0x1111")
        a(f"ds_write_b64 v29, v[8:9] offset:{L_ST}")
        a("s_mov_b64 exec, -1")
        a("s_waitcnt lgkmcnt(0)")
        a("s_barrier")
        self.stamp(5)
        a(f"s_lshl_b32 s{S_T0}, s{S_WAVE}, 5")
        a(f"v_mov_b32 v28, s{S_T0}")
        a(f"ds_read_b128 v[64:67], v28 offset:{L_ST}")
        a(f"ds_read_b128 v[68:71], v28 offset:{L_ST+16}")
        a(f"ds_read_b32 v90, v10 offset:{L_SAME}")
        a(f"s_lshl_b32 s{S_T0}, s{S_WAVE}, 9")
        a("v_lshlrev_b32 v29, 3, v0")
        a(f"v_add_u32 v29, s{S_T0}, v29")
        for k in range(4):
            a(f"ds_read_b64 {V2(72+2*k)}, v29 offset:{L_O+2048*k}")
        a(f"v_mov_b32 v85, s{S_TAG}"); a(f"v_mov_b32 v87, s{S_TAG}")
        a(f"v_mov_b32 v81, s{S_TAG}"); a(f"v_mov_b32 v83, s{S_TAG}")
        a("v_lshlrev_b32 v28, 4, v0")
        a("s_waitcnt lgkmcnt(4)")
        a(f"v_readfirstlane_b32 s{S_T0}, v90")
        a("v_max3_f32 v80, v64, v66, v68")
        a("v_max_f32 v80, v80, v70")
        for k in range(4):
            a(f"v_sub_f32 v{64+2*k}, v{64+2*k}, v80")
        for k in range(4):
            a(f"v_exp_f32 v{64+2*k}, v{64+2*k}")
        a("v_mul_f32 v82, v64, v65")
        a("v_fma_f32 v82, v66, v67, v82")
        a("v_fma_f32 v82, v68, v69, v82")
        a("v_fma_f32 v82, v70, v71, v82")
        a("s_waitcnt lgkmcnt(0)")
        a("v_mul_f32 v84, v64, v72"); a("v_mul_f32 v86, v64, v73")
        for k in range(1, 4):
            a(f"v_fma_f32 v84, v{64+2*k}, v{72+2*k}, v84")
            a(f"v_fma_f32 v86, v{64+2*k}, v{73+2*k}, v86")
        paths = [("sc1",)] if self.nofast else [("",), ("sc1",)]
        if not self.nofast:
            a(f"s_cmp_eq_u32 s{S_T0}, 0")
            a("s_cbranch_scc1 L_S_pubslow")
        for pi_, (fl,) in enumerate(paths):
            if pi_ == 1: a.label("L_S_pubslow")
            a(f"buffer_store_dwordx4 v[84:87], v28, {S(SRD_WS)}, s67 offen {fl}")
            a("s_mov_b64 exec, 1")
            a(f"buffer_store_dwordx4 v[80:83], v10, {S(SRD_WS)}, s68 offen {fl}")
            a("s_mov_b64 exec, -1")
            if pi_ == 0 and not self.nofast: a("s_branch L_S_pubdone")
        a.label("L_S_pubdone")
        self.stamp(6)
        a("v_lshrrev_b32 v28, 5, v0"); a("v_lshlrev_b32 v28, 12, v28")
        a("v_and_b32 v29, 31, v0"); a("v_lshlrev_b32 v29, 4, v29"); a("v_add_u32 v28, v28, v29")
        a.label("L_S_poll")
        for u in range(4):
            a(f"buffer_load_dwordx4 {V4(64+4*u)}, v28, {S(SRD_WS)}, s{69+u} offen sc1")
        a(f"buffer_load_dwordx4 v[80:83], v29, {S(SRD_WS)}, s73 offen sc1")
        a("s_waitcnt vmcnt(0)")
        a(f"v_xor_b32 v30, s{S_TAG}, v65")
        for r in [67, 69, 71, 73, 75, 77, 79, 81, 83]:
            a(f"v_xor_b32 v31, s{S_TAG}, v{r}")
            a("v_or_b32 v30, v30, v31")
        a("v_cmp_ne_u32 vcc, 0, v30")
        a("s_cbranch_vccz L_S_got")
        self.spin_guard("L_S_poll", "L_S_got")
        a.label("L_S_got")
        self.stamp(7)
        if self.lg:
            a(f"s_cmp_eq_u32 s{S_WAVE}, 1"); a("s_cbranch_scc0 L_S_notk")
            srd(a, SRD_C, 30, size=256)
            a(f"s_lshl_b32 s{S_T0}, s{S_SP}, 3")
            a(f"v_mov_b32 v92, 1"); a(f"v_mov_b32 v93, s{S_T0}")
            a("s_mov_b64 exec, 1")
            a(f"buffer_atomic_add v92, v93, {S(SRD_C)}, 0 offen sc0 sc1")
            a("s_mov_b64 exec, -1")
            a.label("L_S_notk")
        a("v_mov_b32 v30, v80")
        allreduce64(a, 30, 31, "v_max_f32")
        a("v_sub_f32 v80, v80, v30")
        a("v_exp_f32 v80, v80")
        a("v_mul_f32 v82, v80, v82")
        allreduce64(a, 82, 31, "v_add_f32")
        a("v_rcp_f32 v82, v82")
        a("v_add_f32 v80, v80, v80")
        a("v_mul_f32 v80, v80, v82")
        a("v_lshrrev_b32 v30, 5, v0")
        a(f"s_lshl_b32 s{S_T0}, s{S_WAVE}, 3")
        a(f"v_add_u32 v30, s{S_T0}, v30")
        a("v_lshlrev_b32 v30, 2, v30")
        for u in range(4):
            if u: a("v_add_u32 v30, 8, v30")
            a(f"ds_bpermute_b32 v{84+u}, v30, v80")
        a("s_waitcnt lgkmcnt(0)")
        a("v_mul_f32 v88, v84, v64"); a("v_mul_f32 v89, v84, v66")
        for u in range(1, 4):
            a(f"v_fma_f32 v88, v{84+u}, v{64+4*u}, v88")
            a(f"v_fma_f32 v89, v{84+u}, v{66+4*u}, v89")
        a("v_mov_b32 v90, v88"); a("v_mov_b32 v91, v89")
        a("v_permlane32_swap_b32 v88, v90"); a("v_permlane32_swap_b32 v89, v91")
        a("v_add_f32 v88, v88, v90"); a("v_add_f32 v89, v89, v91")
        a("v_and_b32 v30, 31, v0"); a("v_lshlrev_b32 v30, 3, v30")
        a(f"s_lshl_b32 s{S_T0}, s{S_WAVE}, 8")
        a(f"v_add_u32 v30, s{S_T0}, v30")
        a(f"ds_write_b64 v30, v[88:89] offset:{L_G}")
        a("s_waitcnt lgkmcnt(0)")
        if self.spin and self.spin.startswith("S"):
            k = int(self.spin[1:])
            a(f"s_lshl_b32 s{S_T0}, s{S_WAVE}, 2"); a(f"s_add_u32 s{S_T0}, s{S_T0}, {L_RS+16}")
            a(f"v_mov_b32 v30, s{S_T0}"); a(f"v_mov_b32 v31, s{S_TS+2*k}")
            a("ds_write_b32 v30, v31"); a("s_waitcnt lgkmcnt(0)")
        a("s_barrier")
        self.stamp(8)
        if self.lg:
            a(f"s_cmp_eq_u32 s{S_WAVE}, 1"); a("s_cbranch_scc0 L_S_notk2")
            a(f"v_mov_b32 v93, {L_TK}")
            a("s_waitcnt vmcnt(0)")
            a("v_add_u32 v92, 1, v92")
            a("s_mov_b64 exec, 1")
            a("ds_write_b32 v93, v92")
            a("s_mov_b64 exec, -1")
            a("s_waitcnt lgkmcnt(0)")
            a.label("L_S_notk2")
        if self.dbg:
            if self.atlat:
                a("s_waitcnt lgkmcnt(0)"); a(f"s_mov_b32 s{S_TS+12}, s100"); a(f"s_mov_b32 s{S_TS+13}, s101")
            if self.dyn:
                a("s_waitcnt lgkmcnt(0)"); a(f"s_mov_b32 s{S_TS+12}, s100"); a(f"s_mov_b32 s{S_TS+13}, 0")
            if self.pre == 9:
                a("s_waitcnt lgkmcnt(0)"); a(f"s_mov_b32 s{S_TS+12}, s100"); a(f"s_mov_b32 s{S_TS+13}, s101")
            a(f"s_getreg_b32 s{S_TS+18}, hwreg(HW_REG_XCC_ID)"); a(f"s_mov_b32 s{S_TS+19}, 0")
            self.dump_stamps(10, 0)
        self.hdump([(3, 2, "max"), (4, 3, "max"), (4, 4, "min"), (5, 5, "max"), (7, 6, "max"), (2, 15, "max")])
        a("s_branch L_end")

    def gemv_loads(self, srd_, reg, step, n=16):
        a = self.a
        a(f"s_mov_b32 s{S_OFF}, 0")
        for i in range(n):
            a(f"buffer_load_dwordx4 {V4(reg+4*i)}, v1, {S(srd_)}, s{S_OFF} offen {self.wflag}")
            if i < n-1: a(f"s_add_u32 s{S_OFF}, s{S_OFF}, {step}")

    def gemv_compute(self, reg, tb, acc, wait_first, outA, outB, rors, n=16):
        a = self.a
        for k in range(8): a(f"v_mov_b32 v{acc+k}, 0")
        for i in range(n):
            if wait_first is not None:
                a(f"s_waitcnt vmcnt({wait_first + n - 1 - i})")
            for k in range(4):
                a(f"v_dot2c_f32_bf16 v{acc+2*k}, v{reg+4*i+k}, v{tb+2*i}")
                a(f"v_dot2c_f32_bf16 v{acc+2*k+1}, v{reg+4*i+k}, v{tb+2*i+1}")
        for k in range(4):
            a(f"v_permlane32_swap_b32 v{acc+k}, v{acc+4+k}")
        for k in range(4):
            a(f"v_add_f32 v{acc+k}, v{acc+k}, v{acc+4+k}")
        a(f"v_permlane16_swap_b32 v{acc}, v{acc+2}")
        a(f"v_permlane16_swap_b32 v{acc+1}, v{acc+3}")
        a(f"v_add_f32 v{outA}, v{acc}, v{acc+2}")
        a(f"v_add_f32 v{outB}, v{acc+1}, v{acc+3}")
        for rr in rors:
            a(f"v_add_f32_dpp v{outA}, v{outA}, v{outA} row_ror:{rr} row_mask:0xf bank_mask:0xf")
            a(f"v_add_f32_dpp v{outB}, v{outB}, v{outB} row_ror:{rr} row_mask:0xf bank_mask:0xf")

    def read_T(self, tb, shift, stride, n=16):
        a = self.a
        for i in range(n):
            a(f"ds_read_b64 {V2(tb+2*i)}, v2 offset:{L_T+stride*i}")

    def layernorm(self):
        a = self.a
        for k in range(4):
            a(f"v_lshlrev_b32 v{16+2*k}, 16, v{4+k}")
            a(f"v_and_b32 v{17+2*k}, s{S_HI}, v{4+k}")
        a("v_pk_add_f32 v[24:25], v[16:17], v[18:19]")
        a("v_pk_add_f32 v[26:27], v[20:21], v[22:23]")
        a("v_pk_add_f32 v[24:25], v[24:25], v[26:27]")
        a("v_add_f32 v24, v24, v25")
        allreduce64(a, 24, 25, "v_add_f32")
        a("v_mul_f32 v24, 0x3b000000, v24")
        for k in range(8): a(f"v_sub_f32 v{28+k}, v{16+k}, v24")
        a("v_mul_f32 v26, v28, v28")
        for k in range(1, 8): a(f"v_fma_f32 v26, v{28+k}, v{28+k}, v26")
        allreduce64(a, 26, 25, "v_add_f32")
        a("v_mul_f32 v26, 0x3b000000, v26")
        rnd(a, 24); rnd(a, 26)
        a("v_add_f32 v26, 0x3727c5ac, v26"); rnd(a, 26)
        a("v_sqrt_f32 v26, v26"); rnd(a, 26)
        a("v_rcp_f32 v26, v26")
        for k in range(8): a(f"v_sub_f32 v{16+k}, v{16+k}, v24")
        for k in range(4): a(f"v_cvt_pk_bf16_f32 v{28+k}, v{16+2*k}, v{17+2*k}")
        for k in range(4):
            a(f"v_lshlrev_b32 v{16+2*k}, 16, v{28+k}")
            a(f"v_and_b32 v{17+2*k}, s{S_HI}, v{28+k}")
        for k in range(8): a(f"v_mul_f32 v{16+k}, v{16+k}, v26")
        for k in range(4): a(f"v_cvt_pk_bf16_f32 v{12+k}, v{16+2*k}, v{17+2*k}")
        a("v_lshlrev_b32 v2, 6, v0")
        for k in range(4):
            a(f"v_and_b32 v28, 0xffff, v{12+k}")
            a(f"v_lshlrev_b32 v29, 16, v{12+k}")
            a(f"v_lshrrev_b32 v30, 16, v{12+k}")
            a(f"v_and_b32 v31, s{S_HI}, v{12+k}")
            a(f"ds_write_b128 v2, v[28:31] offset:{L_T+16*k}")
            if k < 3:
                a("s_nop 1")
        a("s_waitcnt lgkmcnt(0)")

    def tab_init(self):
        if not self.dyn: return
        a = self.a
        a(f"s_lshl_b32 s{S_T0}, s{S_SP}, 19")
        a("v_lshlrev_b32 v15, 15, v0"); a(f"v_add_u32 v15, s{S_T0}, v15")
        a("v_mov_b32 v16, -1")
        a(f"v_cmp_gt_u32 vcc, {self.dyn}, v0"); a("v_cndmask_b32 v16, v16, v15, vcc")
        a("v_mov_b32 v15, 0x1000000")
        a(f"v_cmp_eq_u32 vcc, {NTAB-1}, v0"); a("v_cndmask_b32 v16, v16, v15, vcc")
        a("v_lshlrev_b32 v17, 2, v0")
        a(f"s_mov_b64 exec, {(1 << NTAB) - 1:#x}") if NTAB <= 32 else (a(f"s_mov_b32 exec_lo, -1"), a(f"s_mov_b32 exec_hi, {(1 << (NTAB-32)) - 1:#x}"))
        a(f"ds_write_b32 v17, v16 offset:{L_TAB}")
        a("s_mov_b64 exec, -1")

    def server(self):
        if not self.dyn: return
        a = self.a
        R = self.dyn; NP = (16 - R) * 32
        J = S_T0 + 4
        srd(a, SRD_C, 30, size=256)
        a(f"s_lshl_b32 s{S_T0}, s{S_G}, 5")
        a(f"v_mov_b32 v2, s{S_T0}"); a("v_mov_b32 v4, 0")
        a(f"s_mov_b32 s{J}, {R}")
        a("s_mov_b64 exec, 1")
        a.label("L_srv")
        a(f"s_cmp_ge_u32 s{J}, {NTAB-1}"); a("s_cbranch_scc1 L_srv_end")
        a(f"ds_read_b32 v5, v4 offset:{L_CNT}")
        a("s_waitcnt lgkmcnt(0)")
        a(f"v_readfirstlane_b32 s{S_T0}, v5")
        a(f"s_lshr_b32 s{S_T0}, s{S_T0}, 2"); a(f"s_add_u32 s{S_T0}, s{S_T0}, {self.dlook}")
        a(f"s_cmp_ge_u32 s{S_T0}, s{J}"); a("s_cbranch_scc1 L_srv_get")
        a(f"s_sleep {self.dsleep}")
        a("s_branch L_srv")
        a.label("L_srv_get")
        a("v_mov_b32 v3, 1")
        a(f"buffer_atomic_add v3, v2, {S(SRD_C)}, 0 offen sc0 sc1")
        a("s_waitcnt vmcnt(0)")
        a(f"v_readfirstlane_b32 s{S_T0}, v3")
        a(f"s_cmp_ge_u32 s{S_T0}, {NP}"); a("s_cbranch_scc1 L_srv_out")
        a(f"s_and_b32 s{S_T0+1}, s{S_T0}, 31"); a(f"s_lshl_b32 s{S_T0+1}, s{S_T0+1}, 19")
        a(f"s_lshr_b32 s{S_T0}, s{S_T0}, 5"); a(f"s_add_u32 s{S_T0}, s{S_T0}, {R}"); a(f"s_lshl_b32 s{S_T0}, s{S_T0}, 15")
        a(f"s_add_u32 s{S_T0}, s{S_T0}, s{S_T0+1}")
        a(f"s_lshl_b32 s{S_T0+1}, s{J}, 2")
        a(f"v_mov_b32 v6, s{S_T0}"); a(f"v_mov_b32 v7, s{S_T0+1}")
        a(f"ds_write_b32 v7, v6 offset:{L_TAB}")
        a(f"s_add_u32 s{J}, s{J}, 1")
        a("s_branch L_srv")
        a.label("L_srv_out")
        a("s_mov_b64 exec, -1")
        a(f"v_cmp_le_u32 vcc, s{J}, v0"); a(f"v_cmp_gt_u32 s[{S_T0}:{S_T0+1}], {NTAB}, v0")
        a(f"s_and_b64 exec, vcc, s[{S_T0}:{S_T0+1}]")
        a("v_lshlrev_b32 v7, 2, v0"); a("v_mov_b32 v6, 0x1000000")
        a(f"ds_write_b32 v7, v6 offset:{L_TAB}")
        a.label("L_srv_end")
        a("s_mov_b64 exec, -1")
        a("s_waitcnt lgkmcnt(0)")
        if self.dbg:
            a(f"s_mov_b32 s{S_TS+12}, s{J}"); a(f"s_mov_b32 s{S_TS+13}, 0")

    def front(self):
        a = self.a
        NQ = self.qf
        cols = 128 // NQ; lpr = cols // 8; rpl = 64 // lpr; nld = 256 // rpl; sh = {2: 1, 4: 2, 8: 3}[lpr]
        if self.qt:
            KS = NQ // 2; RW = 512 // KS
            cols = 64; lpr = 8; rpl = 8; nld = RW // 2 // 8; sh = 3
            if self.solo: nld = RW // 8
        L_FLG = L_SAME + 4; L_QP = L_O
        a.label("L_F")
        if self.st2: self.stamp(7)
        a(f"s_setprio {self.qprio}")
        srd(a, SRD_A, S_X, size=1024)
        srd(a, SRD_B, S_WR, size=1024)
        a("v_lshlrev_b32 v3, 4, v0")
        a(f"buffer_load_dwordx4 v[4:7], v3, {S(SRD_A)}, 0 offen")
        a(f"buffer_load_dwordx4 v[8:11], v3, {S(SRD_B)}, 0 offen")
        a(f"s_cmp_lt_u32 s{S_G}, {NQ}"); a("s_cbranch_scc0 L_F_nold")
        a(f"s_lshl_b32 s38, s{S_G}, 5"); a(f"s_add_u32 s38, s38, s{S_SP}")
        a(f"s_sub_u32 s39, s{S_WAVE}, 4")
        if self.qt:
            if self.qown:
                assert NQ == 8
                a(f"s_and_b32 s100, s{S_SP}, 7"); a(f"s_lshl_b32 s101, s{S_G}, 3"); a("s_add_u32 s100, s100, s101")
                a(f"s_lshr_b32 s101, s{S_SP}, 3")
            else:
                a("s_and_b32 s100, s38, 63"); a("s_lshr_b32 s101, s38, 6")
            if self.solo: a(f"s_mul_i32 s39, s101, {RW}")
            else: a(f"s_mul_i32 s39, s39, {RW//2}"); a(f"s_mul_i32 s{S_T0}, s101, {RW}"); a(f"s_add_u32 s39, s39, s{S_T0}")
            a(f"s_lshl_b32 s{S_T0}, s100, 7"); a(f"s_lshl_b32 s{S_T0+1}, s39, 13"); a(f"s_add_u32 s{S_T0}, s{S_T0}, s{S_T0+1}")
        else:
            a(f"s_mul_i32 s{S_T0}, s38, {cols*2}")
            a(f"s_lshl_b32 s{S_T0+1}, s39, 21"); a(f"s_add_u32 s{S_T0}, s{S_T0}, s{S_T0+1}")
        a(f"s_add_u32 s{SRD_C}, s{S_WQ}, s{S_T0}"); a(f"s_addc_u32 s{SRD_C+1}, s{S_WQ+1}, 0")
        a(f"s_sub_u32 s{SRD_C+2}, {512*8192}, s{S_T0}"); a(f"s_mov_b32 s{SRD_C+3}, 0x00020000")
        a(f"v_lshrrev_b32 v1, {sh}, v0"); a("v_lshlrev_b32 v1, 13, v1")
        a(f"v_and_b32 v2, {lpr-1}, v0"); a("v_lshlrev_b32 v2, 4, v2"); a("v_add_u32 v1, v1, v2")
        self.gemv_loads(SRD_C, 64, rpl*8192, n=nld)
        a.label("L_F_nold")
        if self.st2: self.stamp(8)
        a(f"v_mov_b32 v12, {L_CNT}"); a(f"v_mov_b32 v13, 12"); a("v_mov_b32 v14, 0")
        a("ds_write_b32 v12, v13")
        a(f"ds_write_b32 v12, v14 offset:{L_FLG-L_CNT}")
        self.tab_init()
        a("s_waitcnt lgkmcnt(0)")
        self.stamp(5)
        if not self.noa0: a("s_barrier")
        if self.ltag: a(f"s_load_dword s{S_TAG}, s[{S_WS}:{S_WS+1}], 0")
        else: a(f"s_add_u32 s{S_TAG}, s{S_TAG}, 1")
        a(f"s_cmp_lt_u32 s{S_G}, {NQ}"); a("s_cbranch_scc1 L_F_q")
        if not self.solo: a(f"s_cmp_eq_u32 s{S_WAVE}, 5"); a("s_cbranch_scc1 L_W")
        a("s_waitcnt vmcnt(0)")
        a("s_branch L_F_ln")
        a.label("L_F_q")
        a(f"s_waitcnt vmcnt({nld+1})")
        a.label("L_F_ln")
        self.layernorm()
        if self.ltag:
            a(f"s_cmp_eq_u32 s{S_WAVE}, 4"); a(f"s_cselect_b32 s{S_T0}, 1, 0"); a(f"s_add_u32 s{S_TAG}, s{S_TAG}, s{S_T0}")
        a(f"s_cmp_lt_u32 s{S_G}, {NQ}"); a("s_cbranch_scc0 L_F_done")
        TB = 192
        a(f"v_lshrrev_b32 v2, {sh}, v0"); a("v_lshlrev_b32 v2, 3, v2")
        a(f"s_lshl_b32 s{S_T0}, s39, {3 if self.qt else 11}"); a(f"v_add_u32 v2, s{S_T0}, v2")
        self.read_T(TB, sh, 8*rpl, n=nld)
        a("s_waitcnt lgkmcnt(0)")
        self.stamp(1)
        self.gemv_compute(64, TB, 16, 0, 24, 25, {2: (2, 4, 8), 4: (4, 8), 8: (8,)}[lpr], n=nld)
        if not self.solo:
            a("v_lshlrev_b32 v2, 3, v0"); a(f"v_mov_b32 v3, {L_FLG}")
            a(f"s_cmp_eq_u32 s{S_WAVE}, 5"); a("s_cbranch_scc0 L_F_comb")
            a(f"ds_write_b64 v2, v[24:25] offset:{L_QP}")
            a("v_mov_b32 v26, 1")
            a("s_waitcnt lgkmcnt(0)")
            a("ds_write_b32 v3, v26")
            a("s_waitcnt lgkmcnt(0)")
            a("s_branch L_W")
            a.label("L_F_comb")
            a("ds_read_b32 v26, v3")
            a("s_waitcnt lgkmcnt(0)")
            a("v_cmp_eq_u32 vcc, 0, v26")
            a("s_cbranch_vccz L_F_cgot")
            self.spin_guard("L_F_comb", "L_F_cgot", sleep=0)
            a.label("L_F_cgot")
            a(f"ds_read_b64 v[26:27], v2 offset:{L_QP}")
            a("s_waitcnt lgkmcnt(0)")
            a("v_add_f32 v24, v24, v26"); a("v_add_f32 v25, v25, v27")
        if self.qt:
            a("v_mov_b32 v26, v25"); a(f"v_mov_b32 v25, s{S_TAG}"); a(f"v_mov_b32 v27, s{S_TAG}")
            a("v_and_b32 v2, 7, v0"); a("v_lshlrev_b32 v2, 6, v2")
            a("v_lshrrev_b32 v3, 4, v0"); a("v_lshlrev_b32 v3, 4, v3"); a("v_add_u32 v2, v2, v3")
            a(f"s_lshl_b32 s{S_T0+1}, s101, 15"); a(f"s_lshl_b32 s{S_T0}, s100, 9"); a(f"s_add_u32 s{S_T0+1}, s{S_T0+1}, s{S_T0}")
            a(f"s_add_u32 s{S_T0+1}, s{S_T0+1}, {WS_QP}")
            a("s_mov_b32 exec_lo, 0x00ff00ff"); a("s_mov_b32 exec_hi, 0x00ff00ff")
            a(f"buffer_store_dwordx4 v[24:27], v2, {S(SRD_WS)}, s{S_T0+1} offen sc1")
            a("s_mov_b64 exec, -1")
        else:
            a("v_cvt_pk_bf16_f32 v26, v24, v25")
            a(f"v_mov_b32 v27, s{S_TAG}")
            a(f"v_and_b32 v2, {lpr-1}, v0"); a("v_lshlrev_b32 v2, 5, v2")
            a("v_lshrrev_b32 v3, 4, v0"); a("v_lshlrev_b32 v3, 3, v3"); a("v_add_u32 v2, v2, v3")
            a(f"s_mul_i32 s{S_T0+1}, s38, {cols*4}"); a(f"s_add_u32 s{S_T0+1}, s{S_T0+1}, {WS_QG}")
            mk = ((1 << lpr) - 1) * 0x00010001
            a(f"s_mov_b32 exec_lo, {mk:#x}"); a(f"s_mov_b32 exec_hi, {mk:#x}")
            a(f"buffer_store_dwordx2 v[26:27], v2, {S(SRD_WS)}, s{S_T0+1} offen sc1")
            a("s_mov_b64 exec, -1")
        a(f"s_mov_b32 s{S_SPIN}, {SPIN_LIMIT}")
        a.label("L_F_done")
        a(f"s_lshl_b32 s{S_T0}, s{S_G}, 11"); a(f"s_add_u32 s{S_T0}, s{S_T0}, {WS_QG}")
        self.stamp(2)

    def qwave(self):
        a = self.a
        if self.qf:
            assert not self.pool and (self.solo or not self.noa0) and not self.nob and self.early == 3
            self.front()
            self.qwave_rest()
            return
        a.label("L_Q")
        a(f"s_setprio {self.qprio}")
        srd(a, SRD_A, S_X, size=1024)
        srd(a, SRD_B, S_WR, size=1024)
        a(f"s_lshl_b32 s{S_T0}, s{S_G}, 10"); a(f"s_lshl_b32 s{S_T0+1}, s{S_SP}, 5")
        a(f"s_add_u32 s{S_T0}, s{S_T0}, s{S_T0+1}")
        a(f"s_add_u32 s{SRD_C}, s{S_WQ}, s{S_T0}"); a(f"s_addc_u32 s{SRD_C+1}, s{S_WQ+1}, 0")
        a(f"s_sub_u32 s{SRD_C+2}, {512*8192}, s{S_T0}"); a(f"s_mov_b32 s{SRD_C+3}, 0x00020000")
        a("v_lshlrev_b32 v3, 4, v0")
        a(f"buffer_load_dwordx4 v[4:7], v3, {S(SRD_A)}, 0 offen")
        a(f"buffer_load_dwordx4 v[8:11], v3, {S(SRD_B)}, 0 offen")
        a("v_lshrrev_b32 v1, 1, v0"); a("v_lshlrev_b32 v1, 13, v1")
        a("v_and_b32 v2, 1, v0"); a("v_lshlrev_b32 v2, 4, v2"); a("v_add_u32 v1, v1, v2")
        self.gemv_loads(SRD_C, 64, 32*8192)
        a(f"v_mov_b32 v12, {L_CNT}"); a(f"v_mov_b32 v13, {4 if self.pool else 12}")
        a("ds_write_b32 v12, v13")
        self.tab_init()
        a("s_waitcnt lgkmcnt(0)")
        self.stamp(5)
        if not self.noa0: a("s_barrier")
        if self.nob: a("s_barrier")
        if self.pool:
            a(f"s_cmp_lg_u32 s{S_SP}, 0"); a("s_cbranch_scc1 L_Q_nz")
            a(f"s_lshl_b32 s{S_T0}, s{S_G}, 12"); a(f"s_add_u32 s{S_T0}, s{S_T0}, {WS_CNT}")
            a(f"s_add_u32 s{S_CB}, s{S_WS}, s{S_T0}"); a(f"s_addc_u32 s{S_CB+1}, s{S_WS+1}, 0")
            if self.pmap == "w4":
                for k in range(4):
                    a(f"s_mov_b32 s{S_T0+2+k}, 128")
                    a(f"s_atomic_swap s{S_T0+2+k}, s[{S_CB}:{S_CB+1}], {1024*k} glc")
            else:
                a(f"s_mov_b32 s3, {512 if self.pmap == 't4' else 128}")
                a(f"s_atomic_swap s3, s[{S_CB}:{S_CB+1}], 0 glc")
            a.label("L_Q_nz")
        a("s_waitcnt vmcnt(17)")
        self.layernorm()
        a("v_lshrrev_b32 v2, 1, v0"); a("v_lshlrev_b32 v2, 3, v2")
        self.read_T(128, 1, 256)
        a("s_waitcnt lgkmcnt(0)")
        self.stamp(1)
        self.gemv_compute(64, 128, 16, 0, 24, 25, (2, 4, 8))
        self.get_tag()
        a("v_cvt_pk_bf16_f32 v26, v24, v25")
        a(f"v_mov_b32 v27, s{S_TAG}")
        a("v_and_b32 v2, 1, v0"); a("v_lshlrev_b32 v2, 5, v2")
        a("v_lshrrev_b32 v3, 4, v0"); a("v_lshlrev_b32 v3, 3, v3"); a("v_add_u32 v2, v2, v3")
        a(f"s_lshl_b32 s{S_T0}, s{S_G}, 11"); a(f"s_add_u32 s{S_T0}, s{S_T0}, {WS_QG}")
        a(f"s_lshl_b32 s{S_T0+1}, s{S_SP}, 6"); a(f"s_add_u32 s{S_T0+1}, s{S_T0+1}, s{S_T0}")
        a("s_mov_b32 exec_lo, 0x00030003"); a("s_mov_b32 exec_hi, 0x00030003")
        a(f"buffer_store_dwordx2 v[26:27], v2, {S(SRD_WS)}, s{S_T0+1} offen sc1")
        a("s_mov_b64 exec, -1")
        self.stamp(2)
        self.qwave_rest()

    def qwave_rest(self):
        a = self.a
        a("v_mov_b32 v28, 0")
        for k in range(4): a(f"v_dot2c_f32_bf16 v28, v{12+k}, v{8+k}")
        allreduce64(a, 28, 29, "v_add_f32")
        rnd(a, 28)
        a(f"v_mul_f32 v28, s{S_LOG2E}, v28")
        a("v_sub_f32 v28, 0, v28")
        a("v_exp_f32 v28, v28")
        a("v_add_f32 v28, 1.0, v28")
        a("v_rcp_f32 v28, v28")
        rnd(a, 28)
        a(f"v_mov_b32 v29, {L_RS}")
        a("ds_write_b32 v29, v28")
        if self.qt:
            self.gather_t()
            return self.qwave_rest2()
        a("v_lshlrev_b32 v2, 4, v0")
        a("v_lshlrev_b32 v3, 3, v0")
        first = True
        if self.pool:
            a(f"s_lshl_b32 s{S_T0+8}, s{S_G}, 8"); a(f"s_add_u32 s{S_T0+8}, s{S_T0+8}, {WS_XT}")
            a("v_and_b32 v4, 31, v0"); a("v_lshlrev_b32 v4, 3, v4")
        def qloads():
            a(f"buffer_load_dwordx4 v[32:35], v2, {S(SRD_WS)}, s{S_T0} offen sc1")
            a(f"buffer_load_dwordx4 v[36:39], v2, {S(SRD_WS)}, s{S_T0} offen offset:1024 sc1")
            if self.pool: a(f"buffer_load_dwordx2 v[40:41], v4, {S(SRD_WS)}, s{S_T0+8} offen sc1")
        qloads()
        if self.early < 3: a("s_barrier")
        a("s_branch L_Q_chk")
        a.label("L_Q_poll")
        qloads()
        a.label("L_Q_chk")
        a("s_waitcnt vmcnt(0)")
        a(f"v_xor_b32 v30, s{S_TAG}, v33")
        for r in ((35, 37, 39, 41) if self.pool else (35, 37, 39)):
            a(f"v_xor_b32 v31, s{S_TAG}, v{r}"); a("v_or_b32 v30, v30, v31")
        a("v_cmp_ne_u32 vcc, 0, v30")
        a("s_cbranch_vccz L_Q_got")
        self.spin_guard("L_Q_poll", "L_Q_got")
        a.label("L_Q_got")
        a(f"v_add_u32 v3, {L_Q}, v3")
        a("ds_write2_b32 v3, v32, v34 offset0:0 offset1:1")
        a("ds_write2_b32 v3, v36, v38 offset0:128 offset1:129")
        if self.pool:
            a(f"s_getreg_b32 s{S_T0+9}, hwreg(HW_REG_XCC_ID)")
            a(f"v_cmp_ne_u32 vcc, s{S_T0+9}, v40")
            a("s_cmp_eq_u64 vcc, 0")
            a(f"s_cselect_b32 s{S_T0+9}, {0 if self.forceslow else 1}, 0")
            a(f"v_mov_b32 v26, s{S_T0+9}"); a(f"v_mov_b32 v27, {L_SAME}")
            a("ds_write_b32 v27, v26")
        self.qwave_rest2()

    def gather_t(self):
        a = self.a
        KS = self.qt // 2; N = 4 * KS; GB = 64
        a("v_lshlrev_b32 v2, 4, v0")
        a("v_lshlrev_b32 v3, 2, v0")
        for ks in range(KS):
            a(f"s_lshl_b32 s{S_T0+ks}, s{S_G}, 12"); a(f"s_add_u32 s{S_T0+ks}, s{S_T0+ks}, {WS_QP + 32768*ks}")
        def ld(k):
            a(f"buffer_load_dwordx4 {V4(GB+4*k)}, v2, {S(SRD_WS)}, s{S_T0+(k>>2)} offen offset:{1024*(k&3)} sc1")
        for k in range(N): ld(k)
        a.label("L_Q_chk")
        a("s_waitcnt vmcnt(0)")
        a(f"s_mov_b32 s{S_T0+4}, 0")
        for k in range(N):
            ok = a.uniq("L_ok")
            a(f"v_xor_b32 v30, s{S_TAG}, v{GB+4*k+1}"); a(f"v_xor_b32 v31, s{S_TAG}, v{GB+4*k+3}")
            a("v_or_b32 v30, v30, v31"); a("v_cmp_ne_u32 vcc, 0, v30")
            a(f"s_cbranch_vccz {ok}")
            ld(k)
            a(f"s_mov_b32 s{S_T0+4}, 1")
            a.label(ok)
        a(f"s_cmp_eq_u32 s{S_T0+4}, 0"); a("s_cbranch_scc1 L_Q_got")
        self.spin_guard("L_Q_chk", "L_Q_got")
        a.label("L_Q_got")
        a("s_waitcnt vmcnt(0)")
        a(f"v_add_u32 v3, {L_Q}, v3")
        for i in range(4):
            for ks in range(1, KS):
                a(f"v_add_f32 v{GB+4*i}, v{GB+4*i}, v{GB+4*(4*ks+i)}")
                a(f"v_add_f32 v{GB+4*i+2}, v{GB+4*i+2}, v{GB+4*(4*ks+i)+2}")
            a(f"v_cvt_pk_bf16_f32 v{32+i}, v{GB+4*i}, v{GB+4*i+2}")
            a(f"ds_write_b32 v3, v{32+i} offset:{256*i}")

    def qwave_rest2(self):
        a = self.a
        a("s_waitcnt lgkmcnt(0)")
        self.stamp(3)
        if not self.nob: a("s_barrier")
        a(f"s_cmp_ge_u32 s{S_SP}, 28")
        a("s_cbranch_scc1 L_Q_end")
        U, MM, CBK, KC = S_T0+4, S_T0+5, S_T0+6, S_T0+7
        a(f"s_mul_i32 s{U}, s{S_G}, 28"); a(f"s_add_u32 s{U}, s{U}, s{S_SP}")
        a(f"s_cmp_ge_u32 s{U}, 112"); a(f"s_cselect_b32 s{MM}, 1, 0")
        a(f"s_mul_i32 s{S_T0}, s{MM}, 112"); a(f"s_sub_u32 s{U}, s{U}, s{S_T0}")
        a(f"s_lshr_b32 s{CBK}, s{U}, 2"); a(f"s_and_b32 s{KC}, s{U}, 3")
        a(f"s_mul_i32 s{S_T0}, s{KC}, {128*3584}"); a(f"s_lshl_b32 s{S_T0+1}, s{CBK}, 7")
        a(f"s_add_u32 s{S_T0}, s{S_T0}, s{S_T0+1}")
        a(f"s_cmp_eq_u32 s{MM}, 0"); a("s_cbranch_scc0 L_Q_up")
        a(f"s_add_u32 s{SRD_C}, s{S_WG}, s{S_T0}"); a(f"s_addc_u32 s{SRD_C+1}, s{S_WG+1}, 0")
        a("s_branch L_Q_srd")
        a.label("L_Q_up")
        a(f"s_add_u32 s{SRD_C}, s{S_WU}, s{S_T0}"); a(f"s_addc_u32 s{SRD_C+1}, s{S_WU+1}, 0")
        a.label("L_Q_srd")
        a(f"s_sub_u32 s{SRD_C+2}, {512*3584}, s{S_T0}"); a(f"s_mov_b32 s{SRD_C+3}, 0x00020000")
        a("v_lshrrev_b32 v1, 3, v0"); a(f"s_mov_b32 s{S_T0+2}, 3584"); a(f"v_mul_lo_u32 v1, v1, s{S_T0+2}")
        a("v_and_b32 v2, 7, v0"); a("v_lshlrev_b32 v2, 4, v2"); a("v_add_u32 v1, v1, v2")
        self.gemv_loads(SRD_C, 64, 8*3584)
        a("v_lshrrev_b32 v2, 3, v0"); a("v_lshlrev_b32 v2, 3, v2")
        a(f"s_lshl_b32 s{S_T0}, s{KC}, 10"); a(f"v_add_u32 v2, s{S_T0}, v2")
        self.read_T(128, 3, 64)
        a("s_waitcnt lgkmcnt(0)")
        self.gemv_compute(64, 128, 16, 0, 24, 26, (8,))
        a(f"v_mov_b32 v25, s{S_TAG}"); a(f"v_mov_b32 v27, s{S_TAG}")
        a(f"s_lshl_b32 s{S_T0}, s{MM}, 2"); a(f"s_add_u32 s{S_T0}, s{S_T0}, s{KC}")
        a(f"s_mul_i32 s{S_T0}, s{S_T0}, {1792*8}"); a(f"s_lshl_b32 s{S_T0+1}, s{CBK}, 9")
        a(f"s_add_u32 s{S_T0}, s{S_T0}, s{S_T0+1}"); a(f"s_add_u32 s{S_T0}, s{S_T0}, {WS_GU}")
        a("v_and_b32 v2, 7, v0"); a("v_lshlrev_b32 v2, 6, v2")
        a("v_lshrrev_b32 v3, 4, v0"); a("v_lshlrev_b32 v3, 4, v3"); a("v_add_u32 v2, v2, v3")
        a("s_mov_b32 exec_lo, 0x00ff00ff"); a("s_mov_b32 exec_hi, 0x00ff00ff")
        a(f"buffer_store_dwordx4 v[24:27], v2, {S(SRD_WS)}, s{S_T0} offen sc1")
        a("s_mov_b64 exec, -1")
        a.label("L_Q_end")
        self.stamp(4)
        if self.lg: self.finalizer()
        self.server()
        if self.spin and self.spin.startswith("Q"):
            k = int(self.spin[1:])
            a("s_waitcnt lgkmcnt(0)")
            a(f"v_mov_b32 v30, {L_RS+16}")
            for r in range(4): a(f"v_mov_b32 v{32+r}, s{S_TS+2*k}")
            a("ds_write_b128 v30, v[32:35]"); a("s_waitcnt lgkmcnt(0)")
        self.dump_stamps(9 if (self.st2 or self.lg) else (7 if self.dyn else 6), 1)
        self.hdump([(2, 7, "max"), (3, 8, "max"), (1, 14, "max"), (4, 9, "max")], nsleep=0)
        a("s_waitcnt vmcnt(0)")
        a("s_branch L_end")

    def finalizer(self):
        a = self.a
        R = 64; P1 = 100; P2 = 104; P3 = 108
        OF = 8
        srd(a, SRD_A, S_X, size=1024)
        srd(a, SRD_C, S_OUT, size=1024)
        a("s_waitcnt vmcnt(0)")
        a("v_and_b32 v2, 7, v0"); a("v_lshlrev_b32 v2, 2, v2")
        a(f"s_lshl_b32 s{S_T0}, s{S_SP}, 5"); a(f"v_add_u32 v2, s{S_T0}, v2")
        a(f"buffer_load_dword v8, v2, {S(SRD_A)}, 0 offen")
        a("v_lshlrev_b32 v3, 2, v2")
        a(f"ds_read_b128 v[12:15], v3 offset:{L_T}")
        a(f"v_mov_b32 v4, {L_TK}"); a("v_mov_b32 v5, 0")
        a("ds_write_b32 v4, v5")
        a("v_lshrrev_b32 v10, 3, v0"); a("v_lshlrev_b32 v10, 12, v10")
        a("v_and_b32 v11, 7, v0"); a("v_lshlrev_b32 v11, 4, v11"); a("v_add_u32 v10, v10, v11")
        a(f"s_lshl_b32 s{S_T0}, s{S_SP}, 7"); a(f"s_add_u32 s{S_T0}, s{S_T0}, {WS_AP}")
        for j in range(8):
            a(f"s_xor_b32 s{OF+j}, s{S_G}, {j}"); a(f"s_lshl_b32 s{OF+j}, s{OF+j}, 15"); a(f"s_add_u32 s{OF+j}, s{OF+j}, s{S_T0}")
        a(f"s_mov_b32 s{S_SPIN}, {SPIN_LIMIT}")
        if self.dbg:
            a(f"s_mov_b32 s{S_TS+14}, s{S_TS}"); a(f"s_mov_b32 s{S_TS+15}, s{S_TS+1}")
        a("s_waitcnt vmcnt(0) lgkmcnt(0)")
        a("v_lshlrev_b32 v12, 16, v8"); a(f"v_and_b32 v14, s{S_HI}, v8")
        a("v_add_f32 v12, v12, v13"); a("v_add_f32 v14, v14, v15")
        a(f"v_mov_b32 v5, {L_SAME}")
        a("s_barrier")
        def ld(j, reg=None):
            a(f"buffer_load_dwordx4 {V4(reg if reg is not None else R+4*j)}, v10, {S(SRD_WS)}, s{OF+j} offen sc1")
        a("ds_read_b32 v6, v5")
        for j in range(1, 8): ld(j)
        a("s_waitcnt lgkmcnt(0)")
        a(f"v_readfirstlane_b32 s{S_T0}, v6")
        a(f"s_cmp_eq_u32 s{S_T0}, 0"); a(f"s_cselect_b32 s{S_T0}, 0, {WS_APL - WS_AP}")
        a(f"s_add_u32 s{OF}, s{OF}, s{S_T0}")
        a("s_barrier")
        self.stamp(6)
        def chk(reg):
            a(f"v_xor_b32 v30, s{S_TAG}, v{reg+1}"); a(f"v_xor_b32 v31, s{S_TAG}, v{reg+3}")
            a("v_or_b32 v30, v30, v31"); a("v_cmp_ne_u32 vcc, 0, v30")
        a("s_waitcnt vmcnt(0)")
        ld(0)
        a(f"v_xor_b32 v30, s{S_TAG}, v{R+5}")
        for r in [R+7] + [R+4*j+o for j in range(2, 8) for o in (1, 3)]:
            a(f"v_xor_b32 v31, s{S_TAG}, v{r}"); a("v_or_b32 v30, v30, v31")
        a("v_cmp_ne_u32 vcc, 0, v30")
        a("s_cbranch_vccnz L_Z_slow")
        sl = self.lgsl
        if sl: a(f"s_sleep {sl}")
        ld(0, P1)
        if sl: a(f"s_sleep {sl}")
        ld(0, P2)
        sets = [R, P1, P2]
        if self.lg >= 4:
            if sl: a(f"s_sleep {sl}")
            ld(0, P3); sets.append(P3)
        n = len(sets)
        a.label("L_Z_fast")
        for i, reg in enumerate(sets):
            a(f"s_waitcnt vmcnt({n-1})")
            chk(reg)
            a(f"s_cbranch_vccz L_Z_f{i}")
            ld(0, reg)
        self.spin_guard("L_Z_fast", "L_Z_f0", sleep=0)
        for i in range(n-1, 0, -1):
            a.label(f"L_Z_f{i}")
            a(f"v_add_f32 v20, v{sets[i]}, v{R+4}"); a(f"v_add_f32 v22, v{sets[i]+2}, v{R+6}")
            a("s_branch L_Z_sum")
        a.label("L_Z_slow")
        for j in range(1, 8):
            ok = a.uniq("L_zok")
            chk(R+4*j)
            a(f"s_cbranch_vccz {ok}")
            ld(j)
            a.label(ok)
        a.label("L_Z_sl")
        a("s_waitcnt vmcnt(0)")
        a("ds_read_b32 v6, v4")
        a(f"v_xor_b32 v29, s{S_TAG}, v{R+1}")
        for r in [R+3] + [R+4*j+o for j in range(1, 8) for o in (1, 3)]:
            a(f"v_xor_b32 v31, s{S_TAG}, v{r}"); a("v_or_b32 v29, v29, v31")
        a("v_cmp_ne_u32 vcc, 0, v29")
        a("s_cbranch_vccz L_Z_f0")
        a("s_waitcnt lgkmcnt(0)")
        a(f"v_readfirstlane_b32 s{S_T0+5}, v6")
        a(f"s_cmp_eq_u32 s{S_T0+5}, 0"); a("s_cbranch_scc1 L_Z_again")
        a(f"s_cmp_eq_u32 s{S_T0+5}, 8"); a("s_cbranch_scc0 L_Z_out")
        a.label("L_Z_again")
        for j in range(8):
            ok = a.uniq("L_zok")
            chk(R+4*j)
            a(f"s_cbranch_vccz {ok}")
            ld(j)
            a.label(ok)
        self.spin_guard("L_Z_sl", "L_Z_f0", sleep=0)
        a.label("L_Z_f0")
        a(f"v_add_f32 v20, v{R}, v{R+4}"); a(f"v_add_f32 v22, v{R+2}, v{R+6}")
        a.label("L_Z_sum")
        self.stamp(7)
        for st in (1, 2, 4):
            for j in range(0, 8, 2*st):
                for o in (0, 2):
                    if j == 0 and st == 1: continue
                    d = (20+o) if j == 0 else (R+4*j+o)
                    a(f"v_add_f32 v{d}, v{d}, v{R+4*(j+st)+o}")
        for o in (0, 2):
            a(f"v_add_f32_dpp v{20+o}, v{20+o}, v{20+o} row_ror:8 row_mask:0xf bank_mask:0xf")
        rows_reduce(a, 20, 30, "v_add_f32"); rows_reduce(a, 22, 31, "v_add_f32")
        a(f"v_add_f32 v24, v20, v12"); a(f"v_add_f32 v26, v22, v14")
        a("v_cvt_pk_bf16_f32 v24, v24, v26")
        a("s_mov_b64 exec, 0xff")
        a(f"buffer_store_dword v24, v2, {S(SRD_C)}, 0 offen")
        a(f"s_cmp_lg_u32 s{S_SP}, 0")
        a("s_cbranch_scc1 L_Z_noep")
        a("s_mov_b64 exec, 1")
        a(f"v_mov_b32 v25, s{S_TAG}"); a("v_mov_b32 v26, 0")
        a(f"buffer_store_dword v25, v26, {S(SRD_WS)}, 0 offen sc1")
        a.label("L_Z_noep")
        a("s_mov_b64 exec, -1")
        a.label("L_Z_out")
        self.stamp(8)

    def masked_gemv(self, pv, wb0, n, PB=32, D0=56, D1=60):
        a = self.a
        for i0 in range(0, n, 4):
            m = min(4, n - i0)
            for r in range(m):
                a(f"v_and_b32 v{PB+4*r+2}, v{pv+i0+r}, v5")
                a(f"v_and_b32 v{PB+4*r+3}, v{pv+i0+r}, v7")
            for r in range(m):
                wb = wb0 + 4*(i0+r)
                a(f"v_mfma_f32_16x16x32_bf16 {V4(D0)}, {V4(PB+4*r+2)}, {V4(wb)}, {V4(D0)}")
                a(f"v_mfma_f32_16x16x32_bf16 {V4(D1)}, {V4(PB+4*r)}, {V4(wb)}, {V4(D1)}")

    def wwave(self):
        a = self.a
        a.label("L_W")
        RB, CB, PART = S_T0+10, S_T0+11, S_T0+12
        a(f"s_lshr_b32 s{RB}, s{S_SP}, 2"); a(f"s_and_b32 s{CB}, s{S_SP}, 3")
        a(f"s_lshl_b32 s{PART}, s{S_G}, 3"); a(f"s_add_u32 s{PART}, s{PART}, s{RB}")
        a(f"s_lshl_b32 s{S_T0}, s{PART}, 16")
        a(f"s_lshl_b32 s{S_T0+1}, s{CB}, 8"); a(f"s_add_u32 s{S_T0}, s{S_T0}, s{S_T0+1}")
        srd(a, SRD_A, S_WO, S_T0, size=65536)
        a(f"s_sub_u32 s{SRD_A+2}, 65536, s{S_T0+1}")
        a(f"s_mul_i32 s{S_T0}, s{PART}, {28*1024}"); a(f"s_add_u32 s{S_T0}, s{S_T0}, s{S_T0+1}")
        srd(a, SRD_D, S_WD, S_T0, size=28*1024)
        a(f"s_sub_u32 s{SRD_D+2}, {28*1024}, s{S_T0+1}")
        srd(a, SRD_B, S_X, size=1024)
        srd(a, SRD_C, S_OUT, size=1024)
        a("v_lshrrev_b32 v1, 4, v0"); a("v_lshlrev_b32 v1, 10, v1")
        a("v_and_b32 v2, 15, v0"); a("v_lshlrev_b32 v2, 4, v2"); a("v_add_u32 v1, v1, v2")
        wfront = self.qf and not self.solo
        if self.fasta0 and not self.noa0 and not wfront:
            self.stamp(6)
            a("s_barrier")
        if self.solo and self.ltag: a(f"s_load_dword s{S_TAG}, s[{S_WS}:{S_WS+1}], 0")
        if not wfront or self.ltag: self.get_tag()
        a(f"s_getreg_b32 s{S_T0+9}, hwreg(HW_REG_XCC_ID)")
        a(f"s_lshl_b32 s{S_T0+8}, s{S_G}, 8"); a(f"s_add_u32 s{S_T0+8}, s{S_T0+8}, {WS_XT}")
        a(f"s_lshl_b32 s{S_T0}, s{S_SP}, 3")
        a(f"v_mov_b32 v16, s{S_T0+9}"); a(f"v_mov_b32 v17, s{S_TAG}"); a(f"v_mov_b32 v18, s{S_T0}")
        a("s_mov_b64 exec, 1")
        a(f"buffer_store_dwordx2 v[16:17], v18, {S(SRD_WS)}, s{S_T0+8} offen sc1")
        a("s_mov_b64 exec, -1")
        if not self.fasta0 and not self.noa0 and not wfront:
            self.stamp(6)
            a("s_barrier")
        if self.early < 3: a("s_barrier")
        a("s_barrier")
        a(f"s_setprio {self.auxprio}")
        WO = 64; WD = 128
        a(f"s_mov_b32 s{S_OFF}, 0")
        for i in range(16):
            a(f"buffer_load_dwordx4 {V4(WO+4*i)}, v1, {S(SRD_A)}, s{S_OFF} offen {self.wflag}")
            if i < 15: a(f"s_add_u32 s{S_OFF}, s{S_OFF}, 4096")
        a(f"s_mov_b32 s{S_OFF}, 0")
        for i in range(7):
            a(f"buffer_load_dwordx4 {V4(WD+4*i)}, v1, {S(SRD_D)}, s{S_OFF} offen {self.wflag}")
            if i < 6: a(f"s_add_u32 s{S_OFF}, s{S_OFF}, 4096")
        a(f"s_lshl_b32 s{S_T0+2}, s{S_G}, 7"); a(f"s_lshl_b32 s{S_T0+3}, s{S_SP}, 2")
        a(f"s_add_u32 s{S_T0+2}, s{S_T0+2}, s{S_T0+3}")
        a(f"v_mov_b32 v2, s{S_T0+2}")
        a(f"buffer_load_dword v8, v2, {S(SRD_B)}, 0 offen")
        a(f"s_lshl_b32 s{S_T0+3}, s{S_T0+2}, 2")
        a(f"v_mov_b32 v3, s{S_T0+3}")
        a(f"ds_read_b128 v[12:15], v3 offset:{L_T}")
        a(f"v_mov_b32 v3, {L_RS}")
        a("ds_read_b32 v9, v3")
        self.masksXY(5, 7, 28)
        for k in range(5):
            a(f"v_mov_b32 v{32+4*k}, 0"); a(f"v_mov_b32 v{33+4*k}, 0")
        for k in range(8): a(f"v_mov_b32 v{56+k}, 0")
        a(f"s_mov_b32 s{S_M1}, 0xffff0000"); a(f"s_mov_b32 s{S_M1+1}, 0xffff0000")
        a(f"s_mov_b32 s{S_M2}, 0"); a(f"s_mov_b32 s{S_M2+1}, -1")
        a(f"s_mul_i32 s{S_T0+4}, s{PART}, {28*8}"); a(f"s_add_u32 s{S_T0+4}, s{S_T0+4}, {WS_GU}")
        a(f"s_add_u32 s{S_T0+5}, s{S_T0+4}, {4*1792*8}")
        a("v_lshrrev_b32 v10, 4, v0"); a(f"s_mov_b32 s{S_T0}, {1792*8}"); a(f"v_mul_lo_u32 v10, v10, s{S_T0}")
        a("v_and_b32 v11, 15, v0"); a("v_min_u32 v11, 13, v11"); a("v_lshlrev_b32 v11, 4, v11")
        a("v_add_u32 v10, v10, v11")
        a("v_and_b32 v11, 31, v0"); a("v_lshlrev_b32 v11, 3, v11")
        a.label("L_W_ypoll")
        a(f"buffer_load_dwordx4 v[16:19], v10, {S(SRD_WS)}, s{S_T0+4} offen sc1")
        a(f"buffer_load_dwordx4 v[20:23], v10, {S(SRD_WS)}, s{S_T0+5} offen sc1")
        a(f"buffer_load_dwordx2 v[24:25], v11, {S(SRD_WS)}, s{S_T0+8} offen sc1")
        a("s_waitcnt vmcnt(0)")
        a(f"v_xor_b32 v30, s{S_TAG}, v17")
        for r in (19, 21, 23, 25):
            a(f"v_xor_b32 v31, s{S_TAG}, v{r}"); a("v_or_b32 v30, v30, v31")
        a("v_cmp_ne_u32 vcc, 0, v30")
        a("s_cbranch_vccz L_W_ygot")
        self.spin_guard("L_W_ypoll", "L_W_ygot", sleep=32)
        a.label("L_W_ygot")
        a(f"v_cmp_ne_u32 vcc, s{S_T0+9}, v24")
        a("s_cmp_eq_u64 vcc, 0")
        a(f"s_cselect_b32 s{S_T0}, {0 if self.forceslow else 1}, 0")
        a(f"v_mov_b32 v26, s{S_T0}"); a(f"v_mov_b32 v27, {L_SAME}")
        a("ds_write_b32 v27, v26")
        if self.lg: a(f"s_mov_b32 s79, s{S_T0}")
        for v in (16, 18, 20, 22): rows_reduce(a, v, 30, "v_add_f32")
        for v in (16, 18, 20, 22): rnd(a, v)
        for v in (16, 18):
            a(f"v_mul_f32 v28, s{S_LOG2E}, v{v}")
            a("v_sub_f32 v28, 0, v28")
            a("v_exp_f32 v28, v28")
            a("v_add_f32 v28, 1.0, v28")
            a("v_rcp_f32 v28, v28")
            a(f"v_mul_f32 v{v}, v{v}, v28")
            rnd(a, v)
        a("v_mul_f32 v16, v16, v20"); a("v_mul_f32 v18, v18, v22")
        a("v_cvt_pk_bf16_f32 v16, v16, v16"); a("v_cvt_pk_bf16_f32 v18, v18, v18")
        a("v_and_b32 v20, 1, v0"); a("v_lshlrev_b32 v20, 7, v20")
        a("v_bfe_u32 v21, v0, 1, 3"); a("v_lshlrev_b32 v21, 2, v21"); a("v_add_u32 v20, v20, v21")
        a("s_mov_b64 exec, 0x3fff")
        a(f"ds_write_b32 v20, v16 offset:{L_HP}")
        a(f"ds_write_b32 v20, v18 offset:{L_HP+64}")
        a("s_mov_b64 exec, -1")
        a("v_lshrrev_b32 v24, 4, v0"); a("v_lshlrev_b32 v24, 6, v24")
        a("s_waitcnt lgkmcnt(0)")
        HV = 160
        for k in range(2):
            a(f"ds_read_b128 {V4(HV+4*k)}, v24 offset:{L_HP+16*k}")
        a("s_waitcnt lgkmcnt(0)")
        self.masked_gemv(HV, WD, 7)
        for k in range(8): a(f"v_mul_f32 v{56+k}, v{56+k}, v9")
        a("v_lshlrev_b32 v12, 16, v8"); a(f"v_and_b32 v14, s{S_HI}, v8")
        a("v_add_f32 v12, v12, v13"); a("v_add_f32 v14, v14, v15")
        a(f"s_lshl_b32 s{S_T0+6}, s{PART}, 12")
        a(f"s_lshl_b32 s{S_T0+7}, s{CB}, 10"); a(f"s_add_u32 s{S_T0+6}, s{S_T0+6}, s{S_T0+7}")
        a(f"s_add_u32 s{S_T0+6}, s{S_T0+6}, {WS_AP}")
        a("v_and_b32 v20, 15, v0"); a("v_lshlrev_b32 v20, 6, v20")
        a("v_lshrrev_b32 v21, 4, v0"); a("v_lshlrev_b32 v21, 4, v21"); a("v_add_u32 v20, v20, v21")
        a(f"s_lshl_b32 s{S_T0+7}, s{S_T0+2}, 2"); a(f"s_add_u32 s{S_T0+7}, s{S_T0+7}, {WS_AP}")
        if self.lg: a(f"s_add_u32 s{S_T0+7}, s{S_T0+6}, {WS_APL - WS_AP}")
        a("v_lshlrev_b32 v10, 12, v0")
        a("v_lshlrev_b32 v22, 2, v0")
        a("v_and_b32 v23, 3, v0"); a("v_lshlrev_b32 v23, 6, v23")
        a("v_lshrrev_b32 v25, 2, v0"); a("v_lshlrev_b32 v25, 2, v25"); a("v_add_u32 v23, v23, v25")
        a(f"v_mov_b32 v29, s{S_TAG}"); a(f"v_mov_b32 v31, s{S_TAG}")
        a(f"s_mov_b32 s{S_SPIN}, {SPIN_LIMIT}")
        a("s_waitcnt lgkmcnt(0)")
        self.stamp(1)
        a("s_barrier")
        a("s_barrier")
        self.stamp(2)
        for k in range(4):
            a(f"ds_read_b32 v{16+k}, v22 offset:{L_G+256*k}")
        a("s_waitcnt lgkmcnt(0)")
        a("v_add_f32 v16, v16, v17"); a("v_add_f32 v18, v18, v19"); a("v_add_f32 v26, v16, v18")
        a("v_cvt_pk_bf16_f32 v26, v26, v26")
        a(f"ds_write_b32 v23, v26 offset:{L_PP}")
        a("s_waitcnt lgkmcnt(0)")
        PPV = 168
        for k in range(4):
            a(f"ds_read_b128 {V4(PPV+4*k)}, v24 offset:{L_PP+16*k}")
        a("s_waitcnt lgkmcnt(0)")
        D0 = 56; D1 = 60
        self.masked_gemv(PPV, 64, 16)
        m1 = f"s[{S_M1}:{S_M1+1}]"; m2 = f"s[{S_M2}:{S_M2+1}]"
        a(f"v_cndmask_b32 v26, v{D0}, v{D0+2}, {m1}")
        a(f"v_cndmask_b32 v27, v{D1}, v{D1+2}, {m1}")
        a(f"v_cndmask_b32 v28, v26, v27, {m2}")
        a(f"v_cndmask_b32 v26, v{D0+1}, v{D0+3}, {m1}")
        a(f"v_cndmask_b32 v27, v{D1+1}, v{D1+3}, {m1}")
        a(f"v_cndmask_b32 v30, v26, v27, {m2}")
        if self.lg:
            a("s_cmp_eq_u32 s79, 0"); a("s_cbranch_scc1 L_W_nl")
            a(f"buffer_store_dwordx4 v[28:31], v20, {S(SRD_WS)}, s{S_T0+7} offen")
            a.label("L_W_nl")
            a(f"buffer_store_dwordx4 v[28:31], v20, {S(SRD_WS)}, s{S_T0+6} offen sc1")
            self.stamp(3); self.stamp(4); self.stamp(5)
            self.dump_stamps(7, 3)
            a("s_branch L_end")
            return
        a(f"buffer_store_dwordx4 v[28:31], v20, {S(SRD_WS)}, s{S_T0+6} offen sc1")
        self.stamp(3)
        a.label("L_W_apoll")
        a(f"buffer_load_dwordx4 v[24:27], v10, {S(SRD_WS)}, s{S_T0+7} offen sc1")
        a("s_waitcnt vmcnt(0)")
        a(f"v_xor_b32 v16, s{S_TAG}, v25")
        a(f"v_xor_b32 v17, s{S_TAG}, v27"); a("v_or_b32 v16, v16, v17")
        a("v_cmp_ne_u32 vcc, 0, v16")
        a("s_cbranch_vccz L_W_agot")
        self.spin_guard("L_W_apoll", "L_W_agot")
        a.label("L_W_agot")
        self.stamp(4)
        allreduce64(a, 24, 16, "v_add_f32"); allreduce64(a, 26, 17, "v_add_f32")
        a("v_add_f32 v24, v24, v12"); a("v_add_f32 v26, v26, v14")
        if self.perturb:
            import struct
            bits = struct.unpack("<I", struct.pack("<f", float(self.perturb)))[0]
            a(f"v_add_f32 v24, {bits:#x}, v24"); a(f"v_add_f32 v26, {bits:#x}, v26")
        a("v_cvt_pk_bf16_f32 v24, v24, v26")
        a("s_mov_b64 exec, 1")
        a(f"buffer_store_dword v24, v2, {S(SRD_C)}, 0 offen")
        a("s_cmp_lg_u32 s2, 0")
        a("s_cbranch_scc1 L_W_noep")
        a(f"v_mov_b32 v25, s{S_TAG}"); a("v_mov_b32 v26, 0")
        a(f"buffer_store_dword v25, v26, {S(SRD_WS)}, 0 offen sc1")
        a.label("L_W_noep")
        a("s_mov_b64 exec, -1")
        self.stamp(5)
        if self.spin:
            if self.spin[0] in "SQ":
                a(f"v_mov_b32 v3, {L_RS+16}"); a("ds_read_b128 v[4:7], v3"); a("s_waitcnt lgkmcnt(0)")
                a("v_max_u32 v4, v4, v5"); a("v_max_u32 v6, v6, v7"); a("v_max_u32 v4, v4, v6")
                a(f"v_readfirstlane_b32 s{S_T0}, v4")
            else:
                k = int(self.spin[1:])
                a("s_waitcnt lgkmcnt(0)")
                a(f"s_mov_b32 s{S_T0}, s{S_TS+2*k}")
            a(f"s_add_u32 s{S_T0}, s{S_T0}, 10000")
            a.label("L_spin")
            a(f"s_memrealtime s[{S_T0+2}:{S_T0+3}]"); a("s_waitcnt lgkmcnt(0)")
            a(f"s_sub_u32 s{S_T0+4}, s{S_T0+2}, s{S_T0}")
            a(f"s_cmp_lt_i32 s{S_T0+4}, 0")
            a("s_cbranch_scc1 L_spin")
        self.dump_stamps(7, 3)
        self.hdump([(0, 0, "min"), (5, 1, "max"), (1, 10, "max"), (3, 11, "max"), (4, 12, "max"), (0, 13, "max")])
        a("s_waitcnt vmcnt(0)")

    def build(self):
        self.prologue()
        self.swave()
        self.qwave()
        self.wwave()
        self.a.label("L_end")
        self.a("s_endpgm")
        body = self.a.text()
        stub = open("parallel_sum__gqa_block_cached__moe_arch_mod__decode.s.ref").read()
        head = stub[:stub.index("; @launch")]
        txt = head + f"; @launch grid=(256,1,1) block=(384,1,1) lds={LDS_BYTES}\n"
        txt += f""".amdgcn_target "amdgcn-amd-amdhsa--gfx950"
.text
.globl {KNAME}
.p2align 8
.type {KNAME},@function
{KNAME}:
{body}
.section .rodata,"a"
.p2align 6
.amdhsa_kernel {KNAME}
  .amdhsa_next_free_vgpr 256
  .amdhsa_next_free_sgpr 102
  .amdhsa_accum_offset 256
  .amdhsa_group_segment_fixed_size 0
  .amdhsa_kernarg_size 104
  .amdhsa_user_sgpr_count 2
  .amdhsa_user_sgpr_kernarg_segment_ptr 1
  .amdhsa_system_sgpr_workgroup_id_x 1
.end_amdhsa_kernel
"""
        return txt

if __name__ == "__main__":
    import argparse
    p = argparse.ArgumentParser()
    p.add_argument("--dbg", action="store_true")
    p.add_argument("--wflag", default="nt")
    p.add_argument("--hdbg", action="store_true")
    p.add_argument("--spin", default=None)
    p.add_argument("--perturb", default=None)
    p.add_argument("--forceslow", action="store_true")
    p.add_argument("--nofast", action="store_true")
    p.add_argument("--auxprio", type=int, default=3)
    p.add_argument("--qprio", type=int, default=3)
    p.add_argument("--early", type=int, default=3)
    p.add_argument("--nob", action="store_true")
    p.add_argument("--ilv", action="store_true")
    p.add_argument("--series", action="store_true")
    p.add_argument("--nodrain", action="store_true")
    p.add_argument("--fasta0", action="store_true")
    p.add_argument("--noa0", action="store_true")
    p.add_argument("--ppoll", type=int, default=0)
    p.add_argument("--pool", action="store_true")
    p.add_argument("--pmap", default="blk")
    p.add_argument("--nstat", type=int, default=16)
    p.add_argument("--rot", type=int, default=0)
    p.add_argument("--atlat", action="store_true")
    p.add_argument("--vrot", type=int, default=0)
    p.add_argument("--grot", type=int, default=0)
    p.add_argument("--qf", type=int, default=0)
    p.add_argument("--dyn", type=int, default=0)
    p.add_argument("--ltag", action="store_true")
    p.add_argument("--solo", action="store_true")
    p.add_argument("--qown", action="store_true")
    p.add_argument("--qt", type=int, default=0)
    p.add_argument("--hold", action="store_true")
    p.add_argument("--lg", type=int, default=0)
    p.add_argument("--lgsl", type=int, default=1)
    p.add_argument("--st2", action="store_true")
    p.add_argument("--pre", type=int, default=0)
    p.add_argument("--dlook", type=int, default=2)
    p.add_argument("--dsleep", type=int, default=4)
    p.add_argument("-o", default="parallel_sum__gqa_block_cached__moe_arch_mod__decode.s")
    args = p.parse_args()
    g = Gen(dbg=args.dbg, wflag=args.wflag, hdbg=args.hdbg, spin=args.spin, perturb=args.perturb,
            forceslow=args.forceslow, auxprio=args.auxprio, qprio=args.qprio, nofast=args.nofast, early=args.early, nob=args.nob, ilv=args.ilv, series=args.series, drain=not args.nodrain, fasta0=args.fasta0, ppoll=args.ppoll, noa0=args.noa0, pool=args.pool, pmap=args.pmap, nstat=args.nstat, rot=args.rot, atlat=args.atlat, vrot=args.vrot, grot=args.grot, qf=args.qf, dyn=args.dyn, dlook=args.dlook, dsleep=args.dsleep, ltag=args.ltag, pre=args.pre, st2=args.st2, hold=args.hold, qt=args.qt, qown=args.qown, solo=args.solo, lg=args.lg, lgsl=args.lgsl)
    t = g.build()
    open(args.o, "w").write(t)
    print("wrote", args.o, len(t), "bytes")
```
